```python
import torch

def _softmax(x, axis=-1):
    return torch.softmax(x, dim=axis)
def _gelu(x):
    return torch.nn.functional.gelu(x, approximate="tanh")
def _silu(x):
    return torch.nn.functional.silu(x)
def _sigmoid(x):
    return torch.sigmoid(x)
def _layernorm(x, axis=-1, eps=1e-5):
    m = x.mean(dim=axis, keepdim=True)
    v = x.var(dim=axis, keepdim=True, unbiased=False)
    return (x - m) / torch.sqrt(v + eps)
def _scatter_add(tgt, idx, src, axis=0):
    return tgt.clone().index_add_(axis, idx, src)
def _segment_sum(src, seg, n):
    out = torch.zeros((n,) + src.shape[1:], dtype=src.dtype)
    return out.index_add_(0, seg, src)
def _pad(x, pw):
    flat = tuple(v for pair in reversed(pw) for v in pair)
    return torch.nn.functional.pad(x, flat)

kernel_name = 'sequential_preLN__mha_block__glu_gated_reglu__prompt'

def setup_inputs():

    _w = (lambda a: (lambda t: t.to(torch.bfloat16) if t.is_floating_point() else t)(torch.as_tensor(a)))
    def _A_setup():
        B, S, D, H = 1, 2048, 640, 32
        return {
            "x": _w((lambda *s: torch.randn(*s, dtype=torch.bfloat16) * 0.05)(B, S, D)),
            "wqkv": _w((lambda *s: torch.randn(*s, dtype=torch.bfloat16) * 0.05)(D, 3 * D)),
            "wo": _w((lambda *s: torch.randn(*s, dtype=torch.bfloat16) * 0.05)(D, D)),
        }
    _A_in = _A_setup()

    def _B_setup():
        B, S, D, F = 1, 2048, 640, 1728
        return {
            "x": _w((lambda *s: torch.randn(*s, dtype=torch.bfloat16) * 0.05)(B, S, D)),
            "W_gate": _w((lambda *s: torch.randn(*s, dtype=torch.bfloat16) * 0.4)(D, F) * (2.0 / D) ** 0.5),
            "W_up": _w((lambda *s: torch.randn(*s, dtype=torch.bfloat16) * 0.4)(D, F) * (2.0 / D) ** 0.5),
            "W_down": _w((lambda *s: torch.randn(*s, dtype=torch.bfloat16) * 0.4)(F, D) * (1.0 / F) ** 0.5),
        }
    _B_in = _B_setup()

    return {
        "A_x": _A_in["x"],
        "A_wqkv": _A_in["wqkv"],
        "A_wo": _A_in["wo"],
        "B_x": _B_in["x"],
        "B_W_gate": _B_in["W_gate"],
        "B_W_up": _B_in["W_up"],
        "B_W_down": _B_in["W_down"],
    }

def reference(A_x, A_wqkv, A_wo, B_x, B_W_gate, B_W_up, B_W_down):
    def _A_ref(x, wqkv, wo):
        B, S, D = x.shape
        H = 32
        Dh = D // H
        qkv = (lambda x, *d: x.permute(*d))((x @ wqkv).reshape(B, S, 3, H, Dh), 2, 0, 3, 1, 4)
        q, k, v = qkv[0], qkv[1], qkv[2]
        scores = torch.einsum("bhqd,bhkd->bhqk", q, k) * (Dh ** -0.5)
        p = _softmax(scores, axis=-1)
        o = torch.einsum("bhqk,bhkd->bhqd", p, v)
        return (lambda x, *d: x.permute(*d))(o, 0, 2, 1, 3).reshape(B, S, D) @ wo

    def _B_ref(x, W_gate, W_up, W_down):
        gate = torch.einsum("bsd,df->bsf", x, W_gate)
        up = torch.einsum("bsd,df->bsf", x, W_up)
        gate = gate * (lambda x, dt: x.to(dt))(gate > 0, gate.dtype)
        h = gate * up
        return torch.einsum("bsf,fd->bsd", h, W_down)

    x = A_x
    h = x + _A_ref(_layernorm(x, axis=-1), A_wqkv, A_wo)
    h2 = h + _B_ref(_layernorm(h, axis=-1), B_W_gate, B_W_up, B_W_down)
    return h2
```

```python
class Kern:
    def __init__(self, name, grid, block, lds, nv, na=0, nsgpr=102):
        self.name, self.grid, self.block, self.lds = name, grid, block, lds
        self.nv, self.na, self.nsgpr = nv, na, nsgpr
        self.L = []
        self.uid = 0
    def __call__(self, s):
        for ln in s.split("\n"):
            ln = ln.strip()
            if ln:
                self.L.append(ln)
    def label(self, base="L"):
        self.uid += 1
        return "%s_%s_%d" % (self.name[:-7], base, self.uid)
    def put(self, lab):
        self.L.append(lab + ":")
    def launch_line(self):
        return "; @launch kernel=%s grid=(%d,1,1) block=(%d,1,1) lds=%d" % (self.name, self.grid, self.block, self.lds)
    def text(self):
        o = [".globl %s" % self.name, ".p2align 8", ".type %s,@function" % self.name, "%s:" % self.name]
        for ln in self.L:
            if ln.endswith(":") or ln.startswith("."):
                o.append(ln)
            else:
                o.append("  " + ln)
        return "\n".join(o) + "\n"
    def desc(self):
        acc = (self.nv + 3) // 4 * 4
        tot = acc + self.na if self.na else self.nv
        return (".p2align 6\n.amdhsa_kernel %s\n  .amdhsa_next_free_vgpr %d\n  .amdhsa_next_free_sgpr %d\n"
                "  .amdhsa_accum_offset %d\n  .amdhsa_group_segment_fixed_size 0\n  .amdhsa_kernarg_size 80\n"
                "  .amdhsa_user_sgpr_count 2\n  .amdhsa_user_sgpr_kernarg_segment_ptr 1\n"
                "  .amdhsa_system_sgpr_workgroup_id_x 1\n.end_amdhsa_kernel\n") % (self.name, tot, self.nsgpr, acc)
    def srd(self, s, ptr, nbytes, off=0):
        if off:
            self("s_add_u32 s%d, s%d, 0x%x" % (s, ptr, off & 0xffffffff))
            self("s_addc_u32 s%d, s%d, 0" % (s + 1, ptr + 1))
            self("s_and_b32 s%d, s%d, 0xffff" % (s + 1, s + 1))
        else:
            self("s_mov_b32 s%d, s%d" % (s, ptr))
            self("s_and_b32 s%d, s%d, 0xffff" % (s + 1, ptr + 1))
        self("s_mov_b32 s%d, 0x%x" % (s + 2, nbytes))
        self("s_mov_b32 s%d, 0x00020000" % (s + 3))

def vr(b, n=1):
    return "v%d" % b if n == 1 else "v[%d:%d]" % (b, b + n - 1)
def ar(b, n=1):
    return "a%d" % b if n == 1 else "a[%d:%d]" % (b, b + n - 1)
def sr(b, n=1):
    return "s%d" % b if n == 1 else "s[%d:%d]" % (b, b + n - 1)

HDR = """; Kernarg layout (80 bytes, ptrs only, base s[0:1]): 0 A_x, 8 A_wqkv, 16 A_wo, 24 B_x (unused), 32 B_W_gate,
"""
def module(kerns, launches=None, hdr=HDR):
    launches = launches or kerns
    o = hdr
    for k in launches:
        o += k.launch_line() + "\n"
    o += '.amdgcn_target "amdgcn-amd-amdhsa--gfx950"\n.text\n'
    for k in kerns:
        o += k.text()
    o += '.section .rodata,"a"\n'
    for k in kerns:
        o += k.desc()
    return o
```

```python
from asmlib import *
from lay import *

class VM:
    def __init__(self, k):
        self.k = k; self.tags = []
    def op(self, tag, *lines):
        for ln in lines: self.k(ln)
        self.tags.append(tag)
    def count_after(self, tag):
        idx = max(i for i, t in enumerate(self.tags) if t == tag)
        return len(self.tags) - 1 - idx
    def wait(self, tag):
        n = self.count_after(tag)
        self.k("s_waitcnt vmcnt(%d)" % min(n, 63))

def gemm_core(k, vm, T, N, KS, GK, NSLOT, LOOK, NB, acc, wf, tok, WV, TV, LA, pol="", hooks=None, extra_after_b0=None, order=None):
    hooks = hooks or {}
    NG = (KS + GK - 1)//GK
    TPB = GK*N; SLOTB = TPB*1024
    def gks(g): return min(GK, KS - g*GK)
    def batch(g):
        L = []
        nd = (gks(g)*N + 3)//4
        slot = g % NSLOT
        for n in range(nd):
            pre = ["s_add_u32 m0, s29, %d" % (slot*SLOTB + n*4096)]
            if n == 0 and g > 0: pre.append("s_add_u32 s28, s28, %d" % SLOTB)
            else: pre.append("s_nop 0")
            L.append(pre + ["buffer_load_dwordx4 v%d, s[12:15], s28 offen %s lds" % (WV + n, pol)])
        D = []
        for kk in range(gks(g)):
            for j in range(T):
                pre = []
                if kk == 0 and j == 0 and g > 0: pre.append("s_add_u32 s30, s30, %d" % (GK*1024))
                D.append(pre + ["buffer_load_dwordx4 %s, v%d, s[12:15], s30 offen offset:%d %s" % (tok(slot, kk, j), TV + j, kk*1024, pol)])
        o = []
        while L or D:
            if L: o.append(L.pop(0))
            if D: o.append(D.pop(0))
        return [(("b", g), x) for x in o]
    for g in range(min(NSLOT, NG)):
        for tag, x in batch(g): vm.op(tag, *x)
        if g == 0 and extra_after_b0: extra_after_b0()
    if "pre" in hooks: hooks["pre"]()
    F = []
    for ks in range(KS):
        for n in (order(ks) if order else range(N)): F.append((ks, n))
    NF = len(F)
    def rd(f):
        ks, n = F[f]; g = ks//GK
        a = (g % NSLOT)*SLOTB + ((ks - g*GK)*N + n)*1024
        k("ds_read_b128 %s, v%d offset:%d" % (wf(f % NB), LA + (a >> 16), a & 0xffff))
    pend = []
    def sync(j):
        vm.wait(("b", j))
        k("s_barrier")
        if j >= 2 and j - 2 + NSLOT < NG:
            assert not pend
            pend.extend(batch(j - 2 + NSLOT))
        if ("sync", j) in hooks: hooks[("sync", j)]()
    sync(0)
    for f in range(min(LOOK, NF)): rd(f)
    for f in range(NF):
        ks, n = F[f]; g = ks//GK
        if f + LOOK < NF:
            g2 = F[f + LOOK][0]//GK
            if g2 != F[f + LOOK - 1][0]//GK: sync(g2)
            rd(f + LOOK)
        k("s_waitcnt lgkmcnt(%d)" % min(LOOK, NF - 1 - f))
        for j in range(T):
            k("v_mfma_f32_16x16x32_bf16 %s, %s, %s, %s" % (acc(n, j), wf(f % NB), tok(g % NSLOT, ks - g*GK, j), acc(n, j) if ks else "0"))
        if pend:
            tag, x = pend.pop(0); vm.op(tag, *x)
        if ("f", f) in hooks: hooks[("f", f)]()

def common_head(k, END):
    k("s_cmp_ge_u32 s2, 256")
    k("s_cbranch_scc1 %s" % END)

def lane_setup(k):
    k("""
    v_lshrrev_b32 v1, 6, v0
    v_and_b32 v0, 63, v0
    v_readfirstlane_b32 s26, v1
    v_lshlrev_b32 v1, 4, v0
    s_and_b32 s10, s2, 7
    s_lshr_b32 s11, s2, 3
    v_and_b32 v2, 15, v0
    v_lshrrev_b32 v3, 4, v0
    s_lshl_b32 s29, s26, 10
    v_add_u32 v5, 0x10000, v1
    v_add_u32 v6, 0x20000, v1
    v_mov_b32 v4, v1
    """)

def qreduce(k, a, t):
    k("v_mov_b32 v%d, v%d" % (t, a))
    k("s_nop 1")
    k("v_permlane16_swap_b32 v%d, v%d" % (a, t))
    k("s_nop 1")
    k("v_add_f32 v%d, v%d, v%d" % (a, a, t))
    k("v_mov_b32 v%d, v%d" % (t, a))
    k("s_nop 1")
    k("v_permlane32_swap_b32 v%d, v%d" % (a, t))
    k("s_nop 1")
    k("v_add_f32 v%d, v%d, v%d" % (a, a, t))

def gen_s3(opt=None):
    opt = opt or {}
    pol = opt.get("s3_ldpol", ""); stpol = opt.get("s3_stpol", "")
    k = Kern("s3_wo_kernel", 256, 256, 112896, nv=200)
    vm = VM(k)
    END = k.label("end")
    ACC = 32; WF = 52; NB = 8; TOK = 84; CF = 164; WV = 8; TV = 13; XV = 14; CA = 184; ONES = 188
    XL = 102400; CL = 112640
    common_head(k, END)
    k("s_load_dwordx2 s[8:9], s[0:1], 72")
    k("s_load_dwordx2 s[4:5], s[0:1], 0")
    lane_setup(k)
    k("""
    s_and_b32 s3, s10, 1
    s_lshl_b32 s24, s3, 4
    s_lshr_b32 s3, s10, 1
    s_lshl_b32 s3, s3, 2
    s_add_u32 s24, s24, s3
    s_and_b32 s3, s11, 3
    s_add_u32 s24, s24, s3
    s_lshl_b32 s24, s24, 2
    s_add_u32 s24, s24, s26
    s_lshr_b32 s25, s11, 2
    """)
    for n in range(5):
        k("v_add_u32 v%d, s29, v1" % (WV + n))
        if n: k("v_add_u32 v%d, %d, v%d" % (WV + n, n*4096, WV + n))
    k("s_mul_i32 s28, s25, %d" % (100*1024))
    k("s_add_u32 s28, s28, 0x%x" % WO)
    k("s_mul_i32 s30, s24, %d" % (20*1024))
    k("s_add_u32 s30, s30, 0x%x" % AO)
    k("v_mov_b32 v%d, v1" % TV)
    k("s_lshl_b32 s3, s24, 4")
    k("s_mul_i32 s31, s3, 1280")
    k("s_mul_i32 s3, s25, 160")
    k("s_add_u32 s31, s31, s3")
    for n in range(3):
        k("v_add_u32 v20, %d, v0" % (64*n))
        k("v_mul_u32_u24 v21, 6554, v20")
        k("v_lshrrev_b32 v21, 16, v21")
        k("v_mul_u32_u24 v22, 10, v21")
        k("v_sub_u32 v20, v20, v22")
        k("v_mul_u32_u24 v21, 1280, v21")
        k("v_lshl_add_u32 v%d, v20, 4, v21" % (XV + n))
    k("""
    s_and_b32 s3, s10, 1
    s_lshl_b32 s3, s3, 5
    s_add_u32 s32, s3, s11
    s_min_u32 s33, s32, 55
    s_mul_i32 s34, s33, 4682
    s_lshr_b32 s34, s34, 16
    s_mul_i32 s3, s34, 14
    s_sub_u32 s33, s33, s3
    s_lshr_b32 s3, s10, 1
    s_lshl_b32 s3, s3, 2
    s_add_u32 s35, s3, s34
    s_mul_i32 s36, s35, 14
    s_add_u32 s36, s36, s33
    s_lshl_b32 s36, s36, 6
    s_cmp_eq_u32 s33, 6
    s_cselect_b32 s3, 1, 0
    s_cmp_eq_u32 s33, 13
    s_cselect_b32 s3, 1, s3
    s_cmp_eq_u32 s34, 3
    s_cselect_b32 s3, s3, 0
    s_sub_u32 s33, s33, s3
    s_mul_i32 s37, s35, 280
    s_add_u32 s37, s37, s33
    s_mul_i32 s3, s26, 70
    s_add_u32 s37, s37, s3
    s_lshl_b32 s37, s37, 10
    """)
    k("s_add_u32 s37, s37, 0x%x" % GU)
    k("s_add_u32 s36, s36, 0x%x" % CS)
    k("s_waitcnt lgkmcnt(0)")
    k.srd(12, 8, WS_END)
    k.srd(16, 4, XB)
    def extra():
        k("s_mul_i32 s3, s26, 2560")
        for n in range(3):
            pre = ["s_add_u32 m0, s3, %d" % (XL + n*1024), "s_nop 0"]
            if n == 2: pre = ["s_mov_b32 exec_hi, 0"] + pre
            vm.op("x", *(pre + ["buffer_load_dwordx4 v%d, s[16:19], s31 offen lds" % (XV + n)]))
        k("s_mov_b64 exec, -1")
        for s in range(5):
            vm.op("c", "buffer_load_dwordx4 %s, v1, s[12:15], s37 offen %s" % (vr(CF + 4*s, 4), pol))
            if s < 4: k("s_add_u32 s37, s37, %d" % (14*1024))
    def pre():
        for r in range(4): k("v_mov_b32 v%d, 0x3f803f80" % (ONES + r))
    def colsum():
        for s in range(5):
            k("v_mfma_f32_16x16x32_bf16 %s, %s, %s, %s" % (vr(CA, 4), vr(CF + 4*s, 4), vr(ONES, 4), vr(CA, 4) if s else "0"))
    def colsum_w():
        k("s_lshl_b32 s3, s26, 6")
        k("s_add_u32 s3, s3, %d" % CL)
        k("v_lshl_add_u32 v20, v3, 4, s3")
        k("s_mov_b32 s38, 0x00010001")
        k("s_mov_b32 s39, 0x00010001")
        k("s_mov_b64 exec, s[38:39]")
        k("ds_write_b128 v20, %s" % vr(CA, 4))
        k("s_mov_b64 exec, -1")
        k("s_waitcnt lgkmcnt(0)")
    hooks = {"pre": pre, ("sync", 1): colsum, ("sync", 2): colsum_w}
    gemm_core(k, vm, 1, 5, 20, 4, 5, 4, NB, lambda n, j: vr(ACC + 4*n, 4), lambda b: vr(WF + 4*b, 4),
              lambda s, kk, j: vr(TOK + 16*s + 4*kk, 4), WV, TV, 4, pol, hooks, extra)
    k("s_mul_i32 s3, s26, 2560")
    k("s_add_u32 s3, s3, %d" % XL)
    k("v_mul_u32_u24 v20, 160, v2")
    k("v_lshl_add_u32 v20, v3, 3, v20")
    k("v_add_u32 v20, s3, v20")
    for i in range(5):
        k("ds_read_b64 %s, v20 offset:%d" % (vr(TOK + 2*i, 2), 32*i))
    k("v_lshlrev_b32 v21, 2, v2")
    k("v_add_u32 v28, %d, v21" % CL)
    for w in range(4):
        k("ds_read_b32 v%d, v28 offset:%d" % (CF + w, 64*w))
    k("s_mul_i32 s40, s24, 20480")
    k("s_add_u32 s40, s40, 0x%x" % HF)
    k("s_mul_i32 s41, s25, 5")
    k("v_mov_b32 v24, 0")
    k("v_mov_b32 v25, 0")
    k("s_waitcnt lgkmcnt(4)")
    for i in range(5):
        a = ACC + 4*i; x = TOK + 2*i
        k("v_lshlrev_b32 v22, 16, v%d" % x)
        k("v_and_b32 v23, 0xffff0000, v%d" % x)
        k("v_lshlrev_b32 v26, 16, v%d" % (x + 1))
        k("v_and_b32 v27, 0xffff0000, v%d" % (x + 1))
        k("v_pk_add_f32 %s, %s, v[22:23]" % (vr(a, 2), vr(a, 2)))
        k("v_pk_add_f32 %s, %s, v[26:27]" % (vr(a + 2, 2), vr(a + 2, 2)))
        k("s_add_u32 s3, s41, %d" % i)
        k("s_lshr_b32 s42, s3, 1")
        k("s_lshl_b32 s42, s42, 10")
        k("s_and_b32 s3, s3, 1")
        k("s_lshl_b32 s3, s3, 3")
        k("s_add_u32 s42, s42, s3")
        k("s_add_u32 s42, s42, s40")
        k("v_cvt_pk_bf16_f32 v%d, v%d, v%d" % (a, a, a + 1))
        k("v_cvt_pk_bf16_f32 v%d, v%d, v%d" % (a + 1, a + 2, a + 3))
        k("buffer_store_dwordx2 %s, v1, s[12:15], s42 offen %s" % (vr(a, 2), stpol))
        for h in range(2):
            k("v_dot2c_f32_bf16 v24, v%d, v%d" % (a + h, ONES))
            k("v_dot2c_f32_bf16 v25, v%d, v%d" % (a + h, a + h))
    k("s_nop 2")
    qreduce(k, 24, 22)
    qreduce(k, 25, 22)
    k("s_lshl_b32 s3, s24, 10")
    k("s_lshl_b32 s42, s25, 3")
    k("s_add_u32 s42, s42, s3")
    k("s_add_u32 s42, s42, 0x%x" % ST)
    k("v_lshlrev_b32 v20, 6, v2")
    k("s_waitcnt lgkmcnt(0)")
    k("v_add_f32 v%d, v%d, v%d" % (CF, CF, CF + 1))
    k("v_add_f32 v%d, v%d, v%d" % (CF + 2, CF + 2, CF + 3))
    k("s_mov_b64 exec, 0xffff")
    k("buffer_store_dwordx2 v[24:25], v20, s[12:15], s42 offen %s" % stpol)
    k("v_add_f32 v%d, v%d, v%d" % (CF, CF, CF + 2))
    k("s_cmp_lt_u32 s32, 56")
    k("s_cselect_b32 s3, 0, 1")
    k("s_add_u32 s3, s3, s26")
    k("s_cmp_eq_u32 s3, 0")
    k("s_cbranch_scc0 %s" % END)
    k("buffer_store_dword v%d, v21, s[12:15], s36 offen %s" % (CF, stpol))
    k.put(END)
    k("s_endpgm")
    return k

def gen_s4(opt=None):
    opt = opt or {}
    pol = opt.get("s4_ldpol", ""); stpol = opt.get("s4_stpol", "")
    LOOK = opt.get("s4_look", 4); NB = LOOK + 2
    k = Kern("s4_gu_kernel", 256, 256, 147456, nv=208, na=80 + 4*NB)
    vm = VM(k)
    END = k.label("end")
    ACC = 32; CSV = 144; WV = 8; TV = 15; STV = 200
    CL = 143360
    common_head(k, END)
    k("s_load_dwordx2 s[8:9], s[0:1], 72")
    lane_setup(k)
    k("""
    s_and_b32 s3, s10, 1
    s_lshl_b32 s24, s3, 3
    s_and_b32 s3, s11, 7
    s_add_u32 s24, s24, s3
    s_lshl_b32 s24, s24, 2
    s_add_u32 s24, s24, s26
    s_lshl_b32 s24, s24, 1
    s_lshr_b32 s34, s11, 3
    s_lshr_b32 s33, s10, 1
    s_lshl_b32 s25, s33, 2
    s_add_u32 s25, s25, s34
    s_mul_i32 s35, s33, 27
    s_mul_i32 s3, s34, 7
    s_add_u32 s35, s35, s3
    """)
    k("s_cmp_eq_u32 s34, 3")
    k("s_cselect_b32 s36, 0x08102040, 0")
    for n in range(7):
        k("s_add_u32 s3, s26, %d" % (4*n))
        k("s_bitcmp1_b32 s36, s3")
        k("s_subb_u32 s3, s3, 0")
        k("s_lshl_b32 s3, s3, 10")
        k("v_add_u32 v%d, s3, v1" % (WV + n))
    k("s_mul_i32 s28, s25, %d" % (280*1024))
    k("s_add_u32 s28, s28, 0x%x" % GU)
    k("s_mul_i32 s30, s24, %d" % (20*1024))
    k("s_add_u32 s30, s30, 0x%x" % HF)
    k("v_mov_b32 v%d, v1" % TV)
    k("v_add_u32 v%d, 20480, v1" % (TV + 1))
    k("s_lshl_b32 s37, s24, 10")
    k("s_add_u32 s37, s37, 0x%x" % ST)
    k("v_lshlrev_b32 v20, 6, v2")
    k("v_lshl_add_u32 v20, v3, 4, v20")
    k("s_mul_i32 s38, s25, 896")
    k("s_add_u32 s38, s38, 0x%x" % CS)
    k("s_waitcnt lgkmcnt(0)")
    k.srd(12, 8, WS_END)
    def extra():
        for j in range(2):
            vm.op("st", "buffer_load_dwordx4 %s, v20, s[12:15], s37 offen offset:%d" % (vr(STV + 4*j, 4), 1024*j))
        vm.op("cs", "s_mov_b32 exec_hi, 0x00ffffff", "s_add_u32 m0, s29, %d" % CL, "s_nop 0", "buffer_load_dwordx4 v1, s[12:15], s38 offen lds", "s_mov_b64 exec, -1")
    def stats():
        for j in range(2):
            s = STV + 4*j
            k("v_add_f32 v%d, v%d, v%d" % (s, s, s + 2))
            k("v_add_f32 v%d, v%d, v%d" % (s + 1, s + 1, s + 3))
            qreduce(k, s, 21); qreduce(k, s + 1, 21)
            m = 22 + 2*j
            k("v_mul_f32 v%d, 0x%x, v%d" % (m, f2u(1.0/640), s))
            k("v_mul_f32 v%d, 0x%x, v%d" % (m + 1, f2u(1.0/640), s + 1))
            k("v_fma_f32 v%d, -v%d, v%d, v%d" % (m + 1, m, m, m + 1))
            k("v_max_f32 v%d, 0, v%d" % (m + 1, m + 1))
            k("v_add_f32 v%d, 0x%x, v%d" % (m + 1, f2u(1e-5), m + 1))
            k("v_rcp_f32 v%d, v%d" % (m + 1, m + 1))
        k("s_add_u32 s3, s29, %d" % CL)
        k("v_lshl_add_u32 v21, v3, 4, s3")
        k("s_waitcnt lgkmcnt(0)")
        for n in range(14):
            k("ds_read_b128 %s, v21 offset:%d" % (vr(CSV + 4*n, 4), 64*n))
        k("s_waitcnt lgkmcnt(0)")
    hooks = {("sync", 1): stats}
    def order(ks):
        return [x for i in range(7) for x in (i, i + 7)] if ks == 19 else range(14)
    gemm_core(k, vm, 2, 14, 20, 2, 5, LOOK, NB, lambda n, j: vr(ACC + 8*n + 4*j, 4), lambda b: ar(80 + 4*b, 4),
              lambda s, kk, j: ar(16*s + 8*kk + 4*j, 4), WV, TV, 4, pol, hooks, extra, order)
    k("s_mul_i32 s40, s24, %d" % (54*1024))
    k("s_add_u32 s40, s40, 0x%x" % HH)
    k("v_add_u32 v7, %d, v1" % (54*1024))
    k("s_nop 7")
    for i in range(7):
        k("s_add_u32 s3, s35, %d" % i)
        k("s_lshr_b32 s42, s3, 1")
        k("s_lshl_b32 s42, s42, 10")
        k("s_and_b32 s3, s3, 1")
        k("s_lshl_b32 s3, s3, 3")
        k("s_add_u32 s42, s42, s3")
        k("s_add_u32 s42, s42, s40")
        if i == 6:
            k("s_cmp_eq_u32 s34, 3")
            k("s_cbranch_scc1 %s" % END)
        for j in range(2):
            g = ACC + 8*i + 4*j; u = ACC + 8*(i + 7) + 4*j; m = 22 + 2*j
            for h in range(2):
                k("v_pk_fma_f32 %s, %s, %s, %s op_sel:[0,0,0] op_sel_hi:[1,0,1] neg_lo:[0,1,0] neg_hi:[0,1,0]" % (vr(g + 2*h, 2), vr(CSV + 4*i + 2*h, 2), vr(m, 2), vr(g + 2*h, 2)))
                k("v_pk_fma_f32 %s, %s, %s, %s op_sel:[0,0,0] op_sel_hi:[1,0,1] neg_lo:[0,1,0] neg_hi:[0,1,0]" % (vr(u + 2*h, 2), vr(CSV + 4*(i + 7) + 2*h, 2), vr(m, 2), vr(u + 2*h, 2)))
            for r in range(4):
                k("v_max_f32 v%d, 0, v%d" % (g + r, g + r))
            for h in range(2):
                k("v_pk_mul_f32 %s, %s, %s op_sel:[0,1] op_sel_hi:[1,1]" % (vr(u + 2*h, 2), vr(u + 2*h, 2), vr(m, 2)))
            for h in range(2):
                k("v_pk_mul_f32 %s, %s, %s" % (vr(g + 2*h, 2), vr(g + 2*h, 2), vr(u + 2*h, 2)))
            k("v_cvt_pk_bf16_f32 v%d, v%d, v%d" % (g, g, g + 1))
            k("v_cvt_pk_bf16_f32 v%d, v%d, v%d" % (g + 1, g + 2, g + 3))
            k("buffer_store_dwordx2 %s, v%d, s[12:15], s42 offen %s" % (vr(g, 2), 1 if j == 0 else 7, stpol))
    k.put(END)
    k("s_endpgm")
    return k

def gen_s5(opt=None):
    opt = opt or {}
    pol = opt.get("s5_ldpol", ""); stpol = opt.get("s5_stpol", "")
    NS = opt.get("s5_ns", 6)
    k = Kern("s5_dn_kernel", 256, 256, NS*20480, nv=96 + 16*NS)
    vm = VM(k)
    END = k.label("end")
    ACC = 32; WF = 52; NB = 8; HR = 84; TOK = 96; WV = 8; TV = 13
    common_head(k, END)
    k("s_load_dwordx2 s[8:9], s[0:1], 72")
    k("s_load_dwordx2 s[4:5], s[0:1], 56")
    lane_setup(k)
    k("""
    s_and_b32 s3, s10, 1
    s_lshl_b32 s24, s3, 1
    s_lshr_b32 s3, s10, 2
    s_add_u32 s24, s24, s3
    s_lshl_b32 s24, s24, 3
    s_and_b32 s3, s11, 7
    s_add_u32 s24, s24, s3
    s_lshl_b32 s24, s24, 2
    s_add_u32 s24, s24, s26
    s_bfe_u32 s25, s10, 0x10001
    s_lshl_b32 s25, s25, 2
    s_lshr_b32 s3, s11, 3
    s_add_u32 s25, s25, s3
    """)
    for n in range(5):
        k("v_add_u32 v%d, s29, v1" % (WV + n))
        if n: k("v_add_u32 v%d, %d, v%d" % (WV + n, n*4096, WV + n))
    k("s_mul_i32 s28, s25, %d" % (270*1024))
    k("s_add_u32 s28, s28, 0x%x" % WD)
    k("s_mul_i32 s30, s24, %d" % (54*1024))
    k("s_add_u32 s30, s30, 0x%x" % HH)
    k("v_mov_b32 v%d, v1" % TV)
    k("s_mul_i32 s40, s24, 20480")
    k("s_add_u32 s40, s40, 0x%x" % HF)
    k("s_mul_i32 s41, s25, 5")
    k("s_waitcnt lgkmcnt(0)")
    k.srd(12, 8, WS_END)
    k.srd(16, 4, XB)
    def extra():
        for i in range(5):
            k("s_add_u32 s3, s41, %d" % i)
            k("s_lshr_b32 s42, s3, 1")
            k("s_lshl_b32 s42, s42, 10")
            k("s_and_b32 s3, s3, 1")
            k("s_lshl_b32 s3, s3, 3")
            k("s_add_u32 s42, s42, s3")
            k("s_add_u32 s42, s42, s40")
            vm.op("h", "buffer_load_dwordx2 %s, v1, s[12:15], s42 offen" % vr(HR + 2*i, 2))
    def pre():
        k("s_lshl_b32 s3, s24, 4")
        k("v_add_u32 v20, s3, v2")
        k("v_mul_u32_u24 v20, 1280, v20")
        k("s_mul_i32 s3, s25, 160")
        k("v_add_u32 v20, s3, v20")
        k("v_lshl_add_u32 v21, v3, 3, v20")
        k("v_and_b32 v22, 1, v3")
        k("v_lshl_add_u32 v20, v22, 5, v20")
        k("v_lshrrev_b32 v22, 1, v3")
        k("v_lshl_add_u32 v20, v22, 4, v20")
    gemm_core(k, vm, 1, 5, 54, 4, NS, 4, NB, lambda n, j: vr(ACC + 4*n, 4), lambda b: vr(WF + 4*b, 4),
              lambda s, kk, j: vr(TOK + 16*s + 4*kk, 4), WV, TV, 4, pol, {"pre": pre}, extra)
    for i in range(5):
        x = HR + 2*i; t = WF + 4*i
        k("v_lshlrev_b32 v%d, 16, v%d" % (TOK + 4*i, x))
        k("v_and_b32 v%d, 0xffff0000, v%d" % (TOK + 4*i + 1, x))
        k("v_lshlrev_b32 v%d, 16, v%d" % (TOK + 4*i + 2, x + 1))
        k("v_and_b32 v%d, 0xffff0000, v%d" % (TOK + 4*i + 3, x + 1))
    R = [HR, HR + 2, HR + 4, HR + 6, HR + 8]
    for i in range(5):
        a = ACC + 4*i
        k("v_pk_add_f32 %s, %s, %s" % (vr(a, 2), vr(a, 2), vr(TOK + 4*i, 2)))
        k("v_pk_add_f32 %s, %s, %s" % (vr(a + 2, 2), vr(a + 2, 2), vr(TOK + 4*i + 2, 2)))
        k("v_cvt_pk_bf16_f32 v%d, v%d, v%d" % (R[i], a, a + 1))
        k("v_cvt_pk_bf16_f32 v%d, v%d, v%d" % (R[i] + 1, a + 2, a + 3))
    k("buffer_store_dwordx2 %s, v21, s[16:19], 0 offen offset:128 %s" % (vr(R[4], 2), stpol))
    for p in range(2):
        k("v_permlane16_swap_b32 v%d, v%d" % (R[2*p], R[2*p + 1]))
        k("v_permlane16_swap_b32 v%d, v%d" % (R[2*p] + 1, R[2*p + 1] + 1))
    k("s_nop 1")
    for p in range(2):
        k("buffer_store_dwordx4 %s, v20, s[16:19], 0 offen offset:%d %s" % (vr(R[2*p], 4), 64*p, stpol))
    k.put(END)
    k("s_endpgm")
    return k
```

```python
QS = 0x0
KV = 0x280000
AO = 0x780000
HF = 0xA00000
HH = 0xC80000
WO = 0x1340000
GU = 0x1410000
WD = 0x1870000
ST = 0x1A90000
CS = 0x1AB0000
WS_END = 0x1B00000
XB = 2048*640*2
WQKVB = 640*1920*2
WOB = 640*640*2
WGB = 640*1728*2
QSCALE = (20.0 ** -0.5) * 1.4426950408889634
import struct
def f2u(f):
    return struct.unpack("<I", struct.pack("<f", f))[0]
```

```python
from asmlib import *
from lay import *

def gen_s1(opt=None):
    opt = opt or {}
    ldpol = opt.get("s1_ldpol", "")
    stpol = opt.get("s1_stpol", "")
    k = Kern("s1_qkv_kernel", 256, 256, 163840, nv=232)
    ACC = 64; SX = 128; SQ = 132; SW = 136; SEL = 140
    def XF(p, a): return 144 + p*16 + a*4
    def WF(p, b): return 152 + p*16 + b*4
    def XA(c, a, kk): return 176 + c*8 + a*4 + kk
    def WA(c, b): return 200 + c*2 + b
    XD = 206; WD_ = 210; SA = 214
    END = k.label("end")
    k("s_cmp_ge_u32 s2, 256")
    k("s_cbranch_scc1 %s" % END)
    k("s_load_dwordx4 s[4:7], s[0:1], 0")
    k("s_load_dwordx2 s[8:9], s[0:1], 72")
    k("""
    s_and_b32 s10, s2, 7
    s_lshr_b32 s11, s2, 3
    s_lshr_b32 s24, s10, 1
    s_lshl_b32 s24, s24, 2
    s_and_b32 s3, s11, 3
    s_add_u32 s24, s24, s3
    s_and_b32 s25, s10, 1
    s_lshl_b32 s25, s25, 3
    s_lshr_b32 s3, s11, 2
    s_add_u32 s25, s25, s3
    s_cmp_ge_u32 s25, 15
    """)
    k("s_cbranch_scc1 %s" % END)
    k("""
    v_lshrrev_b32 v1, 6, v0
    v_and_b32 v0, 63, v0
    v_readfirstlane_b32 s26, v1
    v_lshrrev_b32 v2, 3, v0
    v_lshrrev_b32 v3, 4, v0
    v_and_b32 v4, 7, v0
    s_lshr_b32 s27, s26, 1
    s_and_b32 s28, s26, 1
    s_lshl_b32 s29, s26, 12
    s_lshl_b32 s3, s24, 7
    s_lshl_b32 s10, s26, 5
    s_add_u32 s3, s3, s10
    """)
    k("v_add_u32 v5, s3, v2")
    k("s_movk_i32 s10, 1280")
    k("v_mul_lo_u32 v5, v5, s10")
    for i in range(4):
        k("v_add_u32 v6, %d, v3" % (4*i))
        k("v_and_b32 v6, 7, v6")
        k("v_xor_b32 v6, v6, v4")
        k("v_lshl_add_u32 v6, v6, 4, v5")
        k("v_add_u32 v%d, %d, v6" % (XD + i, i*8*1280))
    k("s_lshl_b32 s3, s26, 4")
    k("v_add_u32 v5, s3, v3")
    k("s_movk_i32 s10, 3840")
    k("v_mul_lo_u32 v5, v5, s10")
    k("v_and_b32 v6, 15, v0")
    k("v_lshlrev_b32 v7, 2, v3")
    k("v_xor_b32 v6, v6, v7")
    k("v_lshl_add_u32 v5, v6, 4, v5")
    k("s_lshl_b32 s3, s25, 8")
    k("v_add_u32 v5, s3, v5")
    for i in range(4):
        k("v_add_u32 v%d, %d, v5" % (WD_ + i, i*4*3840))
    k("s_waitcnt lgkmcnt(0)")
    k.srd(12, 4, XB)
    k.srd(16, 6, WQKVB)
    def dma_list(s):
        slot = s % 5
        L = []
        L.append(["s_movk_i32 s30, %d" % (s*128), "s_mov_b32 s31, %d" % (s*64*3840)])
        for i in range(4):
            L.append(["s_add_u32 m0, s29, %d" % (slot*32768 + i*1024), "s_nop 0",
                      "buffer_load_dwordx4 v%d, s[12:15], s30 offen %s lds" % (XD + i, ldpol)])
            L.append(["s_add_u32 m0, s29, %d" % (slot*32768 + 16384 + i*1024), "s_nop 0",
                      "buffer_load_dwordx4 v%d, s[16:19], s31 offen %s lds" % (WD_ + i, ldpol)])
        return L
    for s in range(5):
        for grp in dma_list(s):
            for ln in grp: k(ln)
    k.srd(20, 8, AO)
    k("""
    v_and_b32 v8, 31, v0
    v_lshrrev_b32 v9, 5, v0
    v_lshrrev_b32 v10, 1, v8
    v_and_b32 v10, 7, v10
    s_lshl_b32 s3, s27, 1
    s_add_u32 s32, s3, s28
    s_xor_b32 s33, s32, 1
    s_lshl_b32 s3, s28, 1
    s_add_u32 s34, s3, s27
    s_xor_b32 s35, s34, 1
    """)
    for a in range(2):
        k("s_lshl_b32 s3, s%d, 12" % (32 + a))
        k("v_lshl_add_u32 v11, v8, 7, s3")
        for kk in range(4):
            k("v_add_u32 v12, %d, v9" % (2*kk))
            k("v_xor_b32 v12, v12, v10")
            k("v_lshl_add_u32 v%d, v12, 4, v11" % XA(0, a, kk))
            for c in (1, 2):
                k("v_add_u32 v%d, 0x%x, v%d" % (XA(c, a, kk), c*65536, XA(0, a, kk)))
    k("""
    v_lshrrev_b32 v11, 2, v0
    v_and_b32 v11, 3, v11
    v_lshl_add_u32 v12, v9, 3, v11
    v_lshlrev_b32 v12, 8, v12
    v_and_b32 v13, 1, v3
    v_lshlrev_b32 v13, 1, v13
    v_bfe_u32 v14, v0, 1, 1
    v_or_b32 v13, v13, v14
    v_and_b32 v14, 1, v0
    v_lshl_add_u32 v12, v14, 3, v12
    v_lshl_add_u32 v12, v13, 4, v12
    v_add_u32 v12, 0x4000, v12
    """)
    for b in range(2):
        k("v_xor_b32 v13, s%d, v11" % (34 + b))
        k("v_lshl_add_u32 v%d, v13, 6, v12" % WA(0, b))
        for c in (1, 2):
            k("v_add_u32 v%d, 0x%x, v%d" % (WA(c, b), c*65536, WA(0, b)))
    k("""
    v_xor_b32 v13, v0, v3
    v_and_b32 v13, 1, v13
    v_cmp_eq_u32 vcc, 0, v13
    v_mov_b32 v14, 0x3f803f80
    s_nop 0
    v_cndmask_b32 v140, 0, v14, vcc
    v_mov_b32 v141, v140
    v_mov_b32 v142, v140
    v_mov_b32 v143, v140
    """)
    for r in range(ACC, ACC + 76):
        k("v_mov_b32 v%d, 0" % r)
    LV = k.label("v"); LQK = k.label("qk"); LK = k.label("k"); LA = k.label("adr")
    k("s_mov_b32 s40, 1.0")
    k("s_cmp_ge_u32 s25, 10")
    k("s_cbranch_scc1 %s" % LV)

    def reads(p, s, kk):
        slot = s % 5; c = slot >> 1; o = (slot & 1)*32768
        return ["ds_read_b128 %s, v%d offset:%d" % (vr(XF(p, 0), 4), XA(c, 0, kk), o),
                "ds_read_b64_tr_b16 %s, v%d offset:%d" % (vr(WF(p, 0), 2), WA(c, 0), o + kk*4096),
                "ds_read_b64_tr_b16 %s, v%d offset:%d" % (vr(WF(p, 0) + 2, 2), WA(c, 0), o + kk*4096 + 1024),
                "ds_read_b64_tr_b16 %s, v%d offset:%d" % (vr(WF(p, 1), 2), WA(c, 1), o + kk*4096),
                "ds_read_b64_tr_b16 %s, v%d offset:%d" % (vr(WF(p, 1) + 2, 2), WA(c, 1), o + kk*4096 + 1024),
                "ds_read_b128 %s, v%d offset:%d" % (vr(XF(p, 1), 4), XA(c, 1, kk), o)]
    def mainloop(isv):
        def M(p, a, b):
            d = vr(ACC + (a*2 + b)*16, 16)
            x = vr(XF(p, a), 4); w = vr(WF(p, b), 4)
            A, B = (x, w) if isv else (w, x)
            return "v_mfma_f32_32x32x16_bf16 %s, %s, %s, %s" % (d, A, B, d)
        def stats(p):
            x = XF(p, 0); w = WF(p, 0)
            return ["v_mfma_f32_4x4x4_16b_bf16 %s, %s, %s, %s" % (vr(SQ, 4), vr(x, 2), vr(x, 2), vr(SQ, 4)),
                    "v_mfma_f32_16x16x32_bf16 %s, %s, %s, %s" % (vr(SX, 4), vr(SEL, 4), vr(x, 4), vr(SX, 4)),
                    "v_mfma_f32_16x16x32_bf16 %s, %s, %s, %s" % (vr(SW, 4), vr(SEL, 4), vr(w, 4), vr(SW, 4)),
                    "v_mfma_f32_4x4x4_16b_bf16 %s, %s, %s, %s" % (vr(SQ, 4), vr(x + 2, 2), vr(x + 2, 2), vr(SQ, 4))]
        k("s_waitcnt vmcnt(32)")
        k("s_barrier")
        for r in reads(0, 0, 0): k(r)
        p = 0
        pend = []
        for s in range(10):
            for kk in range(4):
                last = (s == 9 and kk == 3)
                st = stats(p)
                if kk < 3:
                    R = reads(p ^ 1, s, kk + 1)
                    k("s_waitcnt lgkmcnt(3)")
                    k(M(p, 0, 0)); k(R[0]); k(R[1]); k(R[2])
                    k("s_waitcnt lgkmcnt(4)")
                    k(M(p, 0, 1)); k(R[3]); k(R[4]); k(R[5])
                    k("s_waitcnt lgkmcnt(6)")
                    k(M(p, 1, 0))
                    for _ in range(2):
                        if pend:
                            for ln in pend.pop(0): k(ln)
                    k(M(p, 1, 1))
                    if pend:
                        for ln in pend.pop(0): k(ln)
                    for x in st: k(x)
                else:
                    assert not pend
                    k("s_waitcnt lgkmcnt(0)")
                    k(M(p, 0, 0)); k(M(p, 0, 1))
                    if not last:
                        hi = min(s + 4, 9)
                        k("s_waitcnt vmcnt(%d)" % (8*(hi - (s + 1))))
                        k("s_barrier")
                        R = reads(p ^ 1, s + 1, 0)
                        k(M(p, 1, 0))
                        for r in R: k(r)
                        k(M(p, 1, 1))
                        if s + 5 <= 9:
                            pend = dma_list(s + 5)
                    else:
                        k(M(p, 1, 0)); k(M(p, 1, 1))
                    for x in st: k(x)
                p ^= 1
        k("s_nop 15")
        k("""
        v_and_b32 v13, 3, v0
        v_cmp_eq_u32 vcc, 1, v13
        v_cmp_eq_u32 s[42:43], 2, v13
        v_cmp_eq_u32 s[44:45], 3, v13
        v_and_b32 v14, 16, v0
        v_cmp_ne_u32 s[46:47], 0, v14
        v_cndmask_b32 v15, v132, v133, vcc
        v_cndmask_b32 v15, v15, v134, s[42:43]
        v_cndmask_b32 v15, v15, v135, s[44:45]
        v_cndmask_b32 v16, v128, v129, s[46:47]
        v_cndmask_b32 v17, v136, v137, s[46:47]
        v_mov_b32 v18, v15
        s_nop 1
        v_permlane32_swap_b32 v15, v18
        s_nop 1
        v_add_f32 v15, v15, v18
        """)
        k("v_mul_f32 v16, 0x%x, v16" % f2u(1.0/640))
        k("v_mul_f32 v15, 0x%x, v15" % f2u(1.0/640))
        k("v_fma_f32 v15, -v16, v16, v15")
        k("v_max_f32 v15, 0, v15")
        k("v_add_f32 v15, 0x%x, v15" % f2u(1e-5))
        k("v_rsq_f32 v15, v15")
        k("s_lshl_b32 s3, s32, 7")
        k("v_lshl_add_u32 v18, v8, 2, s3")
        k("v_mul_f32 v15, s40, v15")
        k("s_lshl_b32 s3, s34, 7")
        k("v_lshl_add_u32 v19, v8, 2, s3")
        k("ds_write_b32 v18, v16")
        k("ds_write_b32 v18, v15 offset:512")
        k("ds_write_b32 v19, v17 offset:1024")
        k("s_waitcnt lgkmcnt(0)")
        k("s_barrier")

    k("s_cmp_ge_u32 s25, 5")
    k("s_cbranch_scc1 %s" % LK)
    k("s_mov_b32 s40, 0x%x" % f2u(QSCALE))
    k("s_mov_b32 s36, 81920")
    k("s_lshl_b32 s3, s24, 1")
    k("s_add_u32 s3, s3, s27")
    k("s_mul_i32 s37, s3, 2560")
    k("s_add_u32 s37, s37, 0x%x" % QS)
    k("s_movk_i32 s38, 1280")
    k("s_movk_i32 s39, 1024")
    k("s_movk_i32 s41, 1280")
    k("s_lshl_b32 s48, s25, 5")
    k("s_branch %s" % LA)
    k.put(LK)
    k("s_mov_b32 s36, 163840")
    k("s_lshl_b32 s3, s24, 1")
    k("s_add_u32 s3, s3, s27")
    k("s_mul_i32 s37, s3, 5120")
    k("s_add_u32 s37, s37, 0x%x" % KV)
    k("s_movk_i32 s38, 1024")
    k("s_movk_i32 s39, 2048")
    k("s_movk_i32 s41, 256")
    k("s_sub_u32 s48, s25, 5")
    k("s_lshl_b32 s48, s48, 5")
    k.put(LA)
    k("v_mov_b32 v20, s38")
    k("v_mov_b32 v21, s41")
    k("v_lshlrev_b32 v22, 4, v8")
    k("v_lshl_add_u32 v23, v8, 3, s39")
    k("s_cmp_eq_u32 s28, 0")
    k("s_cselect_b64 s[50:51], -1, 0")
    for b in range(2):
        k("s_lshl_b32 s3, s%d, 3" % (34 + b))
        k("s_add_u32 s3, s3, s48")
        for i in range(4):
            k("v_add_u32 v13, s3, v9")
            if i: k("v_add_u32 v13, %d, v13" % (2*i))
            k("v_mul_u32_u24 v14, 205, v13")
            k("v_lshrrev_b32 v14, 10, v14")
            k("v_mul_u32_u24 v15, 5, v14")
            k("v_sub_u32 v15, v13, v15")
            k("v_cmp_eq_u32 vcc, 4, v15")
            k("v_lshrrev_b32 v16, 1, v15")
            k("v_lshl_add_u32 v16, v16, 9, v22")
            k("v_and_b32 v17, 1, v15")
            k("v_lshl_add_u32 v16, v17, 3, v16")
            k("v_cndmask_b32 v16, v16, v23, vcc")
            k("v_cndmask_b32 v17, v20, v21, vcc")
            k("v_mul_lo_u32 v14, v14, s36")
            k("v_add3_u32 v16, v16, v14, s37")
            k("v_add_u32 v17, v16, v17")
            k("v_cndmask_b32 v%d, v17, v16, s[50:51]" % (SA + (0*2 + b)*4 + i))
            k("v_cndmask_b32 v%d, v16, v17, s[50:51]" % (SA + (1*2 + b)*4 + i))
    mainloop(False)
    for a in range(2):
        k("s_lshl_b32 s3, s%d, 7" % (32 + a))
        k("v_lshl_add_u32 v13, v8, 2, s3")
        k("ds_read_b32 v%d, v13" % (20 + 2*a))
        k("ds_read_b32 v%d, v13 offset:512" % (21 + 2*a))
    for b in range(2):
        k("s_lshl_b32 s3, s%d, 7" % (34 + b))
        k("v_lshl_add_u32 v13, v9, 4, s3")
        for i in range(4):
            k("ds_read_b128 %s, v13 offset:%d" % (vr(24 + 16*b + 4*i, 4), 1024 + 32*i))
    k("s_waitcnt lgkmcnt(0)")
    for a in range(2):
        for b in range(2):
            d = ACC + (a*2 + b)*16
            for i in range(4):
                for h in range(2):
                    r = d + 4*i + 2*h
                    k("v_pk_fma_f32 %s, %s, %s, %s op_sel:[0,0,0] op_sel_hi:[1,0,1] neg_lo:[0,1,0] neg_hi:[0,1,0]" % (vr(r, 2), vr(24 + 16*b + 4*i + 2*h, 2), vr(20 + 2*a, 2), vr(r, 2)))
                for h in range(2):
                    r = d + 4*i + 2*h
                    k("v_pk_mul_f32 %s, %s, %s op_sel:[0,1] op_sel_hi:[1,1]" % (vr(r, 2), vr(r, 2), vr(20 + 2*a, 2)))
                k("v_cvt_pk_bf16_f32 v%d, v%d, v%d" % (d + 4*i, d + 4*i, d + 4*i + 1))
                k("v_cvt_pk_bf16_f32 v%d, v%d, v%d" % (d + 4*i + 1, d + 4*i + 2, d + 4*i + 3))
                k("buffer_store_dwordx2 %s, v%d, s[20:23], 0 offen %s" % (vr(d + 4*i, 2), SA + (a*2 + b)*4 + i, stpol))
    k("s_endpgm")
    k.put(LV)
    k("s_lshl_b32 s3, s24, 1")
    k("s_add_u32 s3, s3, s27")
    k("s_mul_i32 s37, s3, 5120")
    k("s_add_u32 s37, s37, 0x%x" % (KV + 2560))
    k("s_sub_u32 s48, s25, 10")
    k("s_lshl_b32 s48, s48, 7")
    k("s_mov_b32 s36, 163840")
    k("s_mul_i32 s38, s28, 1280")
    k("s_sub_u32 s39, 1280, s38")
    k("v_mul_u32_u24 v16, 320, v9")
    for b in range(2):
        k("s_lshl_b32 s3, s%d, 5" % (34 + b))
        k("s_add_u32 s3, s3, s48")
        k("v_add_u32 v13, s3, v8")
        k("v_mul_u32_u24 v14, 3277, v13")
        k("v_lshrrev_b32 v14, 16, v14")
        k("v_mul_u32_u24 v15, 20, v14")
        k("v_sub_u32 v15, v13, v15")
        k("v_lshl_add_u32 v15, v15, 4, v16")
        k("v_mul_lo_u32 v14, v14, s36")
        k("v_add3_u32 v15, v15, v14, s37")
        k("v_add_u32 v%d, s38, v15" % (SA + 0*2 + b))
        k("v_add_u32 v%d, s39, v15" % (SA + 1*2 + b))
    mainloop(True)
    for b in range(2):
        k("s_lshl_b32 s3, s%d, 7" % (34 + b))
        k("v_lshl_add_u32 v13, v8, 2, s3")
        k("ds_read_b32 v%d, v13 offset:1024" % (20 + 2*b))
    for a in range(2):
        k("s_lshl_b32 s3, s%d, 7" % (32 + a))
        k("v_lshl_add_u32 v13, v9, 4, s3")
        mu = 24 if a == 0 else 144
        rr = 40 if a == 0 else 160
        for i in range(4):
            k("ds_read_b128 %s, v13 offset:%d" % (vr(mu + 4*i, 4), 32*i))
            k("ds_read_b128 %s, v13 offset:%d" % (vr(rr + 4*i, 4), 512 + 32*i))
        if a == 0: k("s_waitcnt lgkmcnt(4)")
    k("s_waitcnt lgkmcnt(0)")
    for a in range(2):
        mu = 24 if a == 0 else 144
        rr = 40 if a == 0 else 160
        for b in range(2):
            d = ACC + (a*2 + b)*16
            for j in range(2):
                for h in range(4):
                    o = 8*j + 2*h
                    k("v_pk_fma_f32 %s, %s, %s, %s op_sel:[0,0,0] op_sel_hi:[1,0,1] neg_lo:[0,1,0] neg_hi:[0,1,0]" % (vr(d + o, 2), vr(mu + o, 2), vr(20 + 2*b, 2), vr(d + o, 2)))
                for h in range(4):
                    o = 8*j + 2*h
                    k("v_pk_mul_f32 %s, %s, %s" % (vr(d + o, 2), vr(d + o, 2), vr(rr + o, 2)))
                for h in range(4):
                    k("v_cvt_pk_bf16_f32 v%d, v%d, v%d" % (d + 8*j + h, d + 8*j + 2*h, d + 8*j + 2*h + 1))
                k("buffer_store_dwordx4 %s, v%d, s[20:23], 0 offen offset:%d %s" % (vr(d + 8*j, 4), SA + a*2 + b, j*640, stpol))
    k.put(END)
    k("s_endpgm")
    return k
```

```python
from asmlib import *
from lay import *

def gen_s2(opt=None):
    opt = opt or {}
    stpol = opt.get("s2_stpol", "")
    wstpol = opt.get("s2_wstpol", "")
    wldpol = opt.get("s2_wldpol", "")
    prio = opt.get("s2_prio", 0)
    k = Kern("s2_att_kernel", 256, 512, 163840, nv=192)
    Q1 = 16; Q2 = (20, 22); CI = 24; O = 40; S = (56, 72); P = 88
    K1 = (96, 100); K2 = (104, 106); V = (108, 116)
    AK = 124; AK2 = 125; AV = 126
    WL = 128; WP = 144; WA = 160
    END = k.label("end"); PRO = k.label("pro"); LOOP = k.label("loop"); BACK = k.label("back"); STUB = k.label("stub")
    FB = k.label("fb"); FIN = k.label("fin")
    VMASK = 0x000fffff
    k("s_cmp_ge_u32 s2, 256")
    k("s_cbranch_scc1 %s" % END)
    k("s_load_dwordx2 s[8:9], s[0:1], 72")
    k("s_load_dwordx2 s[4:5], s[0:1], 16")
    k("s_load_dwordx4 s[44:47], s[0:1], 32")
    k("s_load_dwordx2 s[48:49], s[0:1], 48")
    k("""
    v_lshrrev_b32 v1, 6, v0
    v_and_b32 v0, 63, v0
    v_readfirstlane_b32 s26, v1
    s_and_b32 s10, s2, 7
    s_lshr_b32 s11, s2, 3
    s_and_b32 s3, s11, 3
    s_lshl_b32 s24, s10, 2
    s_add_u32 s24, s24, s3
    s_lshr_b32 s25, s11, 2
    s_lshl_b32 s25, s25, 3
    s_add_u32 s25, s25, s26
    v_lshlrev_b32 v2, 4, v0
    v_and_b32 v8, 31, v0
    v_lshrrev_b32 v9, 5, v0
    v_lshlrev_b32 v3, 3, v8
    """)
    k("s_lshl_b32 s3, s24, 6")
    k("s_add_u32 s3, s3, s25")
    k("s_mul_i32 s27, s3, 1280")
    k("s_mul_i32 s28, s24, 163840")
    k("s_lshl_b32 s29, s26, 10")
    k("s_add_u32 s28, s28, s29")
    k("s_add_u32 s28, s28, 0x%x" % KV)
    k("s_waitcnt lgkmcnt(0)")
    k.srd(12, 8, AO)
    k("buffer_load_dwordx4 %s, v2, s[12:15], s27 offen" % vr(Q1, 4))
    k("buffer_load_dwordx2 %s, v3, s[12:15], s27 offen offset:1024" % vr(Q2[0], 2))
    for i in range(20):
        k("s_add_u32 m0, s29, %d" % (i*8192))
        if i: k("s_add_u32 s28, s28, 8192")
        else: k("s_nop 0")
        k("buffer_load_dwordx4 v2, s[12:15], s28 offen lds")
    k.srd(16, 8, WS_END)
    k("v_mov_b32 v4, 0x3f803f80")
    k("v_cmp_eq_u32 vcc, 20, v8")
    k("v_cmp_gt_u32 s[22:23], 32, v0")
    k("s_mov_b32 s20, 0x%x" % VMASK)
    k("s_mov_b32 s21, 0x%x" % VMASK)
    for r in range(16):
        k("v_cndmask_b32 v%d, 0, v4, vcc" % (V[0] + r))
    k("s_mov_b32 s30, 0x8a")
    k("s_mov_b32 s31, 0")
    k("v_mov_b32 v%d, 0x40000000" % WA)
    k("s_waitcnt vmcnt(17)")
    k("s_barrier")
    k("ds_read_b128 %s, v2" % vr(K1[0], 4))
    k("v_lshlrev_b32 v5, 3, v0")
    k("ds_read_b64 %s, v5 offset:2048" % vr(K2[0], 2))
    k("v_cndmask_b32 v%d, v%d, 0, s[22:23]" % (Q2[1], Q2[0]))
    k("v_cndmask_b32 v%d, v%d, 0, s[22:23]" % (Q2[1] + 1, Q2[0] + 1))
    k("v_cndmask_b32 v%d, 0, v%d, s[22:23]" % (Q2[0], Q2[0]))
    k("v_cndmask_b32 v%d, 0, v%d, s[22:23]" % (Q2[0] + 1, Q2[0] + 1))
    k("s_waitcnt lgkmcnt(0)")
    k("v_mfma_f32_32x32x16_bf16 %s, %s, %s, 0" % (vr(S[0], 16), vr(K1[0], 4), vr(Q1, 4)))
    k("v_mfma_f32_32x32x8bf16_1k %s, %s, %s, %s" % (vr(S[0], 16), vr(K2[0], 2), vr(Q2[0], 2), vr(S[0], 16)))
    k("s_nop 15")
    k("v_max3_f32 v6, v%d, v%d, v%d" % (S[0], S[0] + 1, S[0] + 2))
    for i in range(6):
        k("v_max3_f32 v6, v6, v%d, v%d" % (S[0] + 3 + 2*i, S[0] + 4 + 2*i))
    k("v_max_f32 v6, v6, v%d" % (S[0] + 15))
    k.put(PRO)
    k("v_mov_b32 v7, v6")
    k("v_mov_b32 v%d, v2" % AK)
    k("v_lshlrev_b32 v%d, 3, v0" % AK2)
    k("v_permlane32_swap_b32 v6, v7")
    k("v_mul_u32_u24 v%d, 320, v9" % AV)
    k("ds_read_b128 %s, v%d" % (vr(K1[0], 4), AK))
    k("ds_read_b64 %s, v%d offset:2048" % (vr(K2[0], 2), AK2))
    k("v_lshl_add_u32 v%d, v8, 4, v%d" % (AV, AV))
    k("v_max_f32 v6, v6, v7")
    k("ds_read_b128 %s, v%d offset:1024" % (vr(K1[1], 4), AK))
    k("ds_read_b64 %s, v%d offset:%d" % (vr(K2[1], 2), AK2, 5120 + 2048))
    k("s_mov_b64 exec, s[20:21]")
    k("ds_read_b128 %s, v%d offset:2560" % (vr(V[0], 4), AV))
    k("ds_read_b128 %s, v%d offset:%d" % (vr(V[0] + 4, 4), AV, 2560 + 640))
    k("s_mov_b64 exec, -1")
    for r in range(16):
        k("v_sub_f32 v%d, 0, v6" % (CI + r))
    for r in range(16):
        k("v_mov_b32 v%d, 0" % (O + r))
    for r in range(4):
        k("v_mov_b32 v%d, 0" % (P + 4 + r))
    k("s_mov_b32 s32, 0")
    k("s_waitcnt lgkmcnt(4)")
    k("v_mfma_f32_32x32x16_bf16 %s, %s, %s, %s" % (vr(S[0], 16), vr(K1[0], 4), vr(Q1, 4), vr(CI, 16)))
    k("v_mfma_f32_32x32x8bf16_1k %s, %s, %s, %s" % (vr(S[0], 16), vr(K2[0], 2), vr(Q2[0], 2), vr(S[0], 16)))
    k("s_waitcnt lgkmcnt(0)")
    k("ds_read_b128 %s, v%d offset:5120" % (vr(K1[0], 4), AK))
    k("s_nop 12")
    k(".p2align 6")
    k.put(LOOP)
    k("s_bitcmp1_b32 s30, s32")
    k("s_cbranch_scc1 %s" % STUB)
    k.put(BACK)
    def koff(t): return (t >> 1)*5120 + (t & 1)*1024
    def voff(t, j): return (t >> 1)*5120 + 2560 + ((t & 1)*2 + j)*640
    for t in range(4):
        sc = S[t & 1]; sn = S[(t + 1) & 1]
        def ex(a, b):
            for i in range(a, b): k("v_exp_f32 v%d, v%d" % (sc + i, sc + i))
        def cv(a, b):
            for i in range(a, b): k("v_cvt_pk_bf16_f32 v%d, v%d, v%d" % (P + i, sc + 2*i, sc + 2*i + 1))
        k("v_mfma_f32_32x32x16_bf16 %s, %s, %s, %s" % (vr(sn, 16), vr(K1[(t + 1) & 1], 4), vr(Q1, 4), vr(CI, 16)))
        k("ds_read_b128 %s, v%d offset:%d" % (vr(K1[(t + 1) & 1], 4), AK, koff(t + 3)))
        if t & 1:
            p1 = (t + 1)//2 + 1
            k("ds_read_b64 %s, v%d offset:%d" % (vr(K2[p1 & 1], 2), AK2, p1*5120 + 2048))
        ex(0, 4)
        k("v_mfma_f32_32x32x16_bf16 %s, %s, %s, %s" % (vr(O, 16), vr(V[(t - 1) & 1] + 4, 4), vr(P + 4, 4), vr(O, 16)))
        k("s_mov_b64 exec, s[20:21]")
        k("ds_read_b128 %s, v%d offset:%d" % (vr(V[(t + 1) & 1], 4), AV, voff(t + 1, 0)))
        k("ds_read_b128 %s, v%d offset:%d" % (vr(V[(t + 1) & 1] + 4, 4), AV, voff(t + 1, 1)))
        k("s_mov_b64 exec, -1")
        ex(4, 8)
        k("v_mfma_f32_32x32x8bf16_1k %s, %s, %s, %s" % (vr(sn, 16), vr(K2[((t + 1) >> 1) & 1], 2), vr(Q2[(t + 1) & 1], 2), vr(sn, 16)))
        cv(0, 4)
        ex(8, 12)
        k("s_waitcnt lgkmcnt(%d)" % (4 if t & 1 else 3))
        k("v_mfma_f32_32x32x16_bf16 %s, %s, %s, %s" % (vr(O, 16), vr(V[t & 1], 4), vr(P, 4), vr(O, 16)))
        ex(12, 16)
        if t == 3:
            k("s_add_u32 s32, s32, 1")
            k("v_add_u32 v%d, 10240, v%d" % (AK, AK))
            k("v_add_u32 v%d, 10240, v%d" % (AK2, AK2))
            k("v_add_u32 v%d, 10240, v%d" % (AV, AV))
            k("s_cmp_lt_u32 s32, 16")
        cv(4, 8)
    k("s_cbranch_scc1 %s" % LOOP)
    k("s_nop 1")
    k("v_mfma_f32_32x32x16_bf16 %s, %s, %s, %s" % (vr(O, 16), vr(V[1] + 4, 4), vr(P + 4, 4), vr(O, 16)))
    k("s_lshr_b32 s3, s24, 1")
    k("s_mul_i32 s3, s3, 5")
    k("s_and_b32 s10, s24, 1")
    k("s_lshl_b32 s11, s10, 1")
    k("s_add_u32 s11, s11, s3")
    k("s_add_u32 s3, s3, 4")
    k("v_add_u32 v4, s11, v9")
    k("v_bfe_u32 v5, v0, 4, 1")
    k("s_lshl_b32 s33, s25, 1")
    k("v_add_u32 v5, s33, v5")
    k("v_mul_u32_u24 v5, 20, v5")
    k("v_and_b32 v10, 15, v0")
    k("v_lshrrev_b32 v11, 2, v4")
    k("v_add_u32 v11, v11, v5")
    k("v_and_b32 v4, 3, v4")
    k("v_lshl_add_u32 v4, v4, 4, v10")
    k("v_lshlrev_b32 v4, 4, v4")
    k("v_lshl_add_u32 v4, v11, 10, v4")
    k("s_lshr_b32 s11, s3, 2")
    k("s_and_b32 s3, s3, 3")
    k("s_lshl_b32 s3, s3, 8")
    k("s_lshl_b32 s10, s10, 3")
    k("s_add_u32 s3, s3, s10")
    k("v_add_u32 v5, s11, v5")
    k("v_lshl_add_u32 v10, v10, 4, s3")
    k("v_lshl_add_u32 v5, v5, 10, v10")
    k("s_mov_b32 s33, 0x%x" % AO)
    k("s_waitcnt lgkmcnt(0)")
    k("v_mov_b32 v6, v%d" % (O + 8))
    k("v_mov_b32 v7, v%d" % (O + 8))
    k("s_nop 1")
    k("v_permlane32_swap_b32 v6, v7")
    k("s_nop 1")
    k("v_mov_b32 v6, 0x%x" % f2u(2.0**60))
    k("v_cmp_nlt_f32 vcc, v7, v6")
    k("v_rcp_f32 v7, v7")
    k("s_cmp_eq_u32 s31, 0")
    k("s_cselect_b64 s[34:35], vcc, 0")
    k("s_cmp_lg_u64 s[34:35], 0")
    k("s_cbranch_scc1 %s" % FB)
    for r in range(12):
        k("v_mul_f32 v%d, v%d, v7" % (O + r, O + r))
    for r in range(6):
        k("v_cvt_pk_bf16_f32 v%d, v%d, v%d" % (O + r, O + 2*r, O + 2*r + 1))
    k("buffer_store_dwordx4 %s, v4, s[16:19], s33 offen %s" % (vr(O, 4), stpol))
    k("s_mov_b64 exec, s[22:23]")
    k("buffer_store_dwordx2 %s, v5, s[16:19], s33 offen %s" % (vr(O + 4, 2), stpol))
    k.put(END)
    k("s_endpgm")
    k.put(FB)
    FL = k.label("fl")
    k("s_mov_b32 s31, 1")
    k("s_mov_b32 s30, 0")
    k("s_mov_b32 s32, 0")
    k("v_mov_b32 v%d, v2" % AK)
    k("v_lshlrev_b32 v%d, 3, v0" % AK2)
    k("v_mov_b32 v6, 0xff800000")
    k.put(FL)
    k("ds_read_b128 %s, v%d" % (vr(K1[0], 4), AK))
    k("ds_read_b128 %s, v%d offset:1024" % (vr(K1[1], 4), AK))
    k("ds_read_b64 %s, v%d offset:2048" % (vr(K2[0], 2), AK2))
    k("s_waitcnt lgkmcnt(0)")
    for t in range(2):
        k("v_mfma_f32_32x32x16_bf16 %s, %s, %s, 0" % (vr(S[t], 16), vr(K1[t], 4), vr(Q1, 4)))
        k("v_mfma_f32_32x32x8bf16_1k %s, %s, %s, %s" % (vr(S[t], 16), vr(K2[0], 2), vr(Q2[t], 2), vr(S[t], 16)))
    k("v_add_u32 v%d, 5120, v%d" % (AK, AK))
    k("v_add_u32 v%d, 5120, v%d" % (AK2, AK2))
    k("s_nop 15")
    for i in range(16):
        k("v_max3_f32 v6, v6, v%d, v%d" % (S[0] + 2*i, S[0] + 2*i + 1))
    k("s_add_u32 s32, s32, 1")
    k("s_cmp_lt_u32 s32, 32")
    k("s_cbranch_scc1 %s" % FL)
    k("s_branch %s" % PRO)
    k.put(STUB)
    T3 = k.label("t3"); T7 = k.label("t7")
    k("s_cmp_eq_u32 s32, 3")
    k("s_cbranch_scc1 %s" % T3)
    k("s_cmp_eq_u32 s32, 7")
    k("s_cbranch_scc1 %s" % T7)
    k("s_waitcnt vmcnt(15)")
    k("s_barrier")
    k("s_branch %s" % BACK)
    k.put(T3)
    k("s_waitcnt vmcnt(10)")
    k("s_barrier")
    side_loads(k, WL, WA, wldpol)
    k("s_branch %s" % BACK)
    k.put(T7)
    k("s_waitcnt vmcnt(0)")
    k("s_barrier")
    side_stores(k, WL, WP, WA, wstpol)
    k("s_branch %s" % BACK)
    return k

def side_loads(k, WL, WA, pol):
    LG = k.label("g"); LD = k.label("d"); LC = k.label("c"); LU = k.label("u"); LGU = k.label("gu"); LF = k.label("f")
    k("s_lshl_b32 s50, s2, 3")
    k("s_add_u32 s50, s50, s26")
    k("v_lshrrev_b32 v10, 4, v0")
    k("v_and_b32 v11, 15, v0")
    k("s_cmp_ge_u32 s50, 200")
    k("s_cbranch_scc1 %s" % LG)
    k.srd(36, 4, WOB)
    k("s_mul_i32 s51, s50, 6554")
    k("s_lshr_b32 s51, s51, 16")
    k("s_mul_i32 s52, s51, 10")
    k("s_sub_u32 s52, s50, s52")
    k("s_movk_i32 s53, 1280")
    k("s_lshl_b32 s3, s51, 2")
    k("v_add_u32 v12, s3, v10")
    k("v_mul_u32_u24 v13, 205, v12")
    k("v_lshrrev_b32 v13, 10, v13")
    k("v_mul_u32_u24 v14, 5, v13")
    k("v_sub_u32 v12, v12, v14")
    k("v_mul_u32_u24 v13, 40, v13")
    k("v_cmp_eq_u32 vcc, 4, v12")
    k("v_lshrrev_b32 v14, 1, v12")
    k("v_mul_u32_u24 v14, 20, v14")
    k("v_and_b32 v12, 1, v12")
    k("v_lshl_add_u32 v14, v12, 2, v14")
    k("v_cndmask_b32 v14, v14, 16, vcc")
    k("v_add_u32 v12, v13, v14")
    k("v_mov_b32 v13, 8")
    k("v_cndmask_b32 v13, v13, 20, vcc")
    k("v_add_u32 v13, v12, v13")
    k("s_movk_i32 s54, 100")
    k("s_mov_b32 s55, 0x%x" % WO)
    k("s_branch %s" % LC)
    k.put(LD)
    k.srd(36, 48, WGB)
    k("s_sub_u32 s50, s50, 1280")
    k("s_mul_i32 s51, s50, 6554")
    k("s_lshr_b32 s51, s51, 16")
    k("s_mul_i32 s52, s51, 10")
    k("s_sub_u32 s52, s50, s52")
    k("s_movk_i32 s53, 1280")
    k("s_lshl_b32 s3, s51, 5")
    k("v_lshl_add_u32 v12, v10, 2, s3")
    k("v_add_u32 v13, 16, v12")
    k("s_movk_i32 s54, 270")
    k("s_mov_b32 s55, 0x%x" % WD)
    k("s_cmp_ge_u32 s50, 540")
    k("s_cselect_b32 s55, 0x40000000, s55")
    k.put(LC)
    k("s_lshl_b32 s3, s52, 2")
    k("v_lshrrev_b32 v14, 2, v11")
    k("v_add_u32 v14, s3, v14")
    k("v_mul_u32_u24 v15, 205, v14")
    k("v_lshrrev_b32 v15, 10, v15")
    k("v_mul_u32_u24 v%d, 5, v15" % WA)
    k("v_sub_u32 v14, v14, v%d" % WA)
    k("v_mul_u32_u24 v15, s54, v15")
    k("s_mul_i32 s3, s51, 5")
    k("v_add3_u32 v14, v14, v15, s3")
    k("s_branch %s" % LF)
    k.put(LG)
    k("s_cmp_ge_u32 s50, 1280")
    k("s_cbranch_scc1 %s" % LD)
    k("s_cmp_ge_u32 s50, 740")
    k("s_cbranch_scc1 %s" % LU)
    k.srd(36, 44, WGB)
    k("s_sub_u32 s50, s50, 200")
    k("s_mov_b32 s56, 0")
    k("s_branch %s" % LGU)
    k.put(LU)
    k.srd(36, 46, WGB)
    k("s_sub_u32 s50, s50, 740")
    k("s_mov_b32 s56, 7")
    k.put(LGU)
    k("s_mul_i32 s51, s50, 2428")
    k("s_lshr_b32 s51, s51, 16")
    k("s_mul_i32 s52, s51, 27")
    k("s_sub_u32 s52, s50, s52")
    k("s_movk_i32 s53, 3456")
    k("s_lshl_b32 s3, s51, 5")
    k("v_lshl_add_u32 v12, v10, 2, s3")
    k("v_add_u32 v13, 16, v12")
    k("s_mov_b32 s55, 0x%x" % GU)
    k("s_lshl_b32 s3, s52, 2")
    k("v_lshrrev_b32 v14, 2, v11")
    k("v_add_u32 v14, s3, v14")
    k("v_mul_u32_u24 v15, 2428, v14")
    k("v_lshrrev_b32 v15, 16, v15")
    k("v_mul_u32_u24 v%d, 27, v15" % WA)
    k("v_sub_u32 v14, v14, v%d" % WA)
    k("v_mul_u32_u24 v%d, 37, v14" % WA)
    k("v_lshrrev_b32 v%d, 8, v%d" % (WA, WA))
    k("v_lshl_add_u32 v15, v15, 2, v%d" % WA)
    k("v_mul_u32_u24 v%d, 7, v%d" % (WA, WA))
    k("v_sub_u32 v14, v14, v%d" % WA)
    k("v_mul_u32_u24 v15, 280, v15")
    k("s_mul_i32 s3, s51, 14")
    k("s_add_u32 s3, s3, s56")
    k("v_add3_u32 v14, v14, v15, s3")
    k.put(LF)
    k("v_and_b32 v15, 3, v11")
    k("v_lshlrev_b32 v15, 6, v15")
    k("v_lshl_add_u32 v15, v10, 8, v15")
    k("v_lshl_add_u32 v14, v14, 10, v15")
    k("v_add_u32 v%d, s55, v14" % WA)
    k("s_lshl_b32 s3, s52, 7")
    k("v_lshl_add_u32 v11, v11, 3, s3")
    k("v_mad_u32_u24 v12, v12, s53, v11")
    k("v_mad_u32_u24 v13, v13, s53, v11")
    k("s_mov_b32 s57, 0")
    for j in range(4):
        k("buffer_load_dwordx2 %s, v12, s[36:39], s57 offen %s" % (vr(WL + 2*j, 2), pol))
        k("buffer_load_dwordx2 %s, v13, s[36:39], s57 offen %s" % (vr(WL + 8 + 2*j, 2), pol))
        if j < 3: k("s_add_u32 s57, s57, s53")

def side_stores(k, WL, WP, WA, pol):
    k("s_mov_b32 s50, 0x05040100")
    k("s_mov_b32 s51, 0x07060302")
    for i in range(4):
        for m in range(4):
            lo = WL + 4*m + (i >> 1); hi = lo + 2
            k("v_perm_b32 v%d, v%d, v%d, s%d" % (WP + 4*i + m, hi, lo, 50 + (i & 1)))
        k("buffer_store_dwordx4 %s, v%d, s[16:19], 0 offen offset:%d %s" % (vr(WP + 4*i, 4), WA, 16*i, pol))
```

```python
import sys, json
from asmlib import *
from s1 import gen_s1
from s2 import gen_s2
from gemm import gen_s3, gen_s4, gen_s5
opt = {}
out = sys.argv[1]
which = sys.argv[2].split(",") if len(sys.argv) > 2 else ["s1", "s2", "s3", "s4", "s5"]
for a in sys.argv[3:]:
    kk, vv = a.split("=", 1)
    try: vv = int(vv)
    except: pass
    opt[kk] = vv
G = {"s1": gen_s1, "s2": gen_s2, "s3": gen_s3, "s4": gen_s4, "s5": gen_s5}
open(out, "w").write(module([G[w](opt) for w in which]))
```

```python
class Kern:
    def __init__(self, name, grid, block, lds, nv, na=0, nsgpr=102):
        self.name, self.grid, self.block, self.lds = name, grid, block, lds
        self.nv, self.na, self.nsgpr = nv, na, nsgpr
        self.L = []
        self.uid = 0
        self.nts = 0; self.tson = False; self.kid = 0
    def __call__(self, s):
        for ln in s.split("\n"):
            ln = ln.strip()
            if ln:
                self.L.append(ln)
    def label(self, base="L"):
        self.uid += 1
        return "%s_%s_%d" % (self.name[:-7], base, self.uid)
    def put(self, lab):
        self.L.append(lab + ":")
    def launch_line(self):
        return "; @launch kernel=%s grid=(%d,1,1) block=(%d,1,1) lds=%d" % (self.name, self.grid, self.block, self.lds)
    def text(self):
        o = [".globl %s" % self.name, ".p2align 8", ".type %s,@function" % self.name, "%s:" % self.name]
        for ln in self.L:
            if ln.endswith(":") or ln.startswith("."):
                o.append(ln)
            else:
                o.append("  " + ln)
        return "\n".join(o) + "\n"
    def desc(self):
        acc = (self.nv + 3) // 4 * 4
        tot = acc + self.na if self.na else self.nv
        return (".p2align 6\n.amdhsa_kernel %s\n  .amdhsa_next_free_vgpr %d\n  .amdhsa_next_free_sgpr %d\n"
                "  .amdhsa_accum_offset %d\n  .amdhsa_group_segment_fixed_size 0\n  .amdhsa_kernarg_size 80\n"
                "  .amdhsa_user_sgpr_count 2\n  .amdhsa_user_sgpr_kernarg_segment_ptr 1\n"
                "  .amdhsa_system_sgpr_workgroup_id_x 1\n.end_amdhsa_kernel\n") % (self.name, tot, self.nsgpr, acc)
    def ts(self, i, real=False):
        if not self.tson: return
        self("%s s[%d:%d]" % ("s_memrealtime" if real else "s_memtime", 64 + 2*i, 65 + 2*i))
        if i == 1:
            for j in range(2, 16): self("s_mov_b64 s[%d:%d], 0" % (64 + 2*j, 65 + 2*j))
    def tsdump(self, wsp=8, wave=26):
        if not self.tson: return
        self("s_mov_b64 exec, -1")
        self.ts(13)
        self("s_waitcnt vmcnt(0)")
        self.ts(14); self.ts(15, True)
        self("s_lshl_b32 s3, s2, 3")
        self("s_add_u32 s3, s3, s%d" % wave)
        self("s_lshl_b32 s3, s3, 7")
        self("s_add_u32 s3, s3, 0x%x" % (0x1B00000 + self.kid*0x40000))
        self("v_mov_b32 v0, s3")
        self("s_waitcnt lgkmcnt(0)")
        self("s_mov_b64 exec, 1")
        for i in range(16):
            self("v_mov_b32 v2, s%d" % (64 + 2*i))
            self("v_mov_b32 v3, s%d" % (65 + 2*i))
            self("global_store_dwordx2 v0, v[2:3], s[%d:%d] offset:%d" % (wsp, wsp + 1, 8*i))
            self("s_nop 1")
    def srd(self, s, ptr, nbytes, off=0):
        if off:
            self("s_add_u32 s%d, s%d, 0x%x" % (s, ptr, off & 0xffffffff))
            self("s_addc_u32 s%d, s%d, 0" % (s + 1, ptr + 1))
            self("s_and_b32 s%d, s%d, 0xffff" % (s + 1, s + 1))
        else:
            self("s_mov_b32 s%d, s%d" % (s, ptr))
            self("s_and_b32 s%d, s%d, 0xffff" % (s + 1, ptr + 1))
        self("s_mov_b32 s%d, 0x%x" % (s + 2, nbytes))
        self("s_mov_b32 s%d, 0x00020000" % (s + 3))

def vr(b, n=1):
    return "v%d" % b if n == 1 else "v[%d:%d]" % (b, b + n - 1)
def ar(b, n=1):
    return "a%d" % b if n == 1 else "a[%d:%d]" % (b, b + n - 1)
def sr(b, n=1):
    return "s%d" % b if n == 1 else "s[%d:%d]" % (b, b + n - 1)

HDR = """; Kernarg layout (80 bytes, ptrs only, base s[0:1]): 0 A_x, 8 A_wqkv, 16 A_wo, 24 B_x (unused), 32 B_W_gate,
"""
def module(kerns, launches=None, hdr=HDR):
    launches = launches or kerns
    o = hdr
    for k in launches:
        o += k.launch_line() + "\n"
    o += '.amdgcn_target "amdgcn-amd-amdhsa--gfx950"\n.text\n'
    for k in kerns:
        o += k.text()
    o += '.section .rodata,"a"\n'
    for k in kerns:
        o += k.desc()
    return o
```

```python
from asmlib import *
from lay import *

class VM:
    def __init__(self, k):
        self.k = k; self.tags = []
    def op(self, tag, *lines):
        for ln in lines: self.k(ln)
        self.tags.append(tag)
    def count_after(self, tag):
        idx = max(i for i, t in enumerate(self.tags) if t == tag)
        return len(self.tags) - 1 - idx
    def wait(self, tag):
        n = self.count_after(tag)
        self.k("s_waitcnt vmcnt(%d)" % min(n, 63))

def gemm_core(k, vm, T, N, KS, GK, NSLOT, LOOK, NB, acc, wf, tok, WV, TV, LA, pol="", hooks=None, extra_after_b0=None, order=None):
    hooks = hooks or {}
    NG = (KS + GK - 1)//GK
    TPB = GK*N; SLOTB = TPB*1024
    def gks(g): return min(GK, KS - g*GK)
    def batch(g):
        L = []
        nd = (gks(g)*N + 3)//4
        slot = g % NSLOT
        for n in range(nd):
            pre = ["s_add_u32 m0, s29, %d" % (slot*SLOTB + n*4096)]
            if n == 0 and g > 0: pre.append("s_add_u32 s28, s28, %d" % SLOTB)
            else: pre.append("s_nop 0")
            L.append(pre + ["buffer_load_dwordx4 v%d, s[12:15], s28 offen %s lds" % (WV + n, pol)])
        D = []
        for kk in range(gks(g)):
            for j in range(T):
                pre = []
                if kk == 0 and j == 0 and g > 0: pre.append("s_add_u32 s30, s30, %d" % (GK*1024))
                D.append(pre + ["buffer_load_dwordx4 %s, v%d, s[12:15], s30 offen offset:%d %s" % (tok(slot, kk, j), TV + j, kk*1024, pol)])
        o = []
        while L or D:
            if L: o.append(L.pop(0))
            if D: o.append(D.pop(0))
        return [(("b", g), x) for x in o]
    for g in range(min(NSLOT, NG)):
        for tag, x in batch(g): vm.op(tag, *x)
        if g == 0 and extra_after_b0: extra_after_b0()
        if g == 0 and NG < 14: k.ts(10)
    if "pre" in hooks: hooks["pre"]()
    k.ts(2)
    F = []
    for ks in range(KS):
        for n in (order(ks) if order else range(N)): F.append((ks, n))
    NF = len(F)
    def rd(f):
        ks, n = F[f]; g = ks//GK
        a = (g % NSLOT)*SLOTB + ((ks - g*GK)*N + n)*1024
        k("ds_read_b128 %s, v%d offset:%d" % (wf(f % NB), LA + (a >> 16), a & 0xffff))
    pend = []
    def sync(j):
        vm.wait(("b", j))
        k("s_barrier")
        tsm = [0, 1, 2, 3, 4] if NG == 5 else ([0, 1, 2, 4, 6, 8, 9] if NG == 10 else [0, 1, 2, 4, 6, 8, 10, 13])
        if j in tsm: k.ts(3 + tsm.index(j))
        if j >= 2 and j - 2 + NSLOT < NG:
            assert not pend
            pend.extend(batch(j - 2 + NSLOT))
        if ("sync", j) in hooks: hooks[("sync", j)]()
    sync(0)
    for f in range(min(LOOK, NF)): rd(f)
    for f in range(NF):
        ks, n = F[f]; g = ks//GK
        if f + LOOK < NF:
            g2 = F[f + LOOK][0]//GK
            if g2 != F[f + LOOK - 1][0]//GK: sync(g2)
            rd(f + LOOK)
        k("s_waitcnt lgkmcnt(%d)" % min(LOOK, NF - 1 - f))
        for j in range(T):
            k("v_mfma_f32_16x16x32_bf16 %s, %s, %s, %s" % (acc(n, j), wf(f % NB), tok(g % NSLOT, ks - g*GK, j), acc(n, j) if ks else "0"))
        if pend:
            tag, x = pend.pop(0); vm.op(tag, *x)
        if ("f", f) in hooks: hooks[("f", f)]()
    k.ts(12)

def common_head(k, END):
    k("s_cmp_ge_u32 s2, 256")
    k("s_cbranch_scc1 %s" % END)

def lane_setup(k):
    k("""
    v_lshrrev_b32 v1, 6, v0
    v_and_b32 v0, 63, v0
    v_readfirstlane_b32 s26, v1
    v_lshlrev_b32 v1, 4, v0
    s_and_b32 s10, s2, 7
    s_lshr_b32 s11, s2, 3
    v_and_b32 v2, 15, v0
    v_lshrrev_b32 v3, 4, v0
    s_lshl_b32 s29, s26, 10
    v_add_u32 v5, 0x10000, v1
    v_add_u32 v6, 0x20000, v1
    v_mov_b32 v4, v1
    """)

def qreduce(k, a, t):
    k("v_mov_b32 v%d, v%d" % (t, a))
    k("s_nop 1")
    k("v_permlane16_swap_b32 v%d, v%d" % (a, t))
    k("s_nop 1")
    k("v_add_f32 v%d, v%d, v%d" % (a, a, t))
    k("v_mov_b32 v%d, v%d" % (t, a))
    k("s_nop 1")
    k("v_permlane32_swap_b32 v%d, v%d" % (a, t))
    k("s_nop 1")
    k("v_add_f32 v%d, v%d, v%d" % (a, a, t))

def gen_s3(opt=None):
    opt = opt or {}
    pol = opt.get("s3_ldpol", ""); stpol = opt.get("s3_stpol", "")
    k = Kern("s3_wo_kernel", 256, 256, 112896, nv=200)
    k.tson = opt.get("ts", 0); k.kid = 2
    k.ts(0, True); k.ts(1)
    vm = VM(k)
    END = k.label("end")
    ACC = 32; WF = 52; NB = 8; TOK = 84; CF = 164; WV = 8; TV = 13; XV = 14; CA = 184; ONES = 188
    XL = 102400; CL = 112640
    common_head(k, END)
    k("s_load_dwordx2 s[8:9], s[0:1], 72")
    k("s_load_dwordx2 s[4:5], s[0:1], 0")
    lane_setup(k)
    k("""
    s_and_b32 s3, s10, 1
    s_lshl_b32 s24, s3, 4
    s_lshr_b32 s3, s10, 1
    s_lshl_b32 s3, s3, 2
    s_add_u32 s24, s24, s3
    s_and_b32 s3, s11, 3
    s_add_u32 s24, s24, s3
    s_lshl_b32 s24, s24, 2
    s_add_u32 s24, s24, s26
    s_lshr_b32 s25, s11, 2
    """)
    for n in range(5):
        k("v_add_u32 v%d, s29, v1" % (WV + n))
        if n: k("v_add_u32 v%d, %d, v%d" % (WV + n, n*4096, WV + n))
    k("s_mul_i32 s28, s25, %d" % (100*1024))
    k("s_add_u32 s28, s28, 0x%x" % WO)
    k("s_mul_i32 s30, s24, %d" % (20*1024))
    k("s_add_u32 s30, s30, 0x%x" % AO)
    k("v_mov_b32 v%d, v1" % TV)
    k("s_lshl_b32 s3, s24, 4")
    k("s_mul_i32 s31, s3, 1280")
    k("s_mul_i32 s3, s25, 160")
    k("s_add_u32 s31, s31, s3")
    for n in range(3):
        k("v_add_u32 v20, %d, v0" % (64*n))
        k("v_mul_u32_u24 v21, 6554, v20")
        k("v_lshrrev_b32 v21, 16, v21")
        k("v_mul_u32_u24 v22, 10, v21")
        k("v_sub_u32 v20, v20, v22")
        k("v_mul_u32_u24 v21, 1280, v21")
        k("v_lshl_add_u32 v%d, v20, 4, v21" % (XV + n))
    k("""
    s_and_b32 s3, s10, 1
    s_lshl_b32 s3, s3, 5
    s_add_u32 s32, s3, s11
    s_min_u32 s33, s32, 55
    s_mul_i32 s34, s33, 4682
    s_lshr_b32 s34, s34, 16
    s_mul_i32 s3, s34, 14
    s_sub_u32 s33, s33, s3
    s_lshr_b32 s3, s10, 1
    s_lshl_b32 s3, s3, 2
    s_add_u32 s35, s3, s34
    s_mul_i32 s36, s35, 14
    s_add_u32 s36, s36, s33
    s_lshl_b32 s36, s36, 6
    s_cmp_eq_u32 s33, 6
    s_cselect_b32 s3, 1, 0
    s_cmp_eq_u32 s33, 13
    s_cselect_b32 s3, 1, s3
    s_cmp_eq_u32 s34, 3
    s_cselect_b32 s3, s3, 0
    s_sub_u32 s33, s33, s3
    s_mul_i32 s37, s35, 280
    s_add_u32 s37, s37, s33
    s_mul_i32 s3, s26, 70
    s_add_u32 s37, s37, s3
    s_lshl_b32 s37, s37, 10
    """)
    k("s_add_u32 s37, s37, 0x%x" % GU)
    k("s_add_u32 s36, s36, 0x%x" % CS)
    k("s_waitcnt lgkmcnt(0)")
    k.ts(11)
    k.srd(12, 8, WS_END)
    k.srd(16, 4, XB)
    def extra():
        k("s_mul_i32 s3, s26, 2560")
        for n in range(3):
            pre = ["s_add_u32 m0, s3, %d" % (XL + n*1024), "s_nop 0"]
            if n == 2: pre = ["s_mov_b32 exec_hi, 0"] + pre
            vm.op("x", *(pre + ["buffer_load_dwordx4 v%d, s[16:19], s31 offen lds" % (XV + n)]))
        k("s_mov_b64 exec, -1")
        for s in range(5):
            vm.op("c", "buffer_load_dwordx4 %s, v1, s[12:15], s37 offen %s" % (vr(CF + 4*s, 4), pol))
            if s < 4: k("s_add_u32 s37, s37, %d" % (14*1024))
    def pre():
        for r in range(4): k("v_mov_b32 v%d, 0x3f803f80" % (ONES + r))
    def colsum():
        for s in range(5):
            k("v_mfma_f32_16x16x32_bf16 %s, %s, %s, %s" % (vr(CA, 4), vr(CF + 4*s, 4), vr(ONES, 4), vr(CA, 4) if s else "0"))
    def colsum_w():
        k("s_lshl_b32 s3, s26, 6")
        k("s_add_u32 s3, s3, %d" % CL)
        k("v_lshl_add_u32 v20, v3, 4, s3")
        k("s_mov_b32 s38, 0x00010001")
        k("s_mov_b32 s39, 0x00010001")
        k("s_mov_b64 exec, s[38:39]")
        k("ds_write_b128 v20, %s" % vr(CA, 4))
        k("s_mov_b64 exec, -1")
        k("s_waitcnt lgkmcnt(0)")
    hooks = {"pre": pre, ("sync", 1): colsum, ("sync", 2): colsum_w}
    gemm_core(k, vm, 1, 5, 20, 4, 5, 4, NB, lambda n, j: vr(ACC + 4*n, 4), lambda b: vr(WF + 4*b, 4),
              lambda s, kk, j: vr(TOK + 16*s + 4*kk, 4), WV, TV, 4, pol, hooks, extra)
    k("s_mul_i32 s3, s26, 2560")
    k("s_add_u32 s3, s3, %d" % XL)
    k("v_mul_u32_u24 v20, 160, v2")
    k("v_lshl_add_u32 v20, v3, 3, v20")
    k("v_add_u32 v20, s3, v20")
    for i in range(5):
        k("ds_read_b64 %s, v20 offset:%d" % (vr(TOK + 2*i, 2), 32*i))
    k("v_lshlrev_b32 v21, 2, v2")
    k("v_add_u32 v28, %d, v21" % CL)
    for w in range(4):
        k("ds_read_b32 v%d, v28 offset:%d" % (CF + w, 64*w))
    k("s_mul_i32 s40, s24, 20480")
    k("s_add_u32 s40, s40, 0x%x" % HF)
    k("s_mul_i32 s41, s25, 5")
    k("v_mov_b32 v24, 0")
    k("v_mov_b32 v25, 0")
    k("s_waitcnt lgkmcnt(4)")
    for i in range(5):
        a = ACC + 4*i; x = TOK + 2*i
        k("v_lshlrev_b32 v22, 16, v%d" % x)
        k("v_and_b32 v23, 0xffff0000, v%d" % x)
        k("v_lshlrev_b32 v26, 16, v%d" % (x + 1))
        k("v_and_b32 v27, 0xffff0000, v%d" % (x + 1))
        k("v_pk_add_f32 %s, %s, v[22:23]" % (vr(a, 2), vr(a, 2)))
        k("v_pk_add_f32 %s, %s, v[26:27]" % (vr(a + 2, 2), vr(a + 2, 2)))
        k("s_add_u32 s3, s41, %d" % i)
        k("s_lshr_b32 s42, s3, 1")
        k("s_lshl_b32 s42, s42, 10")
        k("s_and_b32 s3, s3, 1")
        k("s_lshl_b32 s3, s3, 3")
        k("s_add_u32 s42, s42, s3")
        k("s_add_u32 s42, s42, s40")
        k("v_cvt_pk_bf16_f32 v%d, v%d, v%d" % (a, a, a + 1))
        k("v_cvt_pk_bf16_f32 v%d, v%d, v%d" % (a + 1, a + 2, a + 3))
        k("buffer_store_dwordx2 %s, v1, s[12:15], s42 offen %s" % (vr(a, 2), stpol))
        for h in range(2):
            k("v_dot2c_f32_bf16 v24, v%d, v%d" % (a + h, ONES))
            k("v_dot2c_f32_bf16 v25, v%d, v%d" % (a + h, a + h))
    k("s_nop 2")
    qreduce(k, 24, 22)
    qreduce(k, 25, 22)
    k("s_lshl_b32 s3, s24, 10")
    k("s_lshl_b32 s42, s25, 3")
    k("s_add_u32 s42, s42, s3")
    k("s_add_u32 s42, s42, 0x%x" % ST)
    k("v_lshlrev_b32 v20, 6, v2")
    k("s_waitcnt lgkmcnt(0)")
    k("v_add_f32 v%d, v%d, v%d" % (CF, CF, CF + 1))
    k("v_add_f32 v%d, v%d, v%d" % (CF + 2, CF + 2, CF + 3))
    k("s_mov_b64 exec, 0xffff")
    k("buffer_store_dwordx2 v[24:25], v20, s[12:15], s42 offen %s" % stpol)
    k("v_add_f32 v%d, v%d, v%d" % (CF, CF, CF + 2))
    k("s_cmp_lt_u32 s32, 56")
    k("s_cselect_b32 s3, 0, 1")
    k("s_add_u32 s3, s3, s26")
    k("s_cmp_eq_u32 s3, 0")
    E2 = k.label("e2")
    k("s_cbranch_scc0 %s" % E2)
    k("buffer_store_dword v%d, v21, s[12:15], s36 offen %s" % (CF, stpol))
    k.put(E2)
    k.tsdump()
    k.put(END)
    k("s_endpgm")
    return k

def gen_s4(opt=None):
    opt = opt or {}
    pol = opt.get("s4_ldpol", ""); stpol = opt.get("s4_stpol", "")
    LOOK = opt.get("s4_look", 4); NB = LOOK + 2
    k = Kern("s4_gu_kernel", 256, 256, 147456, nv=208, na=80 + 4*NB)
    k.tson = opt.get("ts", 0); k.kid = 3
    k.ts(0, True); k.ts(1)
    vm = VM(k)
    END = k.label("end")
    ACC = 32; CSV = 144; WV = 8; TV = 15; STV = 200
    CL = 143360
    common_head(k, END)
    k("s_load_dwordx2 s[8:9], s[0:1], 72")
    lane_setup(k)
    k("""
    s_and_b32 s3, s10, 1
    s_lshl_b32 s24, s3, 3
    s_and_b32 s3, s11, 7
    s_add_u32 s24, s24, s3
    s_lshl_b32 s24, s24, 2
    s_add_u32 s24, s24, s26
    s_lshl_b32 s24, s24, 1
    s_lshr_b32 s34, s11, 3
    s_lshr_b32 s33, s10, 1
    s_lshl_b32 s25, s33, 2
    s_add_u32 s25, s25, s34
    s_mul_i32 s35, s33, 27
    s_mul_i32 s3, s34, 7
    s_add_u32 s35, s35, s3
    """)
    k("s_cmp_eq_u32 s34, 3")
    k("s_cselect_b32 s36, 0x08102040, 0")
    for n in range(7):
        k("s_add_u32 s3, s26, %d" % (4*n))
        k("s_bitcmp1_b32 s36, s3")
        k("s_subb_u32 s3, s3, 0")
        k("s_lshl_b32 s3, s3, 10")
        k("v_add_u32 v%d, s3, v1" % (WV + n))
    k("s_mul_i32 s28, s25, %d" % (280*1024))
    k("s_add_u32 s28, s28, 0x%x" % GU)
    k("s_mul_i32 s30, s24, %d" % (20*1024))
    k("s_add_u32 s30, s30, 0x%x" % HF)
    k("v_mov_b32 v%d, v1" % TV)
    k("v_add_u32 v%d, 20480, v1" % (TV + 1))
    k("s_lshl_b32 s37, s24, 10")
    k("s_add_u32 s37, s37, 0x%x" % ST)
    k("v_lshlrev_b32 v20, 6, v2")
    k("v_lshl_add_u32 v20, v3, 4, v20")
    k("s_mul_i32 s38, s25, 896")
    k("s_add_u32 s38, s38, 0x%x" % CS)
    k("s_waitcnt lgkmcnt(0)")
    k.ts(11)
    k.srd(12, 8, WS_END)
    def extra():
        for j in range(2):
            vm.op("st", "buffer_load_dwordx4 %s, v20, s[12:15], s37 offen offset:%d" % (vr(STV + 4*j, 4), 1024*j))
        vm.op("cs", "s_mov_b32 exec_hi, 0x00ffffff", "s_add_u32 m0, s29, %d" % CL, "s_nop 0", "buffer_load_dwordx4 v1, s[12:15], s38 offen lds", "s_mov_b64 exec, -1")
    def stats():
        for j in range(2):
            s = STV + 4*j
            k("v_add_f32 v%d, v%d, v%d" % (s, s, s + 2))
            k("v_add_f32 v%d, v%d, v%d" % (s + 1, s + 1, s + 3))
            qreduce(k, s, 21); qreduce(k, s + 1, 21)
            m = 22 + 2*j
            k("v_mul_f32 v%d, 0x%x, v%d" % (m, f2u(1.0/640), s))
            k("v_mul_f32 v%d, 0x%x, v%d" % (m + 1, f2u(1.0/640), s + 1))
            k("v_fma_f32 v%d, -v%d, v%d, v%d" % (m + 1, m, m, m + 1))
            k("v_max_f32 v%d, 0, v%d" % (m + 1, m + 1))
            k("v_add_f32 v%d, 0x%x, v%d" % (m + 1, f2u(1e-5), m + 1))
            k("v_rcp_f32 v%d, v%d" % (m + 1, m + 1))
        k("s_add_u32 s3, s29, %d" % CL)
        k("v_lshl_add_u32 v21, v3, 4, s3")
        k("s_waitcnt lgkmcnt(0)")
        for n in range(14):
            k("ds_read_b128 %s, v21 offset:%d" % (vr(CSV + 4*n, 4), 64*n))
        k("s_waitcnt lgkmcnt(0)")
    hooks = {("sync", 1): stats}
    def order(ks):
        return [x for i in range(7) for x in (i, i + 7)] if ks == 19 else range(14)
    gemm_core(k, vm, 2, 14, 20, 2, 5, LOOK, NB, lambda n, j: vr(ACC + 8*n + 4*j, 4), lambda b: ar(80 + 4*b, 4),
              lambda s, kk, j: ar(16*s + 8*kk + 4*j, 4), WV, TV, 4, pol, hooks, extra, order)
    k("s_mul_i32 s40, s24, %d" % (54*1024))
    k("s_add_u32 s40, s40, 0x%x" % HH)
    k("v_add_u32 v7, %d, v1" % (54*1024))
    k("s_nop 7")
    E2 = k.label("e2")
    for i in range(7):
        k("s_add_u32 s3, s35, %d" % i)
        k("s_lshr_b32 s42, s3, 1")
        k("s_lshl_b32 s42, s42, 10")
        k("s_and_b32 s3, s3, 1")
        k("s_lshl_b32 s3, s3, 3")
        k("s_add_u32 s42, s42, s3")
        k("s_add_u32 s42, s42, s40")
        if i == 6:
            k("s_cmp_eq_u32 s34, 3")
            k("s_cbranch_scc1 %s" % E2)
        for j in range(2):
            g = ACC + 8*i + 4*j; u = ACC + 8*(i + 7) + 4*j; m = 22 + 2*j
            for h in range(2):
                k("v_pk_fma_f32 %s, %s, %s, %s op_sel:[0,0,0] op_sel_hi:[1,0,1] neg_lo:[0,1,0] neg_hi:[0,1,0]" % (vr(g + 2*h, 2), vr(CSV + 4*i + 2*h, 2), vr(m, 2), vr(g + 2*h, 2)))
                k("v_pk_fma_f32 %s, %s, %s, %s op_sel:[0,0,0] op_sel_hi:[1,0,1] neg_lo:[0,1,0] neg_hi:[0,1,0]" % (vr(u + 2*h, 2), vr(CSV + 4*(i + 7) + 2*h, 2), vr(m, 2), vr(u + 2*h, 2)))
            for r in range(4):
                k("v_max_f32 v%d, 0, v%d" % (g + r, g + r))
            for h in range(2):
                k("v_pk_mul_f32 %s, %s, %s op_sel:[0,1] op_sel_hi:[1,1]" % (vr(u + 2*h, 2), vr(u + 2*h, 2), vr(m, 2)))
            for h in range(2):
                k("v_pk_mul_f32 %s, %s, %s" % (vr(g + 2*h, 2), vr(g + 2*h, 2), vr(u + 2*h, 2)))
            k("v_cvt_pk_bf16_f32 v%d, v%d, v%d" % (g, g, g + 1))
            k("v_cvt_pk_bf16_f32 v%d, v%d, v%d" % (g + 1, g + 2, g + 3))
            k("buffer_store_dwordx2 %s, v%d, s[12:15], s42 offen %s" % (vr(g, 2), 1 if j == 0 else 7, stpol))
    k.put(E2)
    k.tsdump()
    k.put(END)
    k("s_endpgm")
    return k

def gen_s5(opt=None):
    opt = opt or {}
    pol = opt.get("s5_ldpol", ""); stpol = opt.get("s5_stpol", "")
    NS = opt.get("s5_ns", 6)
    k = Kern("s5_dn_kernel", 256, 256, NS*20480, nv=96 + 16*NS)
    k.tson = opt.get("ts", 0); k.kid = 4
    k.ts(0, True); k.ts(1)
    vm = VM(k)
    END = k.label("end")
    ACC = 32; WF = 52; NB = 8; HR = 84; TOK = 96; WV = 8; TV = 13
    common_head(k, END)
    k("s_load_dwordx2 s[8:9], s[0:1], 72")
    k("s_load_dwordx2 s[4:5], s[0:1], 56")
    lane_setup(k)
    k("""
    s_and_b32 s3, s10, 1
    s_lshl_b32 s24, s3, 1
    s_lshr_b32 s3, s10, 2
    s_add_u32 s24, s24, s3
    s_lshl_b32 s24, s24, 3
    s_and_b32 s3, s11, 7
    s_add_u32 s24, s24, s3
    s_lshl_b32 s24, s24, 2
    s_add_u32 s24, s24, s26
    s_bfe_u32 s25, s10, 0x10001
    s_lshl_b32 s25, s25, 2
    s_lshr_b32 s3, s11, 3
    s_add_u32 s25, s25, s3
    """)
    for n in range(5):
        k("v_add_u32 v%d, s29, v1" % (WV + n))
        if n: k("v_add_u32 v%d, %d, v%d" % (WV + n, n*4096, WV + n))
    k("s_mul_i32 s28, s25, %d" % (270*1024))
    k("s_add_u32 s28, s28, 0x%x" % WD)
    k("s_mul_i32 s30, s24, %d" % (54*1024))
    k("s_add_u32 s30, s30, 0x%x" % HH)
    k("v_mov_b32 v%d, v1" % TV)
    k("s_mul_i32 s40, s24, 20480")
    k("s_add_u32 s40, s40, 0x%x" % HF)
    k("s_mul_i32 s41, s25, 5")
    k("s_waitcnt lgkmcnt(0)")
    k.ts(11)
    k.srd(12, 8, WS_END)
    k.srd(16, 4, XB)
    def extra():
        for i in range(5):
            k("s_add_u32 s3, s41, %d" % i)
            k("s_lshr_b32 s42, s3, 1")
            k("s_lshl_b32 s42, s42, 10")
            k("s_and_b32 s3, s3, 1")
            k("s_lshl_b32 s3, s3, 3")
            k("s_add_u32 s42, s42, s3")
            k("s_add_u32 s42, s42, s40")
            vm.op("h", "buffer_load_dwordx2 %s, v1, s[12:15], s42 offen" % vr(HR + 2*i, 2))
    def pre():
        k("s_lshl_b32 s3, s24, 4")
        k("v_add_u32 v20, s3, v2")
        k("v_mul_u32_u24 v20, 1280, v20")
        k("s_mul_i32 s3, s25, 160")
        k("v_add_u32 v20, s3, v20")
        k("v_lshl_add_u32 v21, v3, 3, v20")
        k("v_and_b32 v22, 1, v3")
        k("v_lshl_add_u32 v20, v22, 5, v20")
        k("v_lshrrev_b32 v22, 1, v3")
        k("v_lshl_add_u32 v20, v22, 4, v20")
    gemm_core(k, vm, 1, 5, 54, 4, NS, 4, NB, lambda n, j: vr(ACC + 4*n, 4), lambda b: vr(WF + 4*b, 4),
              lambda s, kk, j: vr(TOK + 16*s + 4*kk, 4), WV, TV, 4, pol, {"pre": pre}, extra)
    for i in range(5):
        x = HR + 2*i; t = WF + 4*i
        k("v_lshlrev_b32 v%d, 16, v%d" % (TOK + 4*i, x))
        k("v_and_b32 v%d, 0xffff0000, v%d" % (TOK + 4*i + 1, x))
        k("v_lshlrev_b32 v%d, 16, v%d" % (TOK + 4*i + 2, x + 1))
        k("v_and_b32 v%d, 0xffff0000, v%d" % (TOK + 4*i + 3, x + 1))
    R = [HR, HR + 2, HR + 4, HR + 6, HR + 8]
    for i in range(5):
        a = ACC + 4*i
        k("v_pk_add_f32 %s, %s, %s" % (vr(a, 2), vr(a, 2), vr(TOK + 4*i, 2)))
        k("v_pk_add_f32 %s, %s, %s" % (vr(a + 2, 2), vr(a + 2, 2), vr(TOK + 4*i + 2, 2)))
        k("v_cvt_pk_bf16_f32 v%d, v%d, v%d" % (R[i], a, a + 1))
        k("v_cvt_pk_bf16_f32 v%d, v%d, v%d" % (R[i] + 1, a + 2, a + 3))
    k("buffer_store_dwordx2 %s, v21, s[16:19], 0 offen offset:128 %s" % (vr(R[4], 2), stpol))
    for p in range(2):
        k("v_permlane16_swap_b32 v%d, v%d" % (R[2*p], R[2*p + 1]))
        k("v_permlane16_swap_b32 v%d, v%d" % (R[2*p] + 1, R[2*p + 1] + 1))
    k("s_nop 1")
    for p in range(2):
        k("buffer_store_dwordx4 %s, v20, s[16:19], 0 offen offset:%d %s" % (vr(R[2*p], 4), 64*p, stpol))
    k.tsdump()
    k.put(END)
    k("s_endpgm")
    return k
```

```python
from asmlib import *
from lay import *
from side import *

def gen_s1(opt=None):
    opt = opt or {}
    ldpol = opt.get("s1_ldpol", "")
    stpol = opt.get("s1_stpol", "")
    k = Kern("s1_qkv_kernel", 256, 256, 163840, nv=232)
    k.tson = opt.get("ts", 0); k.kid = 0
    k.ts(0, True); k.ts(1)
    ACC = 64; SX = 128; SQ = 132; SW = 136; SEL = 140
    def XF(p, a): return 144 + p*16 + a*4
    def WF(p, b): return 152 + p*16 + b*4
    def XA(c, a, kk): return 176 + c*8 + a*4 + kk
    def WA(c, b): return 200 + c*2 + b
    XD = 206; WD_ = 210; SA = 214
    END = k.label("end")
    k("s_cmp_ge_u32 s2, 256")
    k("s_cbranch_scc1 %s" % END)
    k("s_load_dwordx4 s[4:7], s[0:1], 0")
    k("s_load_dwordx2 s[8:9], s[0:1], 72")
    k("""
    s_and_b32 s10, s2, 7
    s_lshr_b32 s11, s2, 3
    s_lshr_b32 s24, s10, 1
    s_lshl_b32 s24, s24, 2
    s_and_b32 s3, s11, 3
    s_add_u32 s24, s24, s3
    s_and_b32 s25, s10, 1
    s_lshl_b32 s25, s25, 3
    s_lshr_b32 s3, s11, 2
    s_add_u32 s25, s25, s3
    s_cmp_ge_u32 s25, 15
    """)
    WOJ = k.label("woj")
    k("s_cbranch_scc1 %s" % WOJ)
    k("""
    v_lshrrev_b32 v1, 6, v0
    v_and_b32 v0, 63, v0
    v_readfirstlane_b32 s26, v1
    v_lshrrev_b32 v2, 3, v0
    v_lshrrev_b32 v3, 4, v0
    v_and_b32 v4, 7, v0
    s_lshr_b32 s27, s26, 1
    s_and_b32 s28, s26, 1
    s_lshl_b32 s29, s26, 12
    s_lshl_b32 s3, s24, 7
    s_lshl_b32 s10, s26, 5
    s_add_u32 s3, s3, s10
    """)
    k("v_add_u32 v5, s3, v2")
    k("s_movk_i32 s10, 1280")
    k("v_mul_lo_u32 v5, v5, s10")
    for i in range(4):
        k("v_add_u32 v6, %d, v3" % (4*i))
        k("v_and_b32 v6, 7, v6")
        k("v_xor_b32 v6, v6, v4")
        k("v_lshl_add_u32 v6, v6, 4, v5")
        k("v_add_u32 v%d, %d, v6" % (XD + i, i*8*1280))
    k("s_lshl_b32 s3, s26, 4")
    k("v_add_u32 v5, s3, v3")
    k("s_movk_i32 s10, 3840")
    k("v_mul_lo_u32 v5, v5, s10")
    k("v_and_b32 v6, 15, v0")
    k("v_lshlrev_b32 v7, 2, v3")
    k("v_xor_b32 v6, v6, v7")
    k("v_lshl_add_u32 v5, v6, 4, v5")
    k("s_lshl_b32 s3, s25, 8")
    k("v_add_u32 v5, s3, v5")
    for i in range(4):
        k("v_add_u32 v%d, %d, v5" % (WD_ + i, i*4*3840))
    k("s_waitcnt lgkmcnt(0)")
    k.ts(12)
    k.srd(12, 4, XB)
    k.srd(16, 6, WQKVB)
    def dma_list(s):
        slot = s % 5
        L = []
        L.append(["s_movk_i32 s30, %d" % (s*128), "s_mov_b32 s31, %d" % (s*64*3840)])
        for i in range(4):
            L.append(["s_add_u32 m0, s29, %d" % (slot*32768 + i*1024), "s_nop 0",
                      "buffer_load_dwordx4 v%d, s[12:15], s30 offen %s lds" % (XD + i, ldpol)])
            L.append(["s_add_u32 m0, s29, %d" % (slot*32768 + 16384 + i*1024), "s_nop 0",
                      "buffer_load_dwordx4 v%d, s[16:19], s31 offen %s lds" % (WD_ + i, ldpol)])
        return L
    for s in range(5):
        for grp in dma_list(s):
            for ln in grp: k(ln)
    k.ts(2)
    k.srd(20, 8, AO)
    k("""
    v_and_b32 v8, 31, v0
    v_lshrrev_b32 v9, 5, v0
    v_lshrrev_b32 v10, 1, v8
    v_and_b32 v10, 7, v10
    s_lshl_b32 s3, s27, 1
    s_add_u32 s32, s3, s28
    s_xor_b32 s33, s32, 1
    s_lshl_b32 s3, s28, 1
    s_add_u32 s34, s3, s27
    s_xor_b32 s35, s34, 1
    """)
    for a in range(2):
        k("s_lshl_b32 s3, s%d, 12" % (32 + a))
        k("v_lshl_add_u32 v11, v8, 7, s3")
        for kk in range(4):
            k("v_add_u32 v12, %d, v9" % (2*kk))
            k("v_xor_b32 v12, v12, v10")
            k("v_lshl_add_u32 v%d, v12, 4, v11" % XA(0, a, kk))
            for c in (1, 2):
                k("v_add_u32 v%d, 0x%x, v%d" % (XA(c, a, kk), c*65536, XA(0, a, kk)))
    k("""
    v_lshrrev_b32 v11, 2, v0
    v_and_b32 v11, 3, v11
    v_lshl_add_u32 v12, v9, 3, v11
    v_lshlrev_b32 v12, 8, v12
    v_and_b32 v13, 1, v3
    v_lshlrev_b32 v13, 1, v13
    v_bfe_u32 v14, v0, 1, 1
    v_or_b32 v13, v13, v14
    v_and_b32 v14, 1, v0
    v_lshl_add_u32 v12, v14, 3, v12
    v_lshl_add_u32 v12, v13, 4, v12
    v_add_u32 v12, 0x4000, v12
    """)
    for b in range(2):
        k("v_xor_b32 v13, s%d, v11" % (34 + b))
        k("v_lshl_add_u32 v%d, v13, 6, v12" % WA(0, b))
        for c in (1, 2):
            k("v_add_u32 v%d, 0x%x, v%d" % (WA(c, b), c*65536, WA(0, b)))
    k("""
    v_xor_b32 v13, v0, v3
    v_and_b32 v13, 1, v13
    v_cmp_eq_u32 vcc, 0, v13
    v_mov_b32 v14, 0x3f803f80
    s_nop 0
    v_cndmask_b32 v140, 0, v14, vcc
    v_mov_b32 v141, v140
    v_mov_b32 v142, v140
    v_mov_b32 v143, v140
    """)
    for r in range(ACC, ACC + 76):
        k("v_mov_b32 v%d, 0" % r)
    LV = k.label("v"); LQK = k.label("qk"); LK = k.label("k"); LA = k.label("adr")
    k("s_mov_b32 s40, 1.0")
    k("s_cmp_ge_u32 s25, 10")
    k("s_cbranch_scc1 %s" % LV)

    def reads(p, s, kk):
        slot = s % 5; c = slot >> 1; o = (slot & 1)*32768
        return ["ds_read_b128 %s, v%d offset:%d" % (vr(XF(p, 0), 4), XA(c, 0, kk), o),
                "ds_read_b64_tr_b16 %s, v%d offset:%d" % (vr(WF(p, 0), 2), WA(c, 0), o + kk*4096),
                "ds_read_b64_tr_b16 %s, v%d offset:%d" % (vr(WF(p, 0) + 2, 2), WA(c, 0), o + kk*4096 + 1024),
                "ds_read_b64_tr_b16 %s, v%d offset:%d" % (vr(WF(p, 1), 2), WA(c, 1), o + kk*4096),
                "ds_read_b64_tr_b16 %s, v%d offset:%d" % (vr(WF(p, 1) + 2, 2), WA(c, 1), o + kk*4096 + 1024),
                "ds_read_b128 %s, v%d offset:%d" % (vr(XF(p, 1), 4), XA(c, 1, kk), o)]
    def mainloop(isv):
        def M(p, a, b):
            d = vr(ACC + (a*2 + b)*16, 16)
            x = vr(XF(p, a), 4); w = vr(WF(p, b), 4)
            A, B = (x, w) if isv else (w, x)
            return "v_mfma_f32_32x32x16_bf16 %s, %s, %s, %s" % (d, A, B, d)
        def stats(p):
            x = XF(p, 0); w = WF(p, 0)
            return ["v_mfma_f32_4x4x4_16b_bf16 %s, %s, %s, %s" % (vr(SQ, 4), vr(x, 2), vr(x, 2), vr(SQ, 4)),
                    "v_mfma_f32_16x16x32_bf16 %s, %s, %s, %s" % (vr(SX, 4), vr(SEL, 4), vr(x, 4), vr(SX, 4)),
                    "v_mfma_f32_16x16x32_bf16 %s, %s, %s, %s" % (vr(SW, 4), vr(SEL, 4), vr(w, 4), vr(SW, 4)),
                    "v_mfma_f32_4x4x4_16b_bf16 %s, %s, %s, %s" % (vr(SQ, 4), vr(x + 2, 2), vr(x + 2, 2), vr(SQ, 4))]
        k.ts(3)
        k("s_waitcnt vmcnt(32)")
        k.ts(4)
        k("s_barrier")
        for r in reads(0, 0, 0): k(r)
        p = 0
        pend = []
        for s in range(10):
            for kk in range(4):
                last = (s == 9 and kk == 3)
                st = stats(p)
                if kk < 3:
                    R = reads(p ^ 1, s, kk + 1)
                    k("s_waitcnt lgkmcnt(3)")
                    k(M(p, 0, 0)); k(R[0]); k(R[1]); k(R[2])
                    k("s_waitcnt lgkmcnt(4)")
                    k(M(p, 0, 1)); k(R[3]); k(R[4]); k(R[5])
                    k("s_waitcnt lgkmcnt(6)")
                    k(M(p, 1, 0))
                    for _ in range(2):
                        if pend:
                            for ln in pend.pop(0): k(ln)
                    k(M(p, 1, 1))
                    if pend:
                        for ln in pend.pop(0): k(ln)
                    for x in st: k(x)
                else:
                    assert not pend
                    k("s_waitcnt lgkmcnt(0)")
                    k(M(p, 0, 0)); k(M(p, 0, 1))
                    if not last:
                        hi = min(s + 4, 9)
                        k("s_waitcnt vmcnt(%d)" % (8*(hi - (s + 1))))
                        k("s_barrier")
                        if s in (0, 2, 4, 6, 8): k.ts(5 + s//2)
                        R = reads(p ^ 1, s + 1, 0)
                        k(M(p, 1, 0))
                        for r in R: k(r)
                        k(M(p, 1, 1))
                        if s + 5 <= 9:
                            pend = dma_list(s + 5)
                    else:
                        k(M(p, 1, 0)); k(M(p, 1, 1))
                    for x in st: k(x)
                p ^= 1
        k.ts(10)
        k("s_nop 15")
        k("""
        v_and_b32 v13, 3, v0
        v_cmp_eq_u32 vcc, 1, v13
        v_cmp_eq_u32 s[42:43], 2, v13
        v_cmp_eq_u32 s[44:45], 3, v13
        v_and_b32 v14, 16, v0
        v_cmp_ne_u32 s[46:47], 0, v14
        v_cndmask_b32 v15, v132, v133, vcc
        v_cndmask_b32 v15, v15, v134, s[42:43]
        v_cndmask_b32 v15, v15, v135, s[44:45]
        v_cndmask_b32 v16, v128, v129, s[46:47]
        v_cndmask_b32 v17, v136, v137, s[46:47]
        v_mov_b32 v18, v15
        s_nop 1
        v_permlane32_swap_b32 v15, v18
        s_nop 1
        v_add_f32 v15, v15, v18
        """)
        k("v_mul_f32 v16, 0x%x, v16" % f2u(1.0/640))
        k("v_mul_f32 v15, 0x%x, v15" % f2u(1.0/640))
        k("v_fma_f32 v15, -v16, v16, v15")
        k("v_max_f32 v15, 0, v15")
        k("v_add_f32 v15, 0x%x, v15" % f2u(1e-5))
        k("v_rsq_f32 v15, v15")
        k("s_lshl_b32 s3, s32, 7")
        k("v_lshl_add_u32 v18, v8, 2, s3")
        k("v_mul_f32 v15, s40, v15")
        k("s_lshl_b32 s3, s34, 7")
        k("v_lshl_add_u32 v19, v8, 2, s3")
        k("ds_write_b32 v18, v16")
        k("ds_write_b32 v18, v15 offset:512")
        k("ds_write_b32 v19, v17 offset:1024")
        k("s_waitcnt lgkmcnt(0)")
        k("s_barrier")
        k.ts(11)

    k("s_cmp_ge_u32 s25, 5")
    k("s_cbranch_scc1 %s" % LK)
    k("s_mov_b32 s40, 0x%x" % f2u(QSCALE))
    k("s_mov_b32 s36, 81920")
    k("s_lshl_b32 s3, s24, 1")
    k("s_add_u32 s3, s3, s27")
    k("s_mul_i32 s37, s3, 2560")
    k("s_add_u32 s37, s37, 0x%x" % QS)
    k("s_movk_i32 s38, 1280")
    k("s_movk_i32 s39, 1024")
    k("s_movk_i32 s41, 1280")
    k("s_lshl_b32 s48, s25, 5")
    k("s_branch %s" % LA)
    k.put(LK)
    k("s_mov_b32 s36, 163840")
    k("s_lshl_b32 s3, s24, 1")
    k("s_add_u32 s3, s3, s27")
    k("s_mul_i32 s37, s3, 5120")
    k("s_add_u32 s37, s37, 0x%x" % KV)
    k("s_movk_i32 s38, 1024")
    k("s_movk_i32 s39, 2048")
    k("s_movk_i32 s41, 256")
    k("s_sub_u32 s48, s25, 5")
    k("s_lshl_b32 s48, s48, 5")
    k.put(LA)
    k("v_mov_b32 v20, s38")
    k("v_mov_b32 v21, s41")
    k("v_lshlrev_b32 v22, 4, v8")
    k("v_lshl_add_u32 v23, v8, 3, s39")
    k("s_cmp_eq_u32 s28, 0")
    k("s_cselect_b64 s[50:51], -1, 0")
    for b in range(2):
        k("s_lshl_b32 s3, s%d, 3" % (34 + b))
        k("s_add_u32 s3, s3, s48")
        for i in range(4):
            k("v_add_u32 v13, s3, v9")
            if i: k("v_add_u32 v13, %d, v13" % (2*i))
            k("v_mul_u32_u24 v14, 205, v13")
            k("v_lshrrev_b32 v14, 10, v14")
            k("v_mul_u32_u24 v15, 5, v14")
            k("v_sub_u32 v15, v13, v15")
            k("v_cmp_eq_u32 vcc, 4, v15")
            k("v_lshrrev_b32 v16, 1, v15")
            k("v_lshl_add_u32 v16, v16, 9, v22")
            k("v_and_b32 v17, 1, v15")
            k("v_lshl_add_u32 v16, v17, 3, v16")
            k("v_cndmask_b32 v16, v16, v23, vcc")
            k("v_cndmask_b32 v17, v20, v21, vcc")
            k("v_mul_lo_u32 v14, v14, s36")
            k("v_add3_u32 v16, v16, v14, s37")
            k("v_add_u32 v17, v16, v17")
            k("v_cndmask_b32 v%d, v17, v16, s[50:51]" % (SA + (0*2 + b)*4 + i))
            k("v_cndmask_b32 v%d, v16, v17, s[50:51]" % (SA + (1*2 + b)*4 + i))
    mainloop(False)
    for a in range(2):
        k("s_lshl_b32 s3, s%d, 7" % (32 + a))
        k("v_lshl_add_u32 v13, v8, 2, s3")
        k("ds_read_b32 v%d, v13" % (20 + 2*a))
        k("ds_read_b32 v%d, v13 offset:512" % (21 + 2*a))
    for b in range(2):
        k("s_lshl_b32 s3, s%d, 7" % (34 + b))
        k("v_lshl_add_u32 v13, v9, 4, s3")
        for i in range(4):
            k("ds_read_b128 %s, v13 offset:%d" % (vr(24 + 16*b + 4*i, 4), 1024 + 32*i))
    k("s_waitcnt lgkmcnt(0)")
    for a in range(2):
        for b in range(2):
            d = ACC + (a*2 + b)*16
            for i in range(4):
                for h in range(2):
                    r = d + 4*i + 2*h
                    k("v_pk_fma_f32 %s, %s, %s, %s op_sel:[0,0,0] op_sel_hi:[1,0,1] neg_lo:[0,1,0] neg_hi:[0,1,0]" % (vr(r, 2), vr(24 + 16*b + 4*i + 2*h, 2), vr(20 + 2*a, 2), vr(r, 2)))
                for h in range(2):
                    r = d + 4*i + 2*h
                    k("v_pk_mul_f32 %s, %s, %s op_sel:[0,1] op_sel_hi:[1,1]" % (vr(r, 2), vr(r, 2), vr(20 + 2*a, 2)))
                k("v_cvt_pk_bf16_f32 v%d, v%d, v%d" % (d + 4*i, d + 4*i, d + 4*i + 1))
                k("v_cvt_pk_bf16_f32 v%d, v%d, v%d" % (d + 4*i + 1, d + 4*i + 2, d + 4*i + 3))
                k("buffer_store_dwordx2 %s, v%d, s[20:23], 0 offen %s" % (vr(d + 4*i, 2), SA + (a*2 + b)*4 + i, stpol))
    k.tsdump()
    k("s_endpgm")
    k.put(LV)
    k("s_lshl_b32 s3, s24, 1")
    k("s_add_u32 s3, s3, s27")
    k("s_mul_i32 s37, s3, 5120")
    k("s_add_u32 s37, s37, 0x%x" % (KV + 2560))
    k("s_sub_u32 s48, s25, 10")
    k("s_lshl_b32 s48, s48, 7")
    k("s_mov_b32 s36, 163840")
    k("s_mul_i32 s38, s28, 1280")
    k("s_sub_u32 s39, 1280, s38")
    k("v_mul_u32_u24 v16, 320, v9")
    for b in range(2):
        k("s_lshl_b32 s3, s%d, 5" % (34 + b))
        k("s_add_u32 s3, s3, s48")
        k("v_add_u32 v13, s3, v8")
        k("v_mul_u32_u24 v14, 3277, v13")
        k("v_lshrrev_b32 v14, 16, v14")
        k("v_mul_u32_u24 v15, 20, v14")
        k("v_sub_u32 v15, v13, v15")
        k("v_lshl_add_u32 v15, v15, 4, v16")
        k("v_mul_lo_u32 v14, v14, s36")
        k("v_add3_u32 v15, v15, v14, s37")
        k("v_add_u32 v%d, s38, v15" % (SA + 0*2 + b))
        k("v_add_u32 v%d, s39, v15" % (SA + 1*2 + b))
    mainloop(True)
    for b in range(2):
        k("s_lshl_b32 s3, s%d, 7" % (34 + b))
        k("v_lshl_add_u32 v13, v8, 2, s3")
        k("ds_read_b32 v%d, v13 offset:1024" % (20 + 2*b))
    for a in range(2):
        k("s_lshl_b32 s3, s%d, 7" % (32 + a))
        k("v_lshl_add_u32 v13, v9, 4, s3")
        mu = 24 if a == 0 else 144
        rr = 40 if a == 0 else 160
        for i in range(4):
            k("ds_read_b128 %s, v13 offset:%d" % (vr(mu + 4*i, 4), 32*i))
            k("ds_read_b128 %s, v13 offset:%d" % (vr(rr + 4*i, 4), 512 + 32*i))
        if a == 0: k("s_waitcnt lgkmcnt(4)")
    k("s_waitcnt lgkmcnt(0)")
    for a in range(2):
        mu = 24 if a == 0 else 144
        rr = 40 if a == 0 else 160
        for b in range(2):
            d = ACC + (a*2 + b)*16
            for j in range(2):
                for h in range(4):
                    o = 8*j + 2*h
                    k("v_pk_fma_f32 %s, %s, %s, %s op_sel:[0,0,0] op_sel_hi:[1,0,1] neg_lo:[0,1,0] neg_hi:[0,1,0]" % (vr(d + o, 2), vr(mu + o, 2), vr(20 + 2*b, 2), vr(d + o, 2)))
                for h in range(4):
                    o = 8*j + 2*h
                    k("v_pk_mul_f32 %s, %s, %s" % (vr(d + o, 2), vr(d + o, 2), vr(rr + o, 2)))
                for h in range(4):
                    k("v_cvt_pk_bf16_f32 v%d, v%d, v%d" % (d + 8*j + h, d + 8*j + 2*h, d + 8*j + 2*h + 1))
                k("buffer_store_dwordx4 %s, v%d, s[20:23], 0 offen offset:%d %s" % (vr(d + 8*j, 4), SA + a*2 + b, j*640, stpol))
    k.tsdump()
    k.put(END)
    k("s_endpgm")
    k.put(WOJ)
    k("s_load_dwordx2 s[44:45], s[0:1], 16")
    k("v_lshrrev_b32 v1, 6, v0")
    k("v_and_b32 v0, 63, v0")
    k("v_readfirstlane_b32 s26, v1")
    k("s_lshl_b32 s27, s24, 2")
    k("s_add_u32 s27, s27, s26")
    for i in range(4):
        k("s_add_u32 s50, s27, %d" % (64*i))
        side_addr_wo(k, 20 + i, 24 + 2*i)
    k("s_waitcnt lgkmcnt(0)")
    k.srd(36, 44, WOB)
    k.srd(16, 8, WS_END)
    for i in range(4):
        side_loads(k, 32 + 16*i, "", 24 + 2*i)
    for i in range(4):
        k("s_waitcnt vmcnt(%d)" % (24 - 4*i))
        side_stores(k, 32 + 16*i, 96 + 16*i, 20 + i, "")
    k("s_endpgm")
    return k
```

```python
from asmlib import *
from lay import *
from side import *
from gemm import VM

def gen_s2(opt=None):
    opt = opt or {}
    stpol = opt.get("s2_stpol", "")
    wstpol = opt.get("s2_wstpol", "")
    wldpol = opt.get("s2_wldpol", "")
    prio = opt.get("s2_prio", 1)
    npro = opt.get("s2_npro", 5)
    pfit = opt.get("s2_pfit", 13)
    k = Kern("s2_att_kernel", 256, 512, 163840, nv=168)
    k.tson = opt.get("ts", 0); k.kid = 1
    k.ts(0, True); k.ts(1)
    Q1 = 16; Q2 = (20, 22); CI = 24; O = 40; S = (56, 72); P = 88
    K1 = (96, 100); K2 = (104, 106); V = (108, 116)
    AK = 124; AK2 = 125; AV = 126; PFD = 127
    WL = 128; WP = 144; WA = 160; OA = 161; OB = 162; PFA = 163
    END = k.label("end"); PRO = k.label("pro"); LOOP = k.label("loop"); BACK = k.label("back"); STUB = k.label("stub")
    FB = k.label("fb"); FIN = k.label("fin")
    VMASK = 0x000fffff
    k("s_cmp_ge_u32 s2, 256")
    k("s_cbranch_scc1 %s" % END)
    k("s_load_dwordx2 s[8:9], s[0:1], 72")
    k("s_load_dwordx2 s[4:5], s[0:1], 0")
    k("s_load_dwordx4 s[44:47], s[0:1], 32")
    k("s_load_dwordx2 s[48:49], s[0:1], 48")
    k("""
    v_lshrrev_b32 v1, 6, v0
    v_and_b32 v0, 63, v0
    v_readfirstlane_b32 s26, v1
    s_and_b32 s10, s2, 7
    s_lshr_b32 s11, s2, 3
    s_and_b32 s3, s11, 3
    s_lshl_b32 s24, s10, 2
    s_add_u32 s24, s24, s3
    s_lshr_b32 s25, s11, 2
    s_lshl_b32 s25, s25, 3
    s_add_u32 s25, s25, s26
    v_lshlrev_b32 v2, 4, v0
    v_and_b32 v8, 31, v0
    v_lshrrev_b32 v9, 5, v0
    v_lshlrev_b32 v3, 3, v8
    """)
    k("s_lshl_b32 s3, s24, 6")
    k("s_add_u32 s3, s3, s25")
    k("s_mul_i32 s27, s3, 1280")
    k("s_mul_i32 s28, s24, 163840")
    k("s_lshl_b32 s29, s26, 10")
    k("s_add_u32 s28, s28, s29")
    k("s_add_u32 s28, s28, 0x%x" % KV)
    k("s_waitcnt lgkmcnt(0)")
    k.srd(12, 8, AO)
    vm = VM(k)
    def dma(i):
        vm.op(("d", i), "s_add_u32 m0, s29, %d" % (i*8192), "s_add_u32 s28, s28, 8192" if i else "s_nop 0",
              "buffer_load_dwordx4 v2, s[12:15], s28 offen lds")
    dma(0)
    vm.op("q", "buffer_load_dwordx4 %s, v2, s[12:15], s27 offen" % vr(Q1, 4))
    vm.op("q", "buffer_load_dwordx2 %s, v3, s[12:15], s27 offen offset:1024" % vr(Q2[0], 2))
    for i in range(1, npro): dma(i)
    k.ts(2)
    k.srd(16, 8, WS_END)
    k("v_mov_b32 v4, 0x3f803f80")
    k("v_cmp_eq_u32 vcc, 20, v8")
    k("v_cmp_gt_u32 s[22:23], 32, v0")
    k("s_mov_b32 s20, 0x%x" % VMASK)
    k("s_mov_b32 s21, 0x%x" % VMASK)
    for r in range(16):
        k("v_cndmask_b32 v%d, 0, v4, vcc" % (V[0] + r))
    k("s_mov_b32 s31, 0")
    k("s_lshr_b32 s3, s24, 1")
    k("s_mul_i32 s3, s3, 5")
    k("s_and_b32 s34, s24, 1")
    k("s_lshl_b32 s35, s34, 1")
    k("s_add_u32 s35, s35, s3")
    k("s_add_u32 s3, s3, 4")
    k("v_add_u32 v4, s35, v9")
    k("v_bfe_u32 v5, v0, 4, 1")
    k("s_lshl_b32 s33, s25, 1")
    k("v_add_u32 v5, s33, v5")
    k("v_mul_u32_u24 v5, 20, v5")
    k("v_and_b32 v10, 15, v0")
    k("v_lshrrev_b32 v11, 2, v4")
    k("v_add_u32 v11, v11, v5")
    k("v_and_b32 v4, 3, v4")
    k("v_lshl_add_u32 v4, v4, 4, v10")
    k("v_lshlrev_b32 v4, 4, v4")
    k("v_lshl_add_u32 v%d, v11, 10, v4" % OA)
    k("s_lshr_b32 s35, s3, 2")
    k("s_and_b32 s3, s3, 3")
    k("s_lshl_b32 s3, s3, 8")
    k("s_lshl_b32 s34, s34, 3")
    k("s_add_u32 s3, s3, s34")
    k("v_add_u32 v5, s35, v5")
    k("v_lshl_add_u32 v10, v10, 4, s3")
    k("v_lshl_add_u32 v%d, v5, 10, v10" % OB)
    k("s_mov_b32 s33, 0x%x" % AO)
    k("s_lshl_b32 s50, s2, 3")
    k("s_add_u32 s50, s50, s26")
    side_addr_gud(k, WA)
    k("s_lshl_b32 s3, s11, 3")
    k("s_add_u32 s3, s3, s26")
    k("s_lshl_b32 s58, s3, 13")
    k("v_lshlrev_b32 v%d, 7, v0" % PFA)
    k("s_cmp_ge_u32 s3, 100")
    k("s_cselect_b32 s40, s4, s8")
    k("s_cselect_b32 s41, s5, s9")
    k("s_and_b32 s41, s41, 0xffff")
    k("s_mov_b32 s43, 0x00020000")
    k("s_and_b32 s34, s10, 1")
    k("s_lshl_b32 s34, s34, 2")
    k("s_lshr_b32 s35, s10, 1")
    k("s_add_u32 s34, s34, s35")
    k("s_mul_i32 s34, s34, 327680")
    k("s_add_u32 s35, s34, 327680")
    k("s_sub_u32 s34, s34, %d" % (100*8192))
    k("s_cmp_ge_u32 s3, 100")
    k("s_cselect_b32 s34, s34, 0x%x" % WO)
    k("s_cselect_b32 s42, s35, 0x%x" % (WO + WOB))
    k("s_add_u32 s58, s58, s34")
    k("v_add_u32 v%d, s58, v%d" % (PFA, PFA))
    k("v_mov_b32 v%d, v2" % AK)
    k("v_lshlrev_b32 v%d, 3, v0" % AK2)
    k("v_mul_u32_u24 v%d, 320, v9" % AV)
    k("v_lshl_add_u32 v%d, v8, 4, v%d" % (AV, AV))
    for r in range(16):
        k("v_mov_b32 v%d, 0" % (O + r))
    for r in range(8):
        k("v_mov_b32 v%d, 0" % (P + r))
    k.ts(3)
    vm.wait(("d", 2))
    k("s_barrier")
    k.ts(4)
    k("ds_read_b128 %s, v%d" % (vr(K1[0], 4), AK))
    k("ds_read_b64 %s, v%d offset:2048" % (vr(K2[0], 2), AK2))
    k("v_cndmask_b32 v%d, v%d, 0, s[22:23]" % (Q2[1], Q2[0]))
    k("v_cndmask_b32 v%d, v%d, 0, s[22:23]" % (Q2[1] + 1, Q2[0] + 1))
    k("v_cndmask_b32 v%d, 0, v%d, s[22:23]" % (Q2[0], Q2[0]))
    k("v_cndmask_b32 v%d, 0, v%d, s[22:23]" % (Q2[0] + 1, Q2[0] + 1))
    k("s_waitcnt lgkmcnt(0)")
    k("v_mfma_f32_32x32x16_bf16 %s, %s, %s, 0" % (vr(S[0], 16), vr(K1[0], 4), vr(Q1, 4)))
    k("v_mfma_f32_32x32x8bf16_1k %s, %s, %s, %s" % (vr(S[0], 16), vr(K2[0], 2), vr(Q2[0], 2), vr(S[0], 16)))
    k("ds_read_b128 %s, v%d offset:1024" % (vr(K1[1], 4), AK))
    k("ds_read_b64 %s, v%d offset:%d" % (vr(K2[1], 2), AK2, 5120 + 2048))
    k("ds_read_b128 %s, v%d offset:5120" % (vr(K1[0], 4), AK))
    k("s_nop 13")
    k("v_max3_f32 v6, v%d, v%d, v%d" % (S[0], S[0] + 1, S[0] + 2))
    k("v_max3_f32 v7, v%d, v%d, v%d" % (S[0] + 3, S[0] + 4, S[0] + 5))
    for i in range(2):
        k("v_max3_f32 v6, v6, v%d, v%d" % (S[0] + 6 + 4*i, S[0] + 7 + 4*i))
        k("v_max3_f32 v7, v7, v%d, v%d" % (S[0] + 8 + 4*i, S[0] + 9 + 4*i))
    k("v_max3_f32 v6, v6, v%d, v%d" % (S[0] + 14, S[0] + 15))
    k("v_max_f32 v6, v6, v7")
    def head():
        k("v_mov_b32 v7, v6")
        k("s_mov_b32 s32, 0")
        k("s_nop 0")
        k("v_permlane32_swap_b32 v6, v7")
        k("s_nop 1")
        k("v_max_f32 v6, v6, v7")
        for r in range(16):
            k("v_sub_f32 v%d, v%d, v6" % (S[0] + r, S[0] + r))
        for r in range(16):
            k("v_sub_f32 v%d, 0, v6" % (CI + r))
        k("s_waitcnt lgkmcnt(0)")
    def koff(t): return (t >> 1)*5120 + (t & 1)*1024
    def voff(t, j): return (t >> 1)*5120 + 2560 + ((t & 1)*2 + j)*640
    def tile(t, bump=0, pre=None, mid=None):
        sc = S[t & 1]; sn = S[(t + 1) & 1]
        def ex(a, b):
            for i in range(a, b): k("v_exp_f32 v%d, v%d" % (sc + i, sc + i))
        def cv(a, b):
            for i in range(a, b): k("v_cvt_pk_bf16_f32 v%d, v%d, v%d" % (P + i, sc + 2*i, sc + 2*i + 1))
        if pre: pre()
        if prio: k("s_setprio 1")
        k("v_mfma_f32_32x32x16_bf16 %s, %s, %s, %s" % (vr(sn, 16), vr(K1[(t + 1) & 1], 4), vr(Q1, 4), vr(CI, 16)))
        k("ds_read_b128 %s, v%d offset:%d" % (vr(K1[(t + 1) & 1], 4), AK, koff(t + 3)))
        if t & 1:
            p1 = (t + 1)//2 + 1
            k("ds_read_b64 %s, v%d offset:%d" % (vr(K2[p1 & 1], 2), AK2, p1*5120 + 2048))
        ex(0, 4)
        k("s_waitcnt lgkmcnt(%d)" % (2 if t & 1 else 1))
        k("v_mfma_f32_32x32x16_bf16 %s, %s, %s, %s" % (vr(O, 16), vr(V[(t - 1) & 1] + 4, 4), vr(P + 4, 4), vr(O, 16)))
        k("s_mov_b64 exec, s[20:21]")
        k("ds_read_b128 %s, v%d offset:%d" % (vr(V[t & 1], 4), AV, voff(t, 0)))
        k("ds_read_b128 %s, v%d offset:%d" % (vr(V[t & 1] + 4, 4), AV, voff(t, 1)))
        k("s_mov_b64 exec, -1")
        ex(4, 8)
        k("v_mfma_f32_32x32x8bf16_1k %s, %s, %s, %s" % (vr(sn, 16), vr(K2[((t + 1) >> 1) & 1], 2), vr(Q2[(t + 1) & 1], 2), vr(sn, 16)))
        ex(8, 12)
        k("v_mfma_f32_32x32x16_bf16 %s, %s, %s, %s" % (vr(O, 16), vr(V[(t - 1) & 1], 4), vr(P, 4), vr(O, 16)))
        ex(12, 16)
        if prio: k("s_setprio 0")
        if bump:
            k("v_add_u32 v%d, %d, v%d" % (AK, bump, AK))
            k("v_add_u32 v%d, %d, v%d" % (AK2, bump, AK2))
            k("v_add_u32 v%d, %d, v%d" % (AV, bump, AV))
        if mid: mid()
        cv(0, 8)
    head()
    k.ts(5)
    n0 = len(k.L)
    mids = {}; pres = {}
    def add(d, T, f): d.setdefault(T, []).append(f)
    d0 = opt.get("s2_d0", 0); dstep = opt.get("s2_dstep", 1)
    for j in range(npro, 20): add(mids, d0 + (j - npro)*dstep, lambda j=j: dma(j))
    sl0 = opt.get("s2_sl0", 16); sls = opt.get("s2_sls", 2)
    ss0 = opt.get("s2_ss0", 36); sss = opt.get("s2_sss", 2)
    if not opt.get("noside"):
        for j in range(8): add(mids, sl0 + j*sls, lambda j=j: side_load1(k, vm, WL, wldpol, j))
        for i in range(4): add(mids, ss0 + i*sss, lambda i=i: side_store1(k, vm, WL, WP, WA, wstpol, i))
    add(mids, 4*pfit, lambda: vm.op("pf", "buffer_load_dword v%d, v%d, s[40:43], 0 offen" % (PFD, PFA)))
    def sync(j, tsi):
        def f():
            k.ts(tsi)
            vm.wait(("d", j))
            k("s_barrier")
            k.ts(tsi + 1)
        return f
    syncs = {4: 4, 12: 9, 28: 19}
    if opt.get("s2_sync4"): syncs = {4: 4, 12: 9, 28: 14, 44: 19}
    for n, (T, j) in enumerate(sorted(syncs.items())): add(pres, T, sync(j, 6 + 2*n if n < 3 else 2))
    add(pres, 48, lambda: k.ts(4))
    def run(l):
        return (lambda: [f() for f in l]) if l else None
    for T in range(64):
        tile(T & 15, 40960 if (T & 15) == 15 and T < 63 else 0, run(pres.get(T)), run(mids.get(T)))
    dg = opt.get("s2_diag", "")
    if dg:
        def keep(ln):
            if "A" in dg and ln.startswith("v_mfma_f32_32x32x16_bf16 v[%d:" % O): return False
            if "B" in dg and ln.startswith("v_mfma_f32_32x32x8"): return False
            if "C" in dg and ln.startswith("v_exp"): return False
            if "D" in dg and ln.startswith("ds_read"): return False
            if "E" in dg and ln.startswith("v_cvt"): return False
            if "F" in dg and ln.startswith("v_mfma"): return False
            return True
        k.L[n0:] = [ln for ln in k.L[n0:] if keep(ln)]
        k("s_mov_b32 s31, 1")
    k.put(FIN)
    k.ts(12)
    k("s_waitcnt lgkmcnt(0)")
    k("v_mfma_f32_32x32x16_bf16 %s, %s, %s, %s" % (vr(O, 16), vr(V[1], 4), vr(P, 4), vr(O, 16)))
    k("v_mfma_f32_32x32x16_bf16 %s, %s, %s, %s" % (vr(O, 16), vr(V[1] + 4, 4), vr(P + 4, 4), vr(O, 16)))
    k("v_mov_b32 v5, 0x%x" % f2u(2.0**60))
    k("s_waitcnt vmcnt(0)")
    k("s_nop 14")
    k("v_mov_b32 v6, v%d" % (O + 8))
    k("v_mov_b32 v7, v%d" % (O + 8))
    k("s_nop 1")
    k("v_permlane32_swap_b32 v6, v7")
    k("s_nop 1")
    k("v_cmp_nlt_f32 vcc, v7, v5")
    k("v_rcp_f32 v7, v7")
    k("s_cmp_eq_u32 s31, 0")
    k("s_cselect_b64 s[34:35], vcc, 0")
    k("s_cmp_lg_u64 s[34:35], 0")
    k("s_cbranch_scc1 %s" % FB)
    for r in range(12):
        k("v_mul_f32 v%d, v%d, v7" % (O + r, O + r))
    for r in range(6):
        k("v_cvt_pk_bf16_f32 v%d, v%d, v%d" % (O + r, O + 2*r, O + 2*r + 1))
    k("buffer_store_dwordx4 %s, v%d, s[16:19], s33 offen %s" % (vr(O, 4), OA, stpol))
    k("s_mov_b64 exec, s[22:23]")
    k("buffer_store_dwordx2 %s, v%d, s[16:19], s33 offen %s" % (vr(O + 4, 2), OB, stpol))
    k.tsdump()
    k.put(END)
    k("s_endpgm")
    k.put(FB)
    FL = k.label("fl")
    k("s_mov_b32 s31, 1")
    k("s_mov_b32 s32, 0")
    k("v_mov_b32 v%d, v2" % AK)
    k("v_lshlrev_b32 v%d, 3, v0" % AK2)
    k("v_mov_b32 v6, 0xff800000")
    k.put(FL)
    k("ds_read_b128 %s, v%d" % (vr(K1[0], 4), AK))
    k("ds_read_b128 %s, v%d offset:1024" % (vr(K1[1], 4), AK))
    k("ds_read_b64 %s, v%d offset:2048" % (vr(K2[0], 2), AK2))
    k("s_waitcnt lgkmcnt(0)")
    for t in range(2):
        k("v_mfma_f32_32x32x16_bf16 %s, %s, %s, 0" % (vr(S[t], 16), vr(K1[t], 4), vr(Q1, 4)))
        k("v_mfma_f32_32x32x8bf16_1k %s, %s, %s, %s" % (vr(S[t], 16), vr(K2[0], 2), vr(Q2[t], 2), vr(S[t], 16)))
    k("v_add_u32 v%d, 5120, v%d" % (AK, AK))
    k("v_add_u32 v%d, 5120, v%d" % (AK2, AK2))
    k("s_nop 15")
    for i in range(16):
        k("v_max3_f32 v6, v6, v%d, v%d" % (S[0] + 2*i, S[0] + 2*i + 1))
    k("s_add_u32 s32, s32, 1")
    k("s_cmp_lt_u32 s32, 32")
    k("s_cbranch_scc1 %s" % FL)
    k("v_mov_b32 v%d, v2" % AK)
    k("v_lshlrev_b32 v%d, 3, v0" % AK2)
    k("v_mul_u32_u24 v%d, 320, v9" % AV)
    k("v_lshl_add_u32 v%d, v8, 4, v%d" % (AV, AV))
    k("ds_read_b128 %s, v%d" % (vr(K1[0], 4), AK))
    k("ds_read_b64 %s, v%d offset:2048" % (vr(K2[0], 2), AK2))
    for r in range(16):
        k("v_mov_b32 v%d, 0" % (O + r))
    for r in range(8):
        k("v_mov_b32 v%d, 0" % (P + r))
    k("s_waitcnt lgkmcnt(0)")
    k("v_mfma_f32_32x32x16_bf16 %s, %s, %s, 0" % (vr(S[0], 16), vr(K1[0], 4), vr(Q1, 4)))
    k("v_mfma_f32_32x32x8bf16_1k %s, %s, %s, %s" % (vr(S[0], 16), vr(K2[0], 2), vr(Q2[0], 2), vr(S[0], 16)))
    k("ds_read_b128 %s, v%d offset:1024" % (vr(K1[1], 4), AK))
    k("ds_read_b64 %s, v%d offset:%d" % (vr(K2[1], 2), AK2, 5120 + 2048))
    k("ds_read_b128 %s, v%d offset:5120" % (vr(K1[0], 4), AK))
    k("s_nop 13")
    head()
    k.put(LOOP)
    for t in range(4):
        tile(t, 10240 if t == 3 else 0)
    k("s_add_u32 s32, s32, 1")
    k("s_cmp_lt_u32 s32, 16")
    k("s_cbranch_scc1 %s" % LOOP)
    k("s_branch %s" % FIN)
    return k
```

```python
from asmlib import *
from lay import *

def _dest_5(k, WA):
    k("s_lshl_b32 s3, s52, 2")
    k("v_lshrrev_b32 v14, 2, v11")
    k("v_add_u32 v14, s3, v14")
    k("v_mul_u32_u24 v15, 205, v14")
    k("v_lshrrev_b32 v15, 10, v15")
    k("v_mul_u32_u24 v%d, 5, v15" % WA)
    k("v_sub_u32 v14, v14, v%d" % WA)
    k("v_mul_u32_u24 v15, s54, v15")
    k("s_mul_i32 s3, s51, 5")
    k("v_add3_u32 v14, v14, v15, s3")

def _finish(k, WA, SA=12):
    k("v_and_b32 v15, 3, v11")
    k("v_lshlrev_b32 v15, 6, v15")
    k("v_lshl_add_u32 v15, v10, 8, v15")
    k("v_lshl_add_u32 v14, v14, 10, v15")
    k("v_add_u32 v%d, s55, v14" % WA)
    k("s_lshl_b32 s3, s52, 7")
    k("v_lshl_add_u32 v11, v11, 3, s3")
    k("v_mad_u32_u24 v%d, v12, s53, v11" % SA)
    k("v_mad_u32_u24 v%d, v13, s53, v11" % (SA + 1))

def side_addr_wo(k, WA, SA):
    k("v_lshrrev_b32 v10, 4, v0")
    k("v_and_b32 v11, 15, v0")
    k("s_mul_i32 s51, s50, 6554")
    k("s_lshr_b32 s51, s51, 16")
    k("s_mul_i32 s52, s51, 10")
    k("s_sub_u32 s52, s50, s52")
    k("s_movk_i32 s53, 1280")
    k("s_lshl_b32 s3, s51, 2")
    k("v_add_u32 v12, s3, v10")
    k("v_mul_u32_u24 v13, 205, v12")
    k("v_lshrrev_b32 v13, 10, v13")
    k("v_mul_u32_u24 v14, 5, v13")
    k("v_sub_u32 v12, v12, v14")
    k("v_mul_u32_u24 v13, 40, v13")
    k("v_cmp_eq_u32 vcc, 4, v12")
    k("v_lshrrev_b32 v14, 1, v12")
    k("v_mul_u32_u24 v14, 20, v14")
    k("v_and_b32 v12, 1, v12")
    k("v_lshl_add_u32 v14, v12, 2, v14")
    k("v_cndmask_b32 v14, v14, 16, vcc")
    k("v_add_u32 v12, v13, v14")
    k("v_mov_b32 v13, 8")
    k("v_cndmask_b32 v13, v13, 20, vcc")
    k("v_add_u32 v13, v12, v13")
    k("s_movk_i32 s54, 100")
    k("s_mov_b32 s55, 0x%x" % WO)
    k("s_cmp_ge_u32 s50, 200")
    k("s_cselect_b32 s55, 0x40000000, s55")
    _dest_5(k, WA)
    _finish(k, WA, SA)

def side_addr_gud(k, WA):
    LD = k.label("d"); LU = k.label("u"); LGU = k.label("gu"); LF = k.label("f")
    k("v_lshrrev_b32 v10, 4, v0")
    k("v_and_b32 v11, 15, v0")
    k("s_cmp_lt_u32 s50, 1080")
    k("s_cbranch_scc1 %s" % LD)
    k.srd(36, 48, WGB)
    k("s_sub_u32 s50, s50, 1080")
    k("s_mul_i32 s51, s50, 6554")
    k("s_lshr_b32 s51, s51, 16")
    k("s_mul_i32 s52, s51, 10")
    k("s_sub_u32 s52, s50, s52")
    k("s_movk_i32 s53, 1280")
    k("s_lshl_b32 s3, s51, 5")
    k("v_lshl_add_u32 v12, v10, 2, s3")
    k("v_add_u32 v13, 16, v12")
    k("s_movk_i32 s54, 270")
    k("s_mov_b32 s55, 0x%x" % WD)
    k("s_cmp_ge_u32 s50, 540")
    k("s_cselect_b32 s55, 0x40000000, s55")
    _dest_5(k, WA)
    k("s_branch %s" % LF)
    k.put(LD)
    k("s_cmp_ge_u32 s50, 540")
    k("s_cbranch_scc1 %s" % LU)
    k.srd(36, 44, WGB)
    k("s_mov_b32 s56, 0")
    k("s_branch %s" % LGU)
    k.put(LU)
    k.srd(36, 46, WGB)
    k("s_sub_u32 s50, s50, 540")
    k("s_mov_b32 s56, 7")
    k.put(LGU)
    k("s_mul_i32 s51, s50, 2428")
    k("s_lshr_b32 s51, s51, 16")
    k("s_mul_i32 s52, s51, 27")
    k("s_sub_u32 s52, s50, s52")
    k("s_movk_i32 s53, 3456")
    k("s_lshl_b32 s3, s51, 5")
    k("v_lshl_add_u32 v12, v10, 2, s3")
    k("v_add_u32 v13, 16, v12")
    k("s_mov_b32 s55, 0x%x" % GU)
    k("s_lshl_b32 s3, s52, 2")
    k("v_lshrrev_b32 v14, 2, v11")
    k("v_add_u32 v14, s3, v14")
    k("v_mul_u32_u24 v15, 2428, v14")
    k("v_lshrrev_b32 v15, 16, v15")
    k("v_mul_u32_u24 v%d, 27, v15" % WA)
    k("v_sub_u32 v14, v14, v%d" % WA)
    k("v_mul_u32_u24 v%d, 37, v14" % WA)
    k("v_lshrrev_b32 v%d, 8, v%d" % (WA, WA))
    k("v_lshl_add_u32 v15, v15, 2, v%d" % WA)
    k("v_mul_u32_u24 v%d, 7, v%d" % (WA, WA))
    k("v_sub_u32 v14, v14, v%d" % WA)
    k("v_mul_u32_u24 v15, 280, v15")
    k("s_mul_i32 s3, s51, 14")
    k("s_add_u32 s3, s3, s56")
    k("v_add3_u32 v14, v14, v15, s3")
    k.put(LF)
    _finish(k, WA)

def side_loads(k, WL, pol, SA=12, srd=36):
    k("s_mov_b32 s57, 0")
    for j in range(4):
        k("buffer_load_dwordx2 %s, v%d, s[%d:%d], s57 offen %s" % (vr(WL + 2*j, 2), SA, srd, srd + 3, pol))
        k("buffer_load_dwordx2 %s, v%d, s[%d:%d], s57 offen %s" % (vr(WL + 8 + 2*j, 2), SA + 1, srd, srd + 3, pol))
        if j < 3: k("s_add_u32 s57, s57, s53")

def side_stores(k, WL, WP, WA, pol, srd=16):
    k("s_mov_b32 s50, 0x05040100")
    k("s_mov_b32 s51, 0x07060302")
    for i in range(4):
        for m in range(4):
            lo = WL + 4*m + (i >> 1); hi = lo + 2
            k("v_perm_b32 v%d, v%d, v%d, s%d" % (WP + 4*i + m, hi, lo, 50 + (i & 1)))
        k("buffer_store_dwordx4 %s, v%d, s[%d:%d], 0 offen offset:%d %s" % (vr(WP + 4*i, 4), WA, srd, srd + 3, 16*i, pol))

def side_load1(k, vm, WL, pol, n, SA=12, srd=36):
    j = n >> 1; h = n & 1
    pre = []
    if n == 0: pre = ["s_mov_b32 s57, 0"]
    elif h == 0: pre = ["s_add_u32 s57, s57, s53"]
    vm.op("sl", *(pre + ["buffer_load_dwordx2 %s, v%d, s[%d:%d], s57 offen %s" % (vr(WL + 8*h + 2*j, 2), SA + h, srd, srd + 3, pol)]))

def side_store1(k, vm, WL, WP, WA, pol, i, srd=16):
    if i == 0:
        k("s_mov_b32 s50, 0x05040100")
        k("s_mov_b32 s51, 0x07060302")
        vm.wait("sl")
    for m in range(4):
        lo = WL + 4*m + (i >> 1); hi = lo + 2
        k("v_perm_b32 v%d, v%d, v%d, s%d" % (WP + 4*i + m, hi, lo, 50 + (i & 1)))
    vm.op("ss", "buffer_store_dwordx4 %s, v%d, s[%d:%d], 0 offen offset:%d %s" % (vr(WP + 4*i, 4), WA, srd, srd + 3, 16*i, pol))
```

```python
from asmlib import *
from lay import *
from gemm import VM, qreduce

class LG:
    def __init__(self, k):
        self.k = k; self.tags = []; self.done = -1
    def op(self, tag, line):
        self.k(line); self.tags.append(tag)
    def wait(self, *tags):
        idx = max(max(i for i, t in enumerate(self.tags) if t == tag) for tag in tags)
        if idx <= self.done: return
        n = len(self.tags) - 1 - idx
        self.k("s_waitcnt lgkmcnt(%d)" % min(n, 15))
        self.done = idx if n <= 15 else len(self.tags) - 16

def emit_ops(k, vm, tag, ops, pre=(), base=None):
    m0 = None
    pre = list(pre)
    for (a, v, srd, so, io) in ops:
        L = []
        if m0 != a - io:
            m0 = a - io
            L.append("s_mov_b32 m0, %d" % m0 if base is None else "s_add_u32 m0, s%d, %d" % (base, m0))
            first = True
            L += pre if pre else ["s_nop 0"]
            pre = []
        L.append("buffer_load_dwordx4 v%d, s[%d:%d], s%d offen offset:%d lds" % (v, srd, srd + 3, so, io))
        vm.op(tag, *L)

def loader(k, NG, NSLOT, D0, DM, batch, after, tails, tsj=()):
    vm = VM(k)
    st = {"n": 0}
    def upto(g):
        while st["n"] <= min(g, NG - 1):
            batch(vm, st["n"])
            if st["n"] in after: after[st["n"]](vm)
            st["n"] += 1
    def bar(vm, j):
        vm.wait(("b", j))
        k("s_barrier")
        if j in tsj: k.ts(3 + list(tsj).index(j))
    upto(D0 - 1)
    k.ts(2)
    j = 0
    while st["n"] < NG:
        bar(vm, j)
        upto(min(j + D0 + (j + 1)//2, j + DM, j - 2 + NSLOT))
        j += 1
    LB = k.label("tb")
    k("s_cmp_eq_u32 s26, 5")
    k("s_cbranch_scc1 %s" % LB)
    for w, (extra, post) in enumerate(tails):
        if w: k.put(LB)
        v2 = VM(k); v2.tags = list(vm.tags)
        if extra: extra(v2)
        for jj in range(j, NG): bar(v2, jj)
        if post: post(v2)
        k("s_waitcnt vmcnt(0)")
        k.tsdump()
        k("s_endpgm")

def loader_setup(k, NA, KSB, tokoff, short=None):
    LB = k.label("sb"); LJ = k.label("sj")
    k("s_cmp_eq_u32 s26, 5")
    k("s_cbranch_scc1 %s" % LB)
    RA = []
    for i in range(NA):
        k("v_add_u32 v%d, %d, v1" % (8 + i, (i - i % 4)*1024))
        if short and short[1] == i: k("v_subrev_u32 v%d, s%d, v%d" % (8 + i, short[0], 8 + i))
    k("s_mov_b32 s30, s28")
    k("s_mov_b32 s27, %d" % KSB[0])
    k("s_mov_b32 s29, 0")
    k("s_branch %s" % LJ)
    k.put(LB)
    for i in range(NA):
        o = tokoff(i) if i < 8 else (NA + i - 8)*1024
        k("v_add_u32 v%d, %d, v1" % (8 + i, o - (i % 4)*1024))
        if short and i >= 8 and short[2] == NA + i - 8: k("v_subrev_u32 v%d, s%d, v%d" % (8 + i, short[0], 8 + i))
    k("s_mov_b32 s27, %d" % KSB[1])
    k("s_mov_b32 s29, %d" % (NA*1024))
    k.put(LJ)
    k("s_waitcnt lgkmcnt(0)")
    k.ts(11)
    k.srd(12, 8, WS_END)

def std_batch(k, NA, NSLOT, SL, WS):
    def b(vm, g):
        a = (g % NSLOT)*SL
        emit_ops(k, vm, ("b", g), [(a + i*1024, 8 + i, 12, 30 if i < 8 else 28, (i % 4)*1024) for i in range(NA)],
                 ["s_add_u32 s30, s30, s27", "s_add_u32 s28, s28, %d" % WS] if g else [], 29)
    return b

def stat_load(k, tt, dst, n):
    k("s_lshl_b32 s37, s%d, 10" % tt)
    k("s_add_u32 s37, s37, 0x%x" % ST)
    k("v_lshlrev_b32 v20, 6, v2")
    k("v_lshl_add_u32 v20, v3, 4, v20")
    return ["buffer_load_dwordx4 %s, v20, s[12:15], s37 offen offset:%d" % (vr(dst + 4*j, 4), 1024*j) for j in range(n)]

def consumer(k, F, T, GK, acc, wf, NB, tok, waddr, taddr, LA, LOOK, hooks=None, tsj=()):
    hooks = hooks or {}
    lg = LG(k)
    R = []; seen = set()
    for f, (ks, n) in enumerate(F):
        if ks not in seen:
            seen.add(ks)
            for j in range(T): R.append(("t", ks, j))
        R.append(("w", f))
    pos = {r: i for i, r in enumerate(R)}
    st = {"nr": 0, "g": -1}
    def rd_upto(i):
        while st["nr"] <= min(i, len(R) - 1):
            r = R[st["nr"]]
            ks = r[1] if r[0] == "t" else F[r[1]][0]
            while ks//GK > st["g"]:
                st["g"] += 1
                k("s_barrier")
                if st["g"] in tsj: k.ts(3 + list(tsj).index(st["g"]))
                if ("sync", st["g"]) in hooks: hooks[("sync", st["g"])](lg)
            if r[0] == "t":
                a = taddr(ks, r[2]); v = LA[1]; d = tok(ks, r[2])
            else:
                a = waddr(*F[r[1]]); v = LA[0]; d = wf(r[1] % NB)
            lg.op(r, "ds_read_b128 %s, v%d offset:%d" % (d, v + (a >> 16), a & 0xffff))
            st["nr"] += 1
    first = set()
    for f, (ks, n) in enumerate(F):
        rd_upto(pos[("w", f)] + LOOK)
        lg.wait(("w", f))
        for j in range(T):
            k("v_mfma_f32_16x16x32_bf16 %s, %s, %s, %s" % (acc(n, j), wf(f % NB), tok(ks, j), acc(n, j) if n in first else "0"))
            if ("m", f, j) in hooks: hooks[("m", f, j)](lg)
        first.add(n)
        if ("f", f) in hooks: hooks[("f", f)](lg)
    k.ts(12)
    return lg

def head(k, END, ptrs):
    k("s_cmp_ge_u32 s2, 256")
    k("s_cbranch_scc1 %s" % END)
    for (s, o) in ptrs: k("s_load_dwordx2 s[%d:%d], s[0:1], %d" % (s, s + 1, o))
    k("""
    v_lshrrev_b32 v1, 6, v0
    v_and_b32 v0, 63, v0
    v_readfirstlane_b32 s26, v1
    v_lshlrev_b32 v1, 4, v0
    s_and_b32 s10, s2, 7
    s_lshr_b32 s11, s2, 3
    """)

def lane_setup(k, toff):
    k("""
    v_and_b32 v2, 15, v0
    v_lshrrev_b32 v3, 4, v0
    v_mov_b32 v4, v1
    v_add_u32 v5, 0x10000, v1
    v_add_u32 v6, 0x20000, v1
    """)
    k("s_mul_i32 s3, s26, %d" % toff)
    for i in range(3): k("v_add_u32 v%d, s3, v%d" % (7 + i, 4 + i))

def tile_offsets(k, n):
    for i in range(n):
        k("s_add_u32 s3, s41, %d" % i)
        k("s_lshr_b32 s42, s3, 1")
        k("s_lshl_b32 s42, s42, 10")
        k("s_and_b32 s3, s3, 1")
        k("s_lshl_b32 s3, s3, 3")
        k("s_add_u32 s42, s42, s3")
        k("s_add_u32 s%d, s42, s40" % (44 + i))

def qreduce2(k, a, b, t, u):
    for op in ("v_permlane16_swap_b32", "v_permlane32_swap_b32"):
        k("v_mov_b32 v%d, v%d" % (t, a))
        k("v_mov_b32 v%d, v%d" % (u, b))
        k("s_nop 0")
        k("%s v%d, v%d" % (op, a, t))
        k("%s v%d, v%d" % (op, b, u))
        k("s_nop 0")
        k("v_add_f32 v%d, v%d, v%d" % (a, a, t))
        k("v_add_f32 v%d, v%d, v%d" % (b, b, u))

def n5_addr(NSLOT, SL):
    def waddr(ks, n):
        i = (ks & 1)*5 + n
        return ((ks//2) % NSLOT)*SL + (i*1024 if i < 9 else 17408)
    def taddr(ks, j):
        return ((ks//2) % NSLOT)*SL + 9216 + (ks & 1)*1024
    return waddr, taddr

def gen_s3(opt=None):
    opt = opt or {}
    stpol = opt.get("s3_stpol", "")
    NSLOT = 8; SL = 18432; XL = NSLOT*SL
    k = Kern("s3_wo_kernel", 256, 384, XL + 10240, nv=128)
    k.tson = opt.get("ts", 0); k.kid = 2
    k.ts(0, True); k.ts(1)
    END = k.label("end"); LC = k.label("c")
    ACC = 32; WF = 52; NB = 8; TOK = 84; ONES = 28
    head(k, END, [(8, 72), (4, 0)])
    k("""
    s_and_b32 s3, s10, 1
    s_lshl_b32 s24, s3, 4
    s_lshr_b32 s3, s10, 1
    s_lshl_b32 s3, s3, 2
    s_add_u32 s24, s24, s3
    s_and_b32 s3, s11, 3
    s_add_u32 s24, s24, s3
    s_lshl_b32 s24, s24, 2
    s_lshr_b32 s25, s11, 2
    """)
    k("s_cmp_lt_u32 s26, 4")
    k("s_cbranch_scc1 %s" % LC)
    k("s_mul_i32 s28, s25, %d" % (100*1024))
    k("s_add_u32 s28, s28, 0x%x" % WO)
    k("s_mul_i32 s30, s24, %d" % (20*1024))
    k("s_add_u32 s30, s30, 0x%x" % AO)
    loader_setup(k, 9, (10240, 2048), lambda i: (i >> 1)*20480 + (i & 1)*1024)
    XV = 17; CF = 32; CA = 24
    def setup2(vm):
        k.srd(16, 4, XB)
        k("s_lshl_b32 s3, s24, 4")
        k("s_mul_i32 s31, s3, 1280")
        k("s_mul_i32 s3, s25, 160")
        k("s_add_u32 s31, s31, s3")
        k("s_sub_u32 s39, s26, 4")
        k("s_mul_i32 s3, s39, 320")
        k("s_mul_i32 s38, s39, 5120")
        k("v_add_u32 v43, s3, v0")
        for n in range(5):
            k("v_add_u32 v40, %d, v43" % (64*n))
            k("v_mul_u32_u24 v41, 6554, v40")
            k("v_lshrrev_b32 v41, 16, v41")
            k("v_mul_u32_u24 v42, 10, v41")
            k("v_sub_u32 v40, v40, v42")
            k("v_mul_u32_u24 v41, 1280, v41")
            k("v_lshl_add_u32 v%d, v40, 4, v41" % (XV + n))
        k("""
        s_xor_b32 s3, s10, s39
        s_and_b32 s3, s3, 1
        s_lshl_b32 s3, s3, 5
        s_add_u32 s32, s3, s11
        s_min_u32 s33, s32, 55
        s_mul_i32 s34, s33, 4682
        s_lshr_b32 s34, s34, 16
        s_mul_i32 s3, s34, 14
        s_sub_u32 s33, s33, s3
        s_lshr_b32 s3, s10, 1
        s_lshl_b32 s3, s3, 2
        s_add_u32 s35, s3, s34
        s_mul_i32 s36, s35, 14
        s_add_u32 s36, s36, s33
        s_lshl_b32 s36, s36, 6
        s_cmp_eq_u32 s33, 6
        s_cselect_b32 s3, 1, 0
        s_cmp_eq_u32 s33, 13
        s_cselect_b32 s3, 1, s3
        s_cmp_eq_u32 s34, 3
        s_cselect_b32 s3, s3, 0
        s_sub_u32 s33, s33, s3
        s_mul_i32 s37, s35, 280
        s_add_u32 s37, s37, s33
        s_lshl_b32 s37, s37, 10
        """)
        k("s_add_u32 s37, s37, 0x%x" % GU)
        k("s_add_u32 s36, s36, 0x%x" % CS)
        for r in range(4): k("v_mov_b32 v%d, 0x3f803f80" % (ONES + r))
    def xload(vm):
        emit_ops(k, vm, "x", [(XL + n*1024, XV + n, 16, 31, 0) for n in range(5)], base=38)
    def cload(vm):
        for s in range(20):
            vm.op(("c", s), "buffer_load_dwordx4 %s, v1, s[12:15], s37 offen" % vr(CF + 4*s, 4))
            if s < 19: k("s_add_u32 s37, s37, %d" % (14*1024))
    def ctail(vm):
        for s in range(20):
            if s % 5 == 0: vm.wait(("c", s + 4))
            k("v_mfma_f32_16x16x32_bf16 %s, %s, %s, %s" % (vr(CA, 4), vr(CF + 4*s, 4), vr(ONES, 4), vr(CA, 4) if s else "0"))
        E2 = k.label("e2")
        k("s_cmp_lt_u32 s32, 56")
        k("s_cbranch_scc0 %s" % E2)
        k("v_and_b32 v2, 0x300, v1")
        k("v_lshrrev_b32 v2, 4, v2")
        k("s_mov_b32 s38, 0x00010001")
        k("s_mov_b32 s39, 0x00010001")
        k("s_mov_b64 exec, s[38:39]")
        k("s_nop 7")
        k("buffer_store_dwordx4 %s, v2, s[12:15], s36 offen %s" % (vr(CA, 4), stpol))
        k.put(E2)
    def gupf(vm):
        if not opt.get("s3_pf", 1): return
        for n in range(3):
            k("v_add_u32 v40, %d, v0" % (64*n))
            if n == 2: k("v_min_u32 v40, 159, v40")
            k("v_lshrrev_b32 v41, 3, v40")
            k("v_and_b32 v40, 7, v40")
            k("v_mul_u32_u24 v41, 14336, v41")
            k("v_lshl_add_u32 v40, v40, 7, v41")
            vm.op("pf", "buffer_load_dword v%d, v40, s[12:15], s37 offen" % (44 + n))
    d0 = opt.get("s3_d0", 3)
    tsj = [0, 1, 2, 4, 6, 8, 9]
    loader(k, 10, NSLOT, d0, opt.get("s3_dm", 4), std_batch(k, 9, NSLOT, SL, 10240), {d0 - 1: setup2, opt.get("s3_xa", 7): xload},
           [(cload, ctail), (gupf, None)], tsj)
    k.put(LC)
    lane_setup(k, 2048)
    k("s_add_u32 s24, s24, s26")
    k("v_mov_b32 v%d, 0x3f803f80" % ONES)
    k("s_mul_i32 s3, s26, 2560")
    k("s_add_u32 s3, s3, %d" % XL)
    k("v_mul_u32_u24 v20, 160, v2")
    k("v_lshl_add_u32 v20, v3, 3, v20")
    k("v_add_u32 v20, s3, v20")
    k("s_mul_i32 s40, s24, 20480")
    k("s_add_u32 s40, s40, 0x%x" % HF)
    k("s_mul_i32 s41, s25, 5")
    tile_offsets(k, 5)
    k("s_lshl_b32 s3, s24, 10")
    k("s_lshl_b32 s43, s25, 3")
    k("s_add_u32 s43, s43, s3")
    k("s_add_u32 s43, s43, 0x%x" % ST)
    k("v_lshlrev_b32 v21, 6, v2")
    k("v_mov_b32 v24, 0")
    k("v_mov_b32 v25, 0")
    k("s_waitcnt lgkmcnt(0)")
    k.srd(12, 8, WS_END)
    k.ts(2)
    XR = 100; XU = 108
    def xread(lg):
        for i in range(5): lg.op("x", "ds_read_b64 %s, v20 offset:%d" % (vr(XR + 2*i, 2), 32*i))
    def xunp(i):
        def f(lg):
            x = XR + 2*i; u = XU + 4*i
            k("v_lshlrev_b32 v%d, 16, v%d" % (u + 2, x + 1))
            k("v_and_b32 v%d, 0xffff0000, v%d" % (u + 3, x + 1))
            k("v_and_b32 v%d, 0xffff0000, v%d" % (u + 1, x))
            k("v_lshlrev_b32 v%d, 16, v%d" % (u, x))
        return f
    F = [(ks, n) for ks in range(20) for n in range(5)]
    hooks = {("sync", 9): xread}
    for i in range(5): hooks[("f", 95 + i)] = xunp(4 - i)
    wa, ta = n5_addr(NSLOT, SL)
    consumer(k, F, 1, 2, lambda n, j: vr(ACC + 4*n, 4), lambda b: vr(WF + 4*b, 4), NB, lambda ks, j: vr(TOK + 4*(ks & 3), 4),
             wa, ta, (4, 7), opt.get("s3_look", 5), hooks, tsj)
    for i in range(5):
        a = ACC + 4*i
        k("v_pk_add_f32 %s, %s, %s" % (vr(a, 2), vr(a, 2), vr(XU + 4*i, 2)))
        k("v_pk_add_f32 %s, %s, %s" % (vr(a + 2, 2), vr(a + 2, 2), vr(XU + 4*i + 2, 2)))
        k("v_cvt_pk_bf16_f32 v%d, v%d, v%d" % (a, a, a + 1))
        k("v_cvt_pk_bf16_f32 v%d, v%d, v%d" % (a + 1, a + 2, a + 3))
        k("buffer_store_dwordx2 %s, v1, s[12:15], s%d offen %s" % (vr(a, 2), 44 + i, stpol))
    for i in range(5):
        a = ACC + 4*i
        for h in range(2):
            k("v_dot2c_f32_bf16 v24, v%d, v%d" % (a + h, ONES))
            k("v_dot2c_f32_bf16 v25, v%d, v%d" % (a + h, a + h))
    k("s_nop 2")
    qreduce2(k, 24, 25, 22, 23)
    k("s_mov_b64 exec, 0xffff")
    k("buffer_store_dwordx2 v[24:25], v21, s[12:15], s43 offen %s" % stpol)
    k.tsdump()
    k.put(END)
    k("s_endpgm")
    return k

def gen_s4(opt=None):
    opt = opt or {}
    stpol = opt.get("s4_stpol", "")
    NSLOT = 7; SL = 22528; CL = NSLOT*SL
    LT = opt.get("s4_lt", 4)
    k = Kern("s4_gu_kernel", 256, 384, CL + 1024, nv=240)
    k.tson = opt.get("ts", 0); k.kid = 3
    k.ts(0, True); k.ts(1)
    END = k.label("end"); LC = k.label("c")
    ACC = 32; WF = 144; NB = 8; TOK = 176; NT = max(LT, 2); CSV = TOK + 8*NT; STV = CSV
    assert CSV + 16 <= 240
    head(k, END, [(8, 72)])
    k("""
    s_and_b32 s3, s10, 1
    s_lshl_b32 s24, s3, 3
    s_and_b32 s3, s11, 7
    s_add_u32 s24, s24, s3
    s_lshl_b32 s24, s24, 3
    s_lshr_b32 s34, s11, 3
    s_lshr_b32 s33, s10, 1
    s_lshl_b32 s25, s33, 2
    s_add_u32 s25, s25, s34
    """)
    k("s_cmp_lt_u32 s26, 4")
    k("s_cbranch_scc1 %s" % LC)
    k("s_mul_i32 s28, s25, %d" % (280*1024))
    k("s_add_u32 s28, s28, 0x%x" % GU)
    k("s_mul_i32 s30, s24, %d" % (20*1024))
    k("s_add_u32 s30, s30, 0x%x" % HF)
    k("s_cmp_eq_u32 s34, 3")
    k("s_cselect_b32 s36, 1024, 0")
    loader_setup(k, 11, (14336, 1024), lambda i: i*20480, (36, 6, 13))
    def csload(vm):
        k("s_mul_i32 s38, s25, 896")
        k("s_add_u32 s38, s38, 0x%x" % CS)
        emit_ops(k, vm, "cs", [(CL, 1, 12, 38, 0)])
    def wdpf(h):
        def f(vm):
            if not opt.get("s4_pf", 1): return
            k("s_bfe_u32 s3, s10, 0x10001")
            k("s_lshl_b32 s3, s3, 5")
            k("s_add_u32 s3, s3, s11")
            k("s_mul_i32 s38, s3, 34560")
            k("s_add_u32 s38, s38, 0x%x" % (WD + h*16384))
            k("v_lshlrev_b32 v40, 7, v0")
            k("v_add_u32 v41, 8192, v40")
            vm.op("pf", "buffer_load_dword v44, v40, s[12:15], s38 offen")
            vm.op("pf", "buffer_load_dword v45, v41, s[12:15], s38 offen")
            if h == 0:
                k("v_min_u32 v42, 13, v0")
                k("v_lshlrev_b32 v42, 7, v42")
                k("s_add_u32 s38, s38, 32768")
                vm.op("pf", "buffer_load_dword v46, v42, s[12:15], s38 offen")
        return f
    d0 = opt.get("s4_d0", 2)
    tsj = [0, 1, 2, 4, 8, 12, 16, 19]
    loader(k, 20, NSLOT, d0, opt.get("s4_dm", 5), std_batch(k, 11, NSLOT, SL, 14336), {6: csload},
           [(wdpf(0), None), (wdpf(1), None)], tsj)
    k.put(LC)
    lane_setup(k, 2048)
    k("s_lshl_b32 s3, s26, 1")
    k("s_add_u32 s24, s24, s3")
    L = stat_load(k, 24, STV, 2)
    k("s_mul_i32 s41, s33, 27")
    k("s_mul_i32 s3, s34, 7")
    k("s_add_u32 s41, s41, s3")
    k("s_mul_i32 s40, s24, %d" % (54*1024))
    k("s_add_u32 s40, s40, 0x%x" % HH)
    k("v_add_u32 v10, %d, v1" % (54*1024))
    k("v_lshlrev_b32 v21, 4, v3")
    k("v_add_u32 v21, %d, v21" % CL)
    tile_offsets(k, 7)
    k("s_waitcnt lgkmcnt(0)")
    k.srd(12, 8, WS_END)
    k.ts(2)
    F = [(ks, n) for ks in range(20 - LT) for n in range(14)]
    f0 = len(F)
    F += [(ks, n) for i in range(7) for ks in range(20 - LT, 20) for n in (i, i + 7)]
    def put(lines, w=None):
        def f(lg):
            if w: lg.wait(w)
            for ln in lines: k(ln)
        return f
    def stats(lg):
        k("s_waitcnt vmcnt(0)")
        k("v_add_f32 v22, v%d, v%d" % (STV, STV + 2))
        k("v_add_f32 v23, v%d, v%d" % (STV + 4, STV + 6))
        qreduce2(k, 22, 23, 24, 25)
        k("v_mul_f32 v22, 0x%x, v22" % f2u(-1.0/640))
        k("v_mul_f32 v23, 0x%x, v23" % f2u(-1.0/640))
    hooks = {("f", 30): put(L[:1]), ("f", 36): put(L[1:]), ("f", 120): stats}
    def csread(i):
        def f(lg):
            for h in range(2):
                lg.op(("cs", i), "ds_read_b128 %s, v21 offset:%d" % (vr(CSV + 8*(i & 1) + 4*h, 4), 64*(i + 7*h)))
        return f
    def epi(i):
        O = []
        c = CSV + 8*(i & 1)
        for j in range(2):
            g = ACC + 8*i + 4*j
            O += ["v_fma_f32 v%d, v%d, v%d, v%d" % (g + r, c + r, 22 + j, g + r) for r in range(4)]
            O += ["v_max_f32 v%d, 0, v%d" % (g + r, g + r) for r in range(4)]
        for j in range(2):
            g = ACC + 8*i + 4*j; u = g + 56
            O += ["v_fma_f32 v%d, v%d, v%d, v%d" % (u + r, c + 4 + r, 22 + j, u + r) for r in range(4)]
            O += ["v_mul_f32 v%d, v%d, v%d" % (g + r, g + r, u + r) for r in range(4)]
            O += ["v_cvt_pk_bf16_f32 v%d, v%d, v%d" % (g, g, g + 1), "v_cvt_pk_bf16_f32 v%d, v%d, v%d" % (g + 1, g + 2, g + 3)]
            O += ["buffer_store_dwordx2 %s, v%d, s[12:15], s%d offen %s" % (vr(g, 2), 1 if j == 0 else 10, 44 + i, stpol)]
        return O
    for i in range(7):
        hooks[("f", f0 + 2*LT*i + 1)] = csread(i)
        if i < 6:
            O = epi(i); ns = 4*LT - 1
            for m in range(ns):
                f = f0 + 2*LT*(i + 1) + (m + 1)//2
                hooks[("m", f, (m + 1) & 1)] = put(O[len(O)*m//ns: len(O)*(m + 1)//ns], ("cs", i))
    def waddr(ks, n): return (ks % NSLOT)*SL + (n*1024 if n < 11 else (n + 8)*1024)
    def taddr(ks, j): return (ks % NSLOT)*SL + 11264 + j*1024
    lg = consumer(k, F, 2, 1, lambda n, j: vr(ACC + 8*n + 4*j, 4), lambda b: vr(WF + 4*b, 4), NB,
                  lambda ks, j: vr(TOK + 8*(ks % NT) + 4*j, 4), waddr, taddr, (4, 7), opt.get("s4_look", 5), hooks, tsj)
    E2 = k.label("e2")
    k("s_cmp_eq_u32 s34, 3")
    k("s_cbranch_scc1 %s" % E2)
    lg.wait(("cs", 6))
    k("s_nop 2")
    c = CSV; i = 6
    PK = " op_sel:[0,%d,0] op_sel_hi:[1,%d,1]"
    for j in range(2):
        g = ACC + 8*i + 4*j
        for h in range(2): k("v_pk_fma_f32 %s, %s, v[22:23], %s" % (vr(g + 2*h, 2), vr(c + 2*h, 2), vr(g + 2*h, 2)) + PK % (j, j))
        for r in range(4): k("v_max_f32 v%d, 0, v%d" % (g + r, g + r))
    for j in range(2):
        g = ACC + 8*i + 4*j; u = g + 56
        for h in range(2): k("v_pk_fma_f32 %s, %s, v[22:23], %s" % (vr(u + 2*h, 2), vr(c + 4 + 2*h, 2), vr(u + 2*h, 2)) + PK % (j, j))
        for h in range(2): k("v_pk_mul_f32 %s, %s, %s" % (vr(g + 2*h, 2), vr(g + 2*h, 2), vr(u + 2*h, 2)))
        k("v_cvt_pk_bf16_f32 v%d, v%d, v%d" % (g, g, g + 1))
        k("v_cvt_pk_bf16_f32 v%d, v%d, v%d" % (g + 1, g + 2, g + 3))
        k("buffer_store_dwordx2 %s, v%d, s[12:15], s%d offen %s" % (vr(g, 2), 1 if j == 0 else 10, 44 + i, stpol))
    k.put(E2)
    k.tsdump()
    k.put(END)
    k("s_endpgm")
    return k

def gen_s5(opt=None):
    opt = opt or {}
    stpol = opt.get("s5_stpol", "")
    raw = "4" in str(opt.get("g2", ""))
    NSLOT = 8; SL = 18432
    k = Kern("s5_dn_kernel", 256, 384, NSLOT*SL, nv=128)
    k.tson = opt.get("ts", 0); k.kid = 4
    k.ts(0, True); k.ts(1)
    END = k.label("end"); LC = k.label("c")
    ACC = 32; WF = 52; NB = 8; TOK = 84; HR = 100; HU = 108
    head(k, END, [(8, 72), (4, 56)])
    k("""
    s_and_b32 s3, s10, 1
    s_lshl_b32 s24, s3, 1
    s_lshr_b32 s3, s10, 2
    s_add_u32 s24, s24, s3
    s_lshl_b32 s24, s24, 3
    s_and_b32 s3, s11, 7
    s_add_u32 s24, s24, s3
    s_lshl_b32 s24, s24, 2
    s_bfe_u32 s25, s10, 0x10001
    s_lshl_b32 s25, s25, 2
    s_lshr_b32 s3, s11, 3
    s_add_u32 s25, s25, s3
    """)
    k("s_cmp_lt_u32 s26, 4")
    k("s_cbranch_scc1 %s" % LC)
    k("s_mul_i32 s28, s25, %d" % (270*1024))
    k("s_add_u32 s28, s28, 0x%x" % WD)
    k("s_mul_i32 s30, s24, %d" % (54*1024))
    k("s_add_u32 s30, s30, 0x%x" % HH)
    loader_setup(k, 9, (10240, 2048), lambda i: (i >> 1)*55296 + (i & 1)*1024)
    tsj = [0, 1, 2, 6, 10, 14, 18, 22, 26]
    loader(k, 27, NSLOT, opt.get("s5_d0", 3), opt.get("s5_dm", 5), std_batch(k, 9, NSLOT, SL, 10240), {}, [(None, None), (None, None)], tsj)
    k.put(LC)
    lane_setup(k, 2048)
    k("s_add_u32 s24, s24, s26")
    L = stat_load(k, 24, 24, 1)
    k("s_mul_i32 s40, s24, 20")
    k("s_mul_i32 s41, s25, 5")
    k("s_lshr_b32 s3, s41, 1")
    k("s_add_u32 s40, s40, s3")
    k("s_lshl_b32 s40, s40, 10")
    k("s_add_u32 s40, s40, 0x%x" % HF)
    k("s_waitcnt lgkmcnt(0)")
    k.srd(12, 8, WS_END)
    k.srd(16, 4, XB)
    k("s_lshl_b32 s3, s24, 4")
    k("v_add_u32 v18, s3, v2")
    k("v_mul_u32_u24 v18, 1280, v18")
    k("s_mul_i32 s3, s25, 160")
    k("v_add_u32 v18, s3, v18")
    k("v_lshl_add_u32 v21, v3, 3, v18")
    k("v_and_b32 v22, 1, v3")
    k("v_lshl_add_u32 v18, v22, 5, v18")
    k("v_lshrrev_b32 v22, 1, v3")
    k("v_lshl_add_u32 v18, v22, 4, v18")
    def stats(lg):
        k("s_waitcnt vmcnt(0)")
        k("v_add_f32 v30, v24, v26")
        k("v_add_f32 v31, v25, v27")
        qreduce2(k, 30, 31, 22, 23)
        k("v_mul_f32 v30, 0x%x, v30" % f2u(1.0/640))
        k("v_mul_f32 v31, 0x%x, v31" % f2u(1.0/640))
        k("v_fma_f32 v30, -v30, v30, v31")
        k("v_max_f32 v30, 0, v30")
        k("v_add_f32 v30, 0x%x, v30" % f2u(1e-5))
        k("v_rcp_f32 v30, v30")
    k.ts(2)
    HB = [10, 14, 24]
    def hload(i):
        return lambda lg: k("buffer_load_dwordx4 %s, v1, s[12:15], s40 offen offset:%d" % (vr(HB[i], 4), 1024*i))
    def hunp(i):
        def f(lg):
            if i == 0:
                k("s_waitcnt vmcnt(0)")
                k("s_bitcmp1_b32 s25, 0")
                k("s_cselect_b64 vcc, -1, 0")
            hv = [10, 12, 14, 16, 24, 26]
            for h in range(2):
                k("v_cndmask_b32 v%d, v%d, v%d, vcc" % (HR + h, hv[i] + h, hv[i + 1] + h))
            k("v_lshlrev_b32 v%d, 16, v%d" % (HU + 4*i, HR))
            k("v_and_b32 v%d, 0xffff0000, v%d" % (HU + 4*i + 1, HR))
            k("v_lshlrev_b32 v%d, 16, v%d" % (HU + 4*i + 2, HR + 1))
            k("v_and_b32 v%d, 0xffff0000, v%d" % (HU + 4*i + 3, HR + 1))
        return f
    h0 = opt.get("s5_h0", 12)
    hooks = {("sync", h0 + i): hload(i) for i in range(3)}
    for i in range(5): hooks[("sync", 21 + i)] = hunp(i)
    if raw:
        hooks[("sync", 3)] = lambda lg: k(L[0])
        hooks[("sync", 10)] = stats
    F = [(ks, n) for ks in range(54) for n in range(5)]
    wa, ta = n5_addr(NSLOT, SL)
    consumer(k, F, 1, 2, lambda n, j: vr(ACC + 4*n, 4), lambda b: vr(WF + 4*b, 4), NB, lambda ks, j: vr(TOK + 4*(ks & 3), 4),
             wa, ta, (4, 7), opt.get("s5_look", 5), hooks, tsj)
    k("s_nop 3")
    R = [WF, WF + 2, WF + 4, WF + 6, WF + 8]
    for i in range(5):
        a = ACC + 4*i
        for h in range(2):
            if raw: k("v_pk_fma_f32 %s, %s, v[30:31], %s op_sel:[0,0,0] op_sel_hi:[1,0,1]" % (vr(a + 2*h, 2), vr(a + 2*h, 2), vr(HU + 4*i + 2*h, 2)))
            else: k("v_pk_add_f32 %s, %s, %s" % (vr(a + 2*h, 2), vr(a + 2*h, 2), vr(HU + 4*i + 2*h, 2)))
        k("v_cvt_pk_bf16_f32 v%d, v%d, v%d" % (R[i], a, a + 1))
        k("v_cvt_pk_bf16_f32 v%d, v%d, v%d" % (R[i] + 1, a + 2, a + 3))
    k("buffer_store_dwordx2 %s, v21, s[16:19], 0 offen offset:128 %s" % (vr(R[4], 2), stpol))
    for p in range(2):
        k("v_permlane16_swap_b32 v%d, v%d" % (R[2*p], R[2*p + 1]))
        k("v_permlane16_swap_b32 v%d, v%d" % (R[2*p] + 1, R[2*p + 1] + 1))
    k("s_nop 1")
    for p in range(2):
        k("buffer_store_dwordx4 %s, v18, s[16:19], 0 offen offset:%d %s" % (vr(R[2*p], 4), 64*p, stpol))
    k.tsdump()
    k.put(END)
    k("s_endpgm")
    return k
```

```python
import sys, json
from asmlib import *
from s1 import gen_s1
from s2 import gen_s2
from gemm import gen_s3, gen_s4, gen_s5
opt = {}
out = sys.argv[1]
which = sys.argv[2].split(",") if len(sys.argv) > 2 else ["s1", "s2", "s3", "s4", "s5"]
for a in sys.argv[3:]:
    kk, vv = a.split("=", 1)
    try: vv = int(vv)
    except: pass
    opt[kk] = vv
import gemm2
for n in str(opt.get("g2", "")):
    if n == "3": gen_s3 = gemm2.gen_s3
    if n == "4": gen_s4 = gemm2.gen_s4
    if n == "5": gen_s5 = gemm2.gen_s5
if opt.get("s1v") == "b":
    import s1b
    gen_s1 = s1b.gen_s1
if opt.get("s2v") == "b":
    import s2b
    gen_s2 = s2b.gen_s2
G = {"s1": gen_s1, "s2": gen_s2, "s3": gen_s3, "s4": gen_s4, "s5": gen_s5}
open(out, "w").write(module([G[w](opt) for w in which]))
```

```python
from asmlib import *
from lay import *
from gemm import VM, qreduce

class LG:
    def __init__(self, k):
        self.k = k; self.tags = []; self.done = -1
    def op(self, tag, line):
        self.k(line); self.tags.append(tag)
    def wait(self, *tags):
        idx = max(max(i for i, t in enumerate(self.tags) if t == tag) for tag in tags)
        if idx <= self.done: return
        n = len(self.tags) - 1 - idx
        self.k("s_waitcnt lgkmcnt(%d)" % min(n, 15))
        self.done = idx if n <= 15 else len(self.tags) - 16

def emit_ops(k, vm, tag, ops, pre=(), base=None):
    m0 = None
    pre = list(pre)
    for (a, v, srd, so, io) in ops:
        L = []
        if m0 != a - io:
            m0 = a - io
            L.append("s_mov_b32 m0, %d" % m0 if base is None else "s_add_u32 m0, s%d, %d" % (base, m0))
            first = True
            L += pre if pre else ["s_nop 0"]
            pre = []
        L.append("buffer_load_dwordx4 v%d, s[%d:%d], s%d offen offset:%d lds" % (v, srd, srd + 3, so, io))
        vm.op(tag, *L)

def loader(k, NG, NSLOT, D0, DM, batch, after, tails, tsj=()):
    vm = VM(k)
    st = {"n": 0}
    def upto(g):
        while st["n"] <= min(g, NG - 1):
            batch(vm, st["n"])
            if st["n"] in after: after[st["n"]](vm)
            st["n"] += 1
    def bar(vm, j):
        vm.wait(("b", j))
        k("s_barrier")
        if j in tsj: k.ts(3 + list(tsj).index(j))
    upto(D0 - 1)
    k.ts(2)
    j = 0
    while st["n"] < NG:
        bar(vm, j)
        upto(min(j + D0 + (j + 1)//2, j + DM, j - 2 + NSLOT))
        j += 1
    LB = k.label("tb")
    k("s_cmp_eq_u32 s26, 5")
    k("s_cbranch_scc1 %s" % LB)
    for w, (extra, post) in enumerate(tails):
        if w: k.put(LB)
        v2 = VM(k); v2.tags = list(vm.tags)
        if extra: extra(v2)
        for jj in range(j, NG): bar(v2, jj)
        if post: post(v2)
        k("s_waitcnt vmcnt(0)")
        k.tsdump()
        k("s_endpgm")

def loader_setup(k, NA, KSB, tokoff, short=None):
    LB = k.label("sb"); LJ = k.label("sj")
    if PRIO[0] < 0: k("s_setprio %d" % -PRIO[0])
    k("s_cmp_eq_u32 s26, 5")
    k("s_cbranch_scc1 %s" % LB)
    RA = []
    for i in range(NA):
        k("v_add_u32 v%d, %d, v1" % (8 + i, (i - i % 4)*1024))
        if short and short[1] == i: k("v_subrev_u32 v%d, s%d, v%d" % (8 + i, short[0], 8 + i))
    k("s_mov_b32 s30, s28")
    k("s_mov_b32 s27, %d" % KSB[0])
    k("s_mov_b32 s29, 0")
    k("s_branch %s" % LJ)
    k.put(LB)
    for i in range(NA):
        o = tokoff(i) if i < 8 else (NA + i - 8)*1024
        k("v_add_u32 v%d, %d, v1" % (8 + i, o - (i % 4)*1024))
        if short and i >= 8 and short[2] == NA + i - 8: k("v_subrev_u32 v%d, s%d, v%d" % (8 + i, short[0], 8 + i))
    k("s_mov_b32 s27, %d" % KSB[1])
    k("s_mov_b32 s29, %d" % (NA*1024))
    k.put(LJ)
    k("s_waitcnt lgkmcnt(0)")
    k.ts(11)
    k.srd(12, 8, WS_END)

def std_batch(k, NA, NSLOT, SL, WS):
    def b(vm, g):
        a = (g % NSLOT)*SL
        emit_ops(k, vm, ("b", g), [(a + i*1024, 8 + i, 12, 30 if i < 8 else 28, (i % 4)*1024) for i in range(NA)],
                 ["s_add_u32 s30, s30, s27", "s_add_u32 s28, s28, %d" % WS] if g else [], 29)
    return b

def coop_pf(k, after, spec, g0, gmax, np_, member, lsh, tstride, gstride, half=False):
    st = {"i": 0}
    def mk(n, prev):
        def f(vm):
            if prev: prev(vm)
            if st["i"] == 0:
                member(k)
                if half:
                    k("s_add_u32 s56, s3, %d" % g0)
                    k("s_lshl_b32 s3, s26, 1")
                    k("v_lshrrev_b32 v46, %d, v0" % lsh)
                    k("v_add_u32 v46, s3, v46")
                    k("v_and_b32 v46, 3, v46")
                else:
                    k("s_lshl_b32 s3, s3, 1")
                    k("s_add_u32 s3, s3, s26")
                    k("s_add_u32 s56, s3, %d" % (g0 - 4))
                    k("v_lshrrev_b32 v46, %d, v0" % lsh)
                k("v_and_b32 v47, %d, v0" % ((1 << lsh) - 1))
                k("v_mul_u32_u24 v46, %d, v46" % tstride)
                k("v_lshl_add_u32 v46, v47, 7, v46")
            for _ in range(n):
                k("s_add_u32 s3, s56, %d" % (np_*st["i"]))
                k("s_min_u32 s3, s3, %d" % gmax)
                k("s_mul_i32 s3, s3, %d" % gstride)
                k("s_add_u32 s3, s3, s57")
                if half: k("s_mov_b32 exec_hi, 0")
                vm.op("pf", "buffer_load_dword v47, v46, s[12:15], s3 offen")
                if half: k("s_mov_b64 exec, -1")
                st["i"] += 1
        return f
    for e in str(spec).split(","):
        if not e: continue
        a, n = e.split(":")
        after[int(a)] = mk(int(n), after.get(int(a)))
    return after

def stat_load(k, tt, dst, n):
    k("s_lshl_b32 s37, s%d, 10" % tt)
    k("s_add_u32 s37, s37, 0x%x" % ST)
    k("v_lshlrev_b32 v20, 6, v2")
    k("v_lshl_add_u32 v20, v3, 4, v20")
    return ["buffer_load_dwordx4 %s, v20, s[12:15], s37 offen offset:%d" % (vr(dst + 4*j, 4), 1024*j) for j in range(n)]

def consumer(k, F, T, GK, acc, wf, NB, tok, waddr, taddr, LA, LOOK, hooks=None, tsj=()):
    hooks = hooks or {}
    lg = LG(k)
    R = []; seen = set()
    for f, (ks, n) in enumerate(F):
        if ks not in seen:
            seen.add(ks)
            for j in range(T): R.append(("t", ks, j))
        R.append(("w", f))
    pos = {r: i for i, r in enumerate(R)}
    st = {"nr": 0, "g": -1}
    def rd_upto(i):
        while st["nr"] <= min(i, len(R) - 1):
            r = R[st["nr"]]
            ks = r[1] if r[0] == "t" else F[r[1]][0]
            while ks//GK > st["g"]:
                st["g"] += 1
                k("s_barrier")
                if st["g"] in tsj: k.ts(3 + list(tsj).index(st["g"]))
                if ("sync", st["g"]) in hooks: hooks[("sync", st["g"])](lg)
            if r[0] == "t":
                a = taddr(ks, r[2]); v = LA[1]; d = tok(ks, r[2])
            else:
                a = waddr(*F[r[1]]); v = LA[0]; d = wf(r[1] % NB)
            lg.op(r, "ds_read_b128 %s, v%d offset:%d" % (d, v + (a >> 16), a & 0xffff))
            st["nr"] += 1
    first = set()
    for f, (ks, n) in enumerate(F):
        rd_upto(pos[("w", f)] + LOOK)
        lg.wait(("w", f))
        for j in range(T):
            k("v_mfma_f32_16x16x32_bf16 %s, %s, %s, %s" % (acc(n, j), wf(f % NB), tok(ks, j), acc(n, j) if n in first else "0"))
            if ("m", f, j) in hooks: hooks[("m", f, j)](lg)
        first.add(n)
        if ("f", f) in hooks: hooks[("f", f)](lg)
    k.ts(12)
    return lg

def head(k, END, ptrs):
    k("s_cmp_ge_u32 s2, 256")
    k("s_cbranch_scc1 %s" % END)
    for (s, o) in ptrs: k("s_load_dwordx2 s[%d:%d], s[0:1], %d" % (s, s + 1, o))
    k("""
    v_lshrrev_b32 v1, 6, v0
    v_and_b32 v0, 63, v0
    v_readfirstlane_b32 s26, v1
    v_lshlrev_b32 v1, 4, v0
    s_and_b32 s10, s2, 7
    s_lshr_b32 s11, s2, 3
    """)

PRIO = [0]
def lane_setup(k, toff):
    if PRIO[0] > 0: k("s_setprio %d" % PRIO[0])
    k("""
    v_and_b32 v2, 15, v0
    v_lshrrev_b32 v3, 4, v0
    v_mov_b32 v4, v1
    v_add_u32 v5, 0x10000, v1
    v_add_u32 v6, 0x20000, v1
    """)
    k("s_mul_i32 s3, s26, %d" % toff)
    for i in range(3): k("v_add_u32 v%d, s3, v%d" % (7 + i, 4 + i))

def tile_offsets(k, n):
    for i in range(n):
        k("s_add_u32 s3, s41, %d" % i)
        k("s_lshr_b32 s42, s3, 1")
        k("s_lshl_b32 s42, s42, 10")
        k("s_and_b32 s3, s3, 1")
        k("s_lshl_b32 s3, s3, 3")
        k("s_add_u32 s42, s42, s3")
        k("s_add_u32 s%d, s42, s40" % (44 + i))

def qreduce2(k, a, b, t, u):
    for op in ("v_permlane16_swap_b32", "v_permlane32_swap_b32"):
        k("v_mov_b32 v%d, v%d" % (t, a))
        k("v_mov_b32 v%d, v%d" % (u, b))
        k("s_nop 0")
        k("%s v%d, v%d" % (op, a, t))
        k("%s v%d, v%d" % (op, b, u))
        k("s_nop 0")
        k("v_add_f32 v%d, v%d, v%d" % (a, a, t))
        k("v_add_f32 v%d, v%d, v%d" % (b, b, u))

def n5_addr(NSLOT, SL):
    def waddr(ks, n):
        i = (ks & 1)*5 + n
        return ((ks//2) % NSLOT)*SL + (i*1024 if i < 9 else 17408)
    def taddr(ks, j):
        return ((ks//2) % NSLOT)*SL + 9216 + (ks & 1)*1024
    return waddr, taddr

def gen_s3(opt=None):
    opt = opt or {}
    PRIO[0] = opt.get("prio", 0)
    stpol = opt.get("s3_stpol", "")
    NSLOT = 8; SL = 18432; XL = NSLOT*SL
    k = Kern("s3_wo_kernel", 256, 384, XL + 10240, nv=128)
    k.tson = opt.get("ts", 0); k.kid = 2
    k.ts(0, True); k.ts(1)
    END = k.label("end"); LC = k.label("c")
    ACC = 32; WF = 52; NB = 8; TOK = 84; ONES = 28
    head(k, END, [(8, 72), (4, 0)])
    k("""
    s_and_b32 s3, s10, 1
    s_lshl_b32 s24, s3, 4
    s_lshr_b32 s3, s10, 1
    s_lshl_b32 s3, s3, 2
    s_add_u32 s24, s24, s3
    s_and_b32 s3, s11, 3
    s_add_u32 s24, s24, s3
    s_lshl_b32 s24, s24, 2
    s_lshr_b32 s25, s11, 2
    """)
    k("s_cmp_lt_u32 s26, 4")
    k("s_cbranch_scc1 %s" % LC)
    k("s_mul_i32 s28, s25, %d" % (100*1024))
    k("s_add_u32 s28, s28, 0x%x" % WO)
    k("s_mul_i32 s30, s24, %d" % (20*1024))
    k("s_add_u32 s30, s30, 0x%x" % AO)
    k("s_mov_b32 s57, s30")
    loader_setup(k, 9, (10240, 2048), lambda i: (i >> 1)*20480 + (i & 1)*1024)
    XV = 17; CF = 32; CA = 24
    def setup2(vm):
        k.srd(16, 4, XB)
        k("s_lshl_b32 s3, s24, 4")
        k("s_mul_i32 s31, s3, 1280")
        k("s_mul_i32 s3, s25, 160")
        k("s_add_u32 s31, s31, s3")
        k("s_sub_u32 s39, s26, 4")
        k("s_mul_i32 s3, s39, 320")
        k("s_mul_i32 s38, s39, 5120")
        k("v_add_u32 v43, s3, v0")
        for n in range(5):
            k("v_add_u32 v40, %d, v43" % (64*n))
            k("v_mul_u32_u24 v41, 6554, v40")
            k("v_lshrrev_b32 v41, 16, v41")
            k("v_mul_u32_u24 v42, 10, v41")
            k("v_sub_u32 v40, v40, v42")
            k("v_mul_u32_u24 v41, 1280, v41")
            k("v_lshl_add_u32 v%d, v40, 4, v41" % (XV + n))
        k("""
        s_xor_b32 s3, s10, s39
        s_and_b32 s3, s3, 1
        s_lshl_b32 s3, s3, 5
        s_add_u32 s32, s3, s11
        s_min_u32 s33, s32, 55
        s_mul_i32 s34, s33, 4682
        s_lshr_b32 s34, s34, 16
        s_mul_i32 s3, s34, 14
        s_sub_u32 s33, s33, s3
        s_lshr_b32 s3, s10, 1
        s_lshl_b32 s3, s3, 2
        s_add_u32 s35, s3, s34
        s_mul_i32 s36, s35, 14
        s_add_u32 s36, s36, s33
        s_lshl_b32 s36, s36, 6
        s_cmp_eq_u32 s33, 6
        s_cselect_b32 s3, 1, 0
        s_cmp_eq_u32 s33, 13
        s_cselect_b32 s3, 1, s3
        s_cmp_eq_u32 s34, 3
        s_cselect_b32 s3, s3, 0
        s_sub_u32 s33, s33, s3
        s_mul_i32 s37, s35, 280
        s_add_u32 s37, s37, s33
        s_lshl_b32 s37, s37, 10
        """)
        k("s_add_u32 s37, s37, 0x%x" % GU)
        k("s_add_u32 s36, s36, 0x%x" % CS)
        for r in range(4): k("v_mov_b32 v%d, 0x3f803f80" % (ONES + r))
    def xload(vm):
        emit_ops(k, vm, "x", [(XL + n*1024, XV + n, 16, 31, 0) for n in range(5)], base=38)
    def cload(vm):
        for s in range(20):
            vm.op(("c", s), "buffer_load_dwordx4 %s, v1, s[12:15], s37 offen" % vr(CF + 4*s, 4))
            if s < 19: k("s_add_u32 s37, s37, %d" % (14*1024))
    def ctail(vm):
        for s in range(20):
            if s % 5 == 0: vm.wait(("c", s + 4))
            k("v_mfma_f32_16x16x32_bf16 %s, %s, %s, %s" % (vr(CA, 4), vr(CF + 4*s, 4), vr(ONES, 4), vr(CA, 4) if s else "0"))
        E2 = k.label("e2")
        k("s_cmp_lt_u32 s32, 56")
        k("s_cbranch_scc0 %s" % E2)
        k("v_and_b32 v2, 0x300, v1")
        k("v_lshrrev_b32 v2, 4, v2")
        k("s_mov_b32 s38, 0x00010001")
        k("s_mov_b32 s39, 0x00010001")
        k("s_mov_b64 exec, s[38:39]")
        k("s_nop 7")
        k("buffer_store_dwordx4 %s, v2, s[12:15], s36 offen %s" % (vr(CA, 4), stpol))
        k.put(E2)
    def gupf(vm):
        if not opt.get("s3_pf", 1): return
        for n in range(3):
            k("v_add_u32 v40, %d, v0" % (64*n))
            if n == 2: k("v_min_u32 v40, 159, v40")
            k("v_lshrrev_b32 v41, 3, v40")
            k("v_and_b32 v40, 7, v40")
            k("v_mul_u32_u24 v41, 14336, v41")
            k("v_lshl_add_u32 v40, v40, 7, v41")
            vm.op("pf", "buffer_load_dword v%d, v40, s[12:15], s37 offen" % (44 + n))
    d0 = opt.get("s3_d0", 3)
    tsj = [0, 1, 2, 4, 6, 8, 9]
    aft = coop_pf(k, {}, opt.get("s3_cp", ""), opt.get("s3_cp0", 2), 9, 8, lambda k: k("s_mov_b32 s3, s25"), 4, 20480, 2048, True)
    for g, fn in ((opt.get("s3_su", d0 - 1), setup2), (opt.get("s3_xa", 7), xload)):
        aft[g] = (lambda a, b: lambda vm: (a(vm), b(vm)))(aft[g], fn) if g in aft else fn
    loader(k, 10, NSLOT, d0, opt.get("s3_dm", 4), std_batch(k, 9, NSLOT, SL, 10240), aft,
           [(cload, ctail), (gupf, None)], tsj)
    k.put(LC)
    lane_setup(k, 2048)
    k("s_add_u32 s24, s24, s26")
    k("v_mov_b32 v%d, 0x3f803f80" % ONES)
    k("s_mul_i32 s3, s26, 2560")
    k("s_add_u32 s3, s3, %d" % XL)
    k("v_mul_u32_u24 v20, 160, v2")
    k("v_lshl_add_u32 v20, v3, 3, v20")
    k("v_add_u32 v20, s3, v20")
    k("s_mul_i32 s40, s24, 20480")
    k("s_add_u32 s40, s40, 0x%x" % HF)
    k("s_mul_i32 s41, s25, 5")
    tile_offsets(k, 5)
    k("s_lshl_b32 s3, s24, 10")
    k("s_lshl_b32 s43, s25, 3")
    k("s_add_u32 s43, s43, s3")
    k("s_add_u32 s43, s43, 0x%x" % ST)
    k("v_lshlrev_b32 v21, 6, v2")
    k("v_mov_b32 v24, 0")
    k("v_mov_b32 v25, 0")
    k("s_waitcnt lgkmcnt(0)")
    k.srd(12, 8, WS_END)
    k.ts(2)
    XR = 100; XU = 108
    def xread(lg):
        for i in range(5): lg.op("x", "ds_read_b64 %s, v20 offset:%d" % (vr(XR + 2*i, 2), 32*i))
    def xunp(i):
        def f(lg):
            x = XR + 2*i; u = XU + 4*i
            k("v_lshlrev_b32 v%d, 16, v%d" % (u + 2, x + 1))
            k("v_and_b32 v%d, 0xffff0000, v%d" % (u + 3, x + 1))
            k("v_and_b32 v%d, 0xffff0000, v%d" % (u + 1, x))
            k("v_lshlrev_b32 v%d, 16, v%d" % (u, x))
        return f
    F = [(ks, n) for ks in range(20) for n in range(5)]
    hooks = {("sync", 9): xread}
    for i in range(5): hooks[("f", 95 + i)] = xunp(4 - i)
    wa, ta = n5_addr(NSLOT, SL)
    consumer(k, F, 1, 2, lambda n, j: vr(ACC + 4*n, 4), lambda b: vr(WF + 4*b, 4), NB, lambda ks, j: vr(TOK + 4*(ks & 3), 4),
             wa, ta, (4, 7), opt.get("s3_look", 5), hooks, tsj)
    for i in range(5):
        a = ACC + 4*i
        k("v_pk_add_f32 %s, %s, %s" % (vr(a, 2), vr(a, 2), vr(XU + 4*i, 2)))
        k("v_pk_add_f32 %s, %s, %s" % (vr(a + 2, 2), vr(a + 2, 2), vr(XU + 4*i + 2, 2)))
        k("v_cvt_pk_bf16_f32 v%d, v%d, v%d" % (a, a, a + 1))
        k("v_cvt_pk_bf16_f32 v%d, v%d, v%d" % (a + 1, a + 2, a + 3))
        k("buffer_store_dwordx2 %s, v1, s[12:15], s%d offen %s" % (vr(a, 2), 44 + i, stpol))
    for i in range(5):
        a = ACC + 4*i
        for h in range(2):
            k("v_dot2c_f32_bf16 v24, v%d, v%d" % (a + h, ONES))
            k("v_dot2c_f32_bf16 v25, v%d, v%d" % (a + h, a + h))
    k("s_nop 2")
    qreduce2(k, 24, 25, 22, 23)
    k("s_mov_b64 exec, 0xffff")
    k("buffer_store_dwordx2 v[24:25], v21, s[12:15], s43 offen %s" % stpol)
    k.tsdump()
    k.put(END)
    k("s_endpgm")
    return k

def gen_s4(opt=None):
    opt = opt or {}
    stpol = opt.get("s4_stpol", "")
    NSLOT = 7; SL = 22528; CL = NSLOT*SL
    LT = opt.get("s4_lt", 4)
    k = Kern("s4_gu_kernel", 256, 384, CL + 1024, nv=240)
    k.tson = opt.get("ts", 0); k.kid = 3
    k.ts(0, True); k.ts(1)
    END = k.label("end"); LC = k.label("c")
    ACC = 32; WF = 144; NB = 8; TOK = 176; NT = max(LT, 2); CSV = TOK + 8*NT; STV = CSV
    assert CSV + 16 <= 240
    head(k, END, [(8, 72)])
    k("""
    s_and_b32 s3, s10, 1
    s_lshl_b32 s24, s3, 3
    s_and_b32 s3, s11, 7
    s_add_u32 s24, s24, s3
    s_lshl_b32 s24, s24, 3
    s_lshr_b32 s34, s11, 3
    s_lshr_b32 s33, s10, 1
    s_lshl_b32 s25, s33, 2
    s_add_u32 s25, s25, s34
    """)
    k("s_cmp_lt_u32 s26, 4")
    k("s_cbranch_scc1 %s" % LC)
    k("s_mul_i32 s28, s25, %d" % (280*1024))
    k("s_add_u32 s28, s28, 0x%x" % GU)
    k("s_mul_i32 s30, s24, %d" % (20*1024))
    k("s_add_u32 s30, s30, 0x%x" % HF)
    k("s_cmp_eq_u32 s34, 3")
    k("s_cselect_b32 s36, 1024, 0")
    k("s_mov_b32 s57, s30")
    loader_setup(k, 11, (14336, 1024), lambda i: i*20480, (36, 6, 13))
    def csload(vm):
        k("s_mul_i32 s38, s25, 896")
        k("s_add_u32 s38, s38, 0x%x" % CS)
        emit_ops(k, vm, "cs", [(CL, 1, 12, 38, 0)])
    def wdpf(h):
        def f(vm):
            if not opt.get("s4_pf", 1): return
            k("s_bfe_u32 s3, s10, 0x10001")
            k("s_lshl_b32 s3, s3, 5")
            k("s_add_u32 s3, s3, s11")
            k("s_mul_i32 s38, s3, 34560")
            k("s_add_u32 s38, s38, 0x%x" % (WD + h*16384))
            k("v_lshlrev_b32 v40, 7, v0")
            k("v_add_u32 v41, 8192, v40")
            vm.op("pf", "buffer_load_dword v44, v40, s[12:15], s38 offen")
            vm.op("pf", "buffer_load_dword v45, v41, s[12:15], s38 offen")
            if h == 0:
                k("v_min_u32 v42, 13, v0")
                k("v_lshlrev_b32 v42, 7, v42")
                k("s_add_u32 s38, s38, 32768")
                vm.op("pf", "buffer_load_dword v46, v42, s[12:15], s38 offen")
        return f
    d0 = opt.get("s4_d0", 2)
    tsj = [0, 1, 2, 4, 8, 12, 16, 19]
    WB = [int(x) for x in str(opt.get("s4_wb", "")).split("x") if x]
    def wbtail(h):
        def f(vm):
            for n, i in enumerate(WB):
                k("s_barrier")
                if h == 0:
                    L = k.label("wb")
                    k("s_cmp_lg_u32 s11, %d" % n)
                    k("s_cbranch_scc1 %s" % L)
                    k("buffer_wbl2 sc1")
                    k.put(L)
        return f
    loader(k, 20, NSLOT, d0, opt.get("s4_dm", 5), std_batch(k, 11, NSLOT, SL, 14336),
           coop_pf(k, {6: csload}, opt.get("s4_cp", ""), opt.get("s4_cp0", 4), 19, 8, lambda k: k("s_mov_b32 s3, s34"), 3, 20480, 1024),
           [(wdpf(0), wbtail(0)), (wdpf(1), wbtail(1))], tsj)
    k.put(LC)
    lane_setup(k, 2048)
    k("s_lshl_b32 s3, s26, 1")
    k("s_add_u32 s24, s24, s3")
    L = stat_load(k, 24, STV, 2)
    k("s_mul_i32 s41, s33, 27")
    k("s_mul_i32 s3, s34, 7")
    k("s_add_u32 s41, s41, s3")
    k("s_mul_i32 s40, s24, %d" % (54*1024))
    k("s_add_u32 s40, s40, 0x%x" % HH)
    k("v_add_u32 v10, %d, v1" % (54*1024))
    k("v_lshlrev_b32 v21, 4, v3")
    k("v_add_u32 v21, %d, v21" % CL)
    tile_offsets(k, 7)
    k("s_waitcnt lgkmcnt(0)")
    k.srd(12, 8, WS_END)
    k.ts(2)
    F = [(ks, n) for ks in range(20 - LT) for n in range(14)]
    f0 = len(F)
    F += [(ks, n) for i in range(7) for ks in range(20 - LT, 20) for n in (i, i + 7)]
    def put(lines, w=None):
        def f(lg):
            if w: lg.wait(w)
            for ln in lines: k(ln)
        return f
    def stats(lg):
        k("s_waitcnt vmcnt(0)")
        k("v_add_f32 v22, v%d, v%d" % (STV, STV + 2))
        k("v_add_f32 v23, v%d, v%d" % (STV + 4, STV + 6))
        qreduce2(k, 22, 23, 24, 25)
        k("v_mul_f32 v22, 0x%x, v22" % f2u(-1.0/640))
        k("v_mul_f32 v23, 0x%x, v23" % f2u(-1.0/640))
    hooks = {("f", 30): put(L[:1]), ("f", 36): put(L[1:]), ("f", 120): stats}
    def csread(i):
        def f(lg):
            for h in range(2):
                lg.op(("cs", i), "ds_read_b128 %s, v21 offset:%d" % (vr(CSV + 8*(i & 1) + 4*h, 4), 64*(i + 7*h)))
        return f
    def epi(i):
        O = []
        c = CSV + 8*(i & 1)
        for j in range(2):
            g = ACC + 8*i + 4*j
            O += ["v_fma_f32 v%d, v%d, v%d, v%d" % (g + r, c + r, 22 + j, g + r) for r in range(4)]
            O += ["v_max_f32 v%d, 0, v%d" % (g + r, g + r) for r in range(4)]
        for j in range(2):
            g = ACC + 8*i + 4*j; u = g + 56
            O += ["v_fma_f32 v%d, v%d, v%d, v%d" % (u + r, c + 4 + r, 22 + j, u + r) for r in range(4)]
            O += ["v_mul_f32 v%d, v%d, v%d" % (g + r, g + r, u + r) for r in range(4)]
            O += ["v_cvt_pk_bf16_f32 v%d, v%d, v%d" % (g, g, g + 1), "v_cvt_pk_bf16_f32 v%d, v%d, v%d" % (g + 1, g + 2, g + 3)]
            if opt.get("s4_hack"):
                if i & 1: O += ["s_and_b32 s3, s%d, 0xfffffff0" % (44 + i), "buffer_store_dwordx4 %s, v%d, s[12:15], s3 offen %s" % (vr(g, 4), 1 if j == 0 else 10, stpol)]
            else:
                O += ["buffer_store_dwordx2 %s, v%d, s[12:15], s%d offen %s" % (vr(g, 2), 1 if j == 0 else 10, 44 + i, stpol)]
        return O
    for i in range(7):
        hooks[("f", f0 + 2*LT*i + 1)] = csread(i)
        if i < 6:
            O = epi(i); ns = 4*LT - 1
            for m in range(ns):
                f = f0 + 2*LT*(i + 1) + (m + 1)//2
                hooks[("m", f, (m + 1) & 1)] = put(O[len(O)*m//ns: len(O)*(m + 1)//ns], ("cs", i))
    for i in WB: hooks[("f", f0 + 2*LT*i)] = put(["s_barrier"])
    def waddr(ks, n): return (ks % NSLOT)*SL + (n*1024 if n < 11 else (n + 8)*1024)
    def taddr(ks, j): return (ks % NSLOT)*SL + 11264 + j*1024
    lg = consumer(k, F, 2, 1, lambda n, j: vr(ACC + 8*n + 4*j, 4), lambda b: vr(WF + 4*b, 4), NB,
                  lambda ks, j: vr(TOK + 8*(ks % NT) + 4*j, 4), waddr, taddr, (4, 7), opt.get("s4_look", 5), hooks, tsj)
    E2 = k.label("e2")
    k("s_cmp_eq_u32 s34, 3")
    k("s_cbranch_scc1 %s" % E2)
    lg.wait(("cs", 6))
    k("s_nop 2")
    c = CSV; i = 6
    PK = " op_sel:[0,%d,0] op_sel_hi:[1,%d,1]"
    for j in range(2):
        g = ACC + 8*i + 4*j
        for h in range(2): k("v_pk_fma_f32 %s, %s, v[22:23], %s" % (vr(g + 2*h, 2), vr(c + 2*h, 2), vr(g + 2*h, 2)) + PK % (j, j))
        for r in range(4): k("v_max_f32 v%d, 0, v%d" % (g + r, g + r))
    for j in range(2):
        g = ACC + 8*i + 4*j; u = g + 56
        for h in range(2): k("v_pk_fma_f32 %s, %s, v[22:23], %s" % (vr(u + 2*h, 2), vr(c + 4 + 2*h, 2), vr(u + 2*h, 2)) + PK % (j, j))
        for h in range(2): k("v_pk_mul_f32 %s, %s, %s" % (vr(g + 2*h, 2), vr(g + 2*h, 2), vr(u + 2*h, 2)))
        k("v_cvt_pk_bf16_f32 v%d, v%d, v%d" % (g, g, g + 1))
        k("v_cvt_pk_bf16_f32 v%d, v%d, v%d" % (g + 1, g + 2, g + 3))
        k("buffer_store_dwordx2 %s, v%d, s[12:15], s%d offen %s" % (vr(g, 2), 1 if j == 0 else 10, 44 + i, stpol))
    k.put(E2)
    k.tsdump()
    k.put(END)
    k("s_endpgm")
    return k

def gen_s5(opt=None):
    opt = opt or {}
    stpol = opt.get("s5_stpol", "")
    raw = "4" in str(opt.get("g2", ""))
    NSLOT = 8; SL = 18432
    k = Kern("s5_dn_kernel", 256, 384, NSLOT*SL, nv=128)
    k.tson = opt.get("ts", 0); k.kid = 4
    k.ts(0, True); k.ts(1)
    END = k.label("end"); LC = k.label("c")
    ACC = 32; WF = 52; NB = 8; TOK = 84; HR = 100; HU = 108
    head(k, END, [(8, 72), (4, 56)])
    k("""
    s_and_b32 s3, s10, 1
    s_lshl_b32 s24, s3, 1
    s_lshr_b32 s3, s10, 2
    s_add_u32 s24, s24, s3
    s_lshl_b32 s24, s24, 3
    s_and_b32 s3, s11, 7
    s_add_u32 s24, s24, s3
    s_lshl_b32 s24, s24, 2
    s_bfe_u32 s25, s10, 0x10001
    s_lshl_b32 s25, s25, 2
    s_lshr_b32 s3, s11, 3
    s_add_u32 s25, s25, s3
    """)
    k("s_cmp_lt_u32 s26, 4")
    k("s_cbranch_scc1 %s" % LC)
    k("s_mul_i32 s28, s25, %d" % (270*1024))
    k("s_add_u32 s28, s28, 0x%x" % WD)
    k("s_mul_i32 s30, s24, %d" % (54*1024))
    k("s_add_u32 s30, s30, 0x%x" % HH)
    k("s_mov_b32 s57, s30")
    loader_setup(k, 9, (10240, 2048), lambda i: (i >> 1)*55296 + (i & 1)*1024)
    tsj = [0, 1, 2, 6, 10, 14, 18, 22, 26]
    loader(k, 27, NSLOT, opt.get("s5_d0", 3), opt.get("s5_dm", 5), std_batch(k, 9, NSLOT, SL, 10240),
           coop_pf(k, {}, opt.get("s5_cp", ""), opt.get("s5_cp0", 3), 26, 8, lambda k: k("s_lshr_b32 s3, s11, 3"), 4, 55296, 2048),
           [(None, None), (None, None)], tsj)
    k.put(LC)
    lane_setup(k, 2048)
    k("s_add_u32 s24, s24, s26")
    L = stat_load(k, 24, 24, 1)
    k("s_mul_i32 s40, s24, 20")
    k("s_mul_i32 s41, s25, 5")
    k("s_lshr_b32 s3, s41, 1")
    k("s_add_u32 s40, s40, s3")
    k("s_lshl_b32 s40, s40, 10")
    k("s_add_u32 s40, s40, 0x%x" % HF)
    k("s_waitcnt lgkmcnt(0)")
    k.srd(12, 8, WS_END)
    k.srd(16, 4, XB)
    k("s_lshl_b32 s3, s24, 4")
    k("v_add_u32 v18, s3, v2")
    k("v_mul_u32_u24 v18, 1280, v18")
    k("s_mul_i32 s3, s25, 160")
    k("v_add_u32 v18, s3, v18")
    k("v_lshl_add_u32 v21, v3, 3, v18")
    k("v_and_b32 v22, 1, v3")
    k("v_lshl_add_u32 v18, v22, 5, v18")
    k("v_lshrrev_b32 v22, 1, v3")
    k("v_lshl_add_u32 v18, v22, 4, v18")
    def stats(lg):
        k("s_waitcnt vmcnt(0)")
        k("v_add_f32 v30, v24, v26")
        k("v_add_f32 v31, v25, v27")
        qreduce2(k, 30, 31, 22, 23)
        k("v_mul_f32 v30, 0x%x, v30" % f2u(1.0/640))
        k("v_mul_f32 v31, 0x%x, v31" % f2u(1.0/640))
        k("v_fma_f32 v30, -v30, v30, v31")
        k("v_max_f32 v30, 0, v30")
        k("v_add_f32 v30, 0x%x, v30" % f2u(1e-5))
        k("v_rcp_f32 v30, v30")
    k.ts(2)
    HB = [10, 14, 24]
    def hload(i):
        return lambda lg: k("buffer_load_dwordx4 %s, v1, s[12:15], s40 offen offset:%d" % (vr(HB[i], 4), 1024*i))
    def hunp(i):
        def f(lg):
            if i == 0:
                k("s_waitcnt vmcnt(0)")
                k("s_bitcmp1_b32 s25, 0")
                k("s_cselect_b64 vcc, -1, 0")
            hv = [10, 12, 14, 16, 24, 26]
            for h in range(2):
                k("v_cndmask_b32 v%d, v%d, v%d, vcc" % (HR + h, hv[i] + h, hv[i + 1] + h))
            k("v_lshlrev_b32 v%d, 16, v%d" % (HU + 4*i, HR))
            k("v_and_b32 v%d, 0xffff0000, v%d" % (HU + 4*i + 1, HR))
            k("v_lshlrev_b32 v%d, 16, v%d" % (HU + 4*i + 2, HR + 1))
            k("v_and_b32 v%d, 0xffff0000, v%d" % (HU + 4*i + 3, HR + 1))
        return f
    h0 = opt.get("s5_h0", 12)
    hooks = {("sync", h0 + i): hload(i) for i in range(3)}
    for i in range(5): hooks[("sync", 21 + i)] = hunp(i)
    if raw:
        hooks[("sync", 3)] = lambda lg: k(L[0])
        hooks[("sync", 10)] = stats
    F = [(ks, n) for ks in range(54) for n in range(5)]
    wa, ta = n5_addr(NSLOT, SL)
    consumer(k, F, 1, 2, lambda n, j: vr(ACC + 4*n, 4), lambda b: vr(WF + 4*b, 4), NB, lambda ks, j: vr(TOK + 4*(ks & 3), 4),
             wa, ta, (4, 7), opt.get("s5_look", 5), hooks, tsj)
    k("s_nop 3")
    R = [WF, WF + 2, WF + 4, WF + 6, WF + 8]
    for i in range(5):
        a = ACC + 4*i
        for h in range(2):
            if raw: k("v_pk_fma_f32 %s, %s, v[30:31], %s op_sel:[0,0,0] op_sel_hi:[1,0,1]" % (vr(a + 2*h, 2), vr(a + 2*h, 2), vr(HU + 4*i + 2*h, 2)))
            else: k("v_pk_add_f32 %s, %s, %s" % (vr(a + 2*h, 2), vr(a + 2*h, 2), vr(HU + 4*i + 2*h, 2)))
        k("v_cvt_pk_bf16_f32 v%d, v%d, v%d" % (R[i], a, a + 1))
        k("v_cvt_pk_bf16_f32 v%d, v%d, v%d" % (R[i] + 1, a + 2, a + 3))
    k("buffer_store_dwordx2 %s, v21, s[16:19], 0 offen offset:128 %s" % (vr(R[4], 2), stpol))
    for p in range(2):
        k("v_permlane16_swap_b32 v%d, v%d" % (R[2*p], R[2*p + 1]))
        k("v_permlane16_swap_b32 v%d, v%d" % (R[2*p] + 1, R[2*p + 1] + 1))
    k("s_nop 1")
    for p in range(2):
        k("buffer_store_dwordx4 %s, v18, s[16:19], 0 offen offset:%d %s" % (vr(R[2*p], 4), 64*p, stpol))
    k.tsdump()
    k.put(END)
    k("s_endpgm")
    return k
```

```python
from asmlib import *
from lay import *
from side import *
from gemm import VM

def gen_s2(opt=None):
    opt = opt or {}
    stpol = opt.get("s2_stpol", "")
    wstpol = opt.get("s2_wstpol", "")
    wldpol = opt.get("s2_wldpol", "")
    prio = opt.get("s2_prio", 1)
    npro = opt.get("s2_npro", 5)
    pfit = opt.get("s2_pfit", 13)
    k = Kern("s2_att_kernel", 256, 512, 163840, nv=168)
    k.tson = opt.get("ts", 0); k.kid = 1
    k.ts(0, True); k.ts(1)
    Q1 = 16; Q2 = (20, 22); CI = 24; O = 40; S = (56, 72); P = 88
    K1 = (96, 100); K2 = (104, 106); V = (108, 116)
    AK = 124; AK2 = 125; AV = 126; PFD = 127
    WL = 128; WP = 144; WA = 160; OA = 161; OB = 162; PFA = 163
    END = k.label("end"); PRO = k.label("pro"); LOOP = k.label("loop"); BACK = k.label("back"); STUB = k.label("stub")
    FB = k.label("fb"); FIN = k.label("fin")
    VMASK = 0x000fffff
    k("s_cmp_ge_u32 s2, 256")
    k("s_cbranch_scc1 %s" % END)
    k("s_load_dwordx2 s[8:9], s[0:1], 72")
    k("s_load_dwordx2 s[4:5], s[0:1], 0")
    k("s_load_dwordx4 s[44:47], s[0:1], 32")
    k("s_load_dwordx2 s[48:49], s[0:1], 48")
    k("""
    v_lshrrev_b32 v1, 6, v0
    v_and_b32 v0, 63, v0
    v_readfirstlane_b32 s26, v1
    s_and_b32 s10, s2, 7
    s_lshr_b32 s11, s2, 3
    s_and_b32 s3, s11, 3
    s_lshl_b32 s24, s10, 2
    s_add_u32 s24, s24, s3
    s_lshr_b32 s25, s11, 2
    s_lshl_b32 s25, s25, 3
    s_add_u32 s25, s25, s26
    v_lshlrev_b32 v2, 4, v0
    v_and_b32 v8, 31, v0
    v_lshrrev_b32 v9, 5, v0
    v_lshlrev_b32 v3, 3, v8
    """)
    k("s_lshl_b32 s3, s24, 6")
    k("s_add_u32 s3, s3, s25")
    k("s_mul_i32 s27, s3, 1280")
    k("s_mul_i32 s28, s24, 163840")
    k("s_lshl_b32 s29, s26, 10")
    k("s_add_u32 s28, s28, s29")
    k("s_add_u32 s28, s28, 0x%x" % KV)
    k("s_waitcnt lgkmcnt(0)")
    k.srd(12, 8, AO)
    vm = VM(k)
    def dma(i):
        vm.op(("d", i), "s_add_u32 m0, s29, %d" % (i*8192), "s_add_u32 s28, s28, 8192" if i else "s_nop 0",
              "buffer_load_dwordx4 v2, s[12:15], s28 offen lds")
    dma(0)
    vm.op("q", "buffer_load_dwordx4 %s, v2, s[12:15], s27 offen" % vr(Q1, 4))
    vm.op("q", "buffer_load_dwordx2 %s, v3, s[12:15], s27 offen offset:1024" % vr(Q2[0], 2))
    for i in range(1, npro): dma(i)
    k.ts(2)
    k.srd(16, 8, WS_END)
    k("v_mov_b32 v4, 0x3f803f80")
    k("v_cmp_eq_u32 vcc, 20, v8")
    k("v_cmp_gt_u32 s[22:23], 32, v0")
    k("s_mov_b32 s20, 0x%x" % VMASK)
    k("s_mov_b32 s21, 0x%x" % VMASK)
    for r in range(16):
        k("v_cndmask_b32 v%d, 0, v4, vcc" % (V[0] + r))
    k("s_mov_b32 s31, 0")
    k("s_lshr_b32 s3, s24, 1")
    k("s_mul_i32 s3, s3, 5")
    k("s_and_b32 s34, s24, 1")
    k("s_lshl_b32 s35, s34, 1")
    k("s_add_u32 s35, s35, s3")
    k("s_add_u32 s3, s3, 4")
    k("v_add_u32 v4, s35, v9")
    k("v_bfe_u32 v5, v0, 4, 1")
    k("s_lshl_b32 s33, s25, 1")
    k("v_add_u32 v5, s33, v5")
    k("v_mul_u32_u24 v5, 20, v5")
    k("v_and_b32 v10, 15, v0")
    k("v_lshrrev_b32 v11, 2, v4")
    k("v_add_u32 v11, v11, v5")
    k("v_and_b32 v4, 3, v4")
    k("v_lshl_add_u32 v4, v4, 4, v10")
    k("v_lshlrev_b32 v4, 4, v4")
    k("v_lshl_add_u32 v%d, v11, 10, v4" % OA)
    k("s_lshr_b32 s35, s3, 2")
    k("s_and_b32 s3, s3, 3")
    k("s_lshl_b32 s3, s3, 8")
    k("s_lshl_b32 s34, s34, 3")
    k("s_add_u32 s3, s3, s34")
    k("v_add_u32 v5, s35, v5")
    k("v_lshl_add_u32 v10, v10, 4, s3")
    k("v_lshl_add_u32 v%d, v5, 10, v10" % OB)
    k("s_mov_b32 s33, 0x%x" % AO)
    k("s_lshl_b32 s50, s2, 3")
    k("s_add_u32 s50, s50, s26")
    side_addr_gud(k, WA)
    k("s_lshl_b32 s3, s11, 3")
    k("s_add_u32 s3, s3, s26")
    k("s_lshl_b32 s58, s3, 13")
    k("v_lshlrev_b32 v%d, 7, v0" % PFA)
    k("s_cmp_ge_u32 s3, 100")
    k("s_cselect_b32 s40, s4, s8")
    k("s_cselect_b32 s41, s5, s9")
    k("s_and_b32 s41, s41, 0xffff")
    k("s_mov_b32 s43, 0x00020000")
    k("s_and_b32 s34, s10, 1")
    k("s_lshl_b32 s34, s34, 2")
    k("s_lshr_b32 s35, s10, 1")
    k("s_add_u32 s34, s34, s35")
    k("s_mul_i32 s34, s34, 327680")
    k("s_add_u32 s35, s34, 327680")
    k("s_sub_u32 s34, s34, %d" % (100*8192))
    k("s_cmp_ge_u32 s3, 100")
    k("s_cselect_b32 s34, s34, 0x%x" % WO)
    k("s_cselect_b32 s42, s35, 0x%x" % (WO + WOB))
    k("s_add_u32 s58, s58, s34")
    k("v_add_u32 v%d, s58, v%d" % (PFA, PFA))
    k("v_mov_b32 v%d, v2" % AK)
    k("v_lshlrev_b32 v%d, 3, v0" % AK2)
    k("v_mul_u32_u24 v%d, 320, v9" % AV)
    k("v_lshl_add_u32 v%d, v8, 4, v%d" % (AV, AV))
    for r in range(16):
        k("v_mov_b32 v%d, 0" % (O + r))
    for r in range(8):
        k("v_mov_b32 v%d, 0" % (P + r))
    k.ts(3)
    vm.wait(("d", 2))
    k("s_barrier")
    k.ts(4)
    k("ds_read_b128 %s, v%d" % (vr(K1[0], 4), AK))
    k("ds_read_b64 %s, v%d offset:2048" % (vr(K2[0], 2), AK2))
    k("v_cndmask_b32 v%d, v%d, 0, s[22:23]" % (Q2[1], Q2[0]))
    k("v_cndmask_b32 v%d, v%d, 0, s[22:23]" % (Q2[1] + 1, Q2[0] + 1))
    k("v_cndmask_b32 v%d, 0, v%d, s[22:23]" % (Q2[0], Q2[0]))
    k("v_cndmask_b32 v%d, 0, v%d, s[22:23]" % (Q2[0] + 1, Q2[0] + 1))
    k("s_waitcnt lgkmcnt(0)")
    k("v_mfma_f32_32x32x16_bf16 %s, %s, %s, 0" % (vr(S[0], 16), vr(K1[0], 4), vr(Q1, 4)))
    k("v_mfma_f32_32x32x8bf16_1k %s, %s, %s, %s" % (vr(S[0], 16), vr(K2[0], 2), vr(Q2[0], 2), vr(S[0], 16)))
    k("ds_read_b128 %s, v%d offset:1024" % (vr(K1[1], 4), AK))
    k("ds_read_b64 %s, v%d offset:%d" % (vr(K2[1], 2), AK2, 5120 + 2048))
    k("ds_read_b128 %s, v%d offset:5120" % (vr(K1[0], 4), AK))
    k("s_nop 13")
    k("v_max3_f32 v6, v%d, v%d, v%d" % (S[0], S[0] + 1, S[0] + 2))
    k("v_max3_f32 v7, v%d, v%d, v%d" % (S[0] + 3, S[0] + 4, S[0] + 5))
    for i in range(2):
        k("v_max3_f32 v6, v6, v%d, v%d" % (S[0] + 6 + 4*i, S[0] + 7 + 4*i))
        k("v_max3_f32 v7, v7, v%d, v%d" % (S[0] + 8 + 4*i, S[0] + 9 + 4*i))
    k("v_max3_f32 v6, v6, v%d, v%d" % (S[0] + 14, S[0] + 15))
    k("v_max_f32 v6, v6, v7")
    def head():
        k("v_mov_b32 v7, v6")
        k("s_mov_b32 s32, 0")
        k("s_nop 0")
        k("v_permlane32_swap_b32 v6, v7")
        k("s_nop 1")
        k("v_max_f32 v6, v6, v7")
        for r in range(16):
            k("v_sub_f32 v%d, v%d, v6" % (S[0] + r, S[0] + r))
        for r in range(16):
            k("v_sub_f32 v%d, 0, v6" % (CI + r))
        k("s_waitcnt lgkmcnt(0)")
    def koff(t): return (t >> 1)*5120 + (t & 1)*1024
    def voff(t, j): return (t >> 1)*5120 + 2560 + ((t & 1)*2 + j)*640
    def tile(t, bump=0, pre=None, mid=None):
        sc = S[t & 1]; sn = S[(t + 1) & 1]
        def ex(a, b):
            for i in range(a, b): k("v_exp_f32 v%d, v%d" % (sc + i, sc + i))
        def cv(a, b):
            for i in range(a, b): k("v_cvt_pk_bf16_f32 v%d, v%d, v%d" % (P + i, sc + 2*i, sc + 2*i + 1))
        if pre: pre()
        if prio: k("s_setprio 1")
        k("v_mfma_f32_32x32x16_bf16 %s, %s, %s, %s" % (vr(sn, 16), vr(K1[(t + 1) & 1], 4), vr(Q1, 4), vr(CI, 16)))
        k("ds_read_b128 %s, v%d offset:%d" % (vr(K1[(t + 1) & 1], 4), AK, koff(t + 3)))
        if t & 1:
            p1 = (t + 1)//2 + 1
            k("ds_read_b64 %s, v%d offset:%d" % (vr(K2[p1 & 1], 2), AK2, p1*5120 + 2048))
        ex(0, 4)
        k("s_waitcnt lgkmcnt(%d)" % (2 if t & 1 else 1))
        k("v_mfma_f32_32x32x16_bf16 %s, %s, %s, %s" % (vr(O, 16), vr(V[(t - 1) & 1] + 4, 4), vr(P + 4, 4), vr(O, 16)))
        k("s_mov_b64 exec, s[20:21]")
        k("ds_read_b128 %s, v%d offset:%d" % (vr(V[t & 1], 4), AV, voff(t, 0)))
        k("ds_read_b128 %s, v%d offset:%d" % (vr(V[t & 1] + 4, 4), AV, voff(t, 1)))
        k("s_mov_b64 exec, -1")
        ex(4, 8)
        k("v_mfma_f32_32x32x8bf16_1k %s, %s, %s, %s" % (vr(sn, 16), vr(K2[((t + 1) >> 1) & 1], 2), vr(Q2[(t + 1) & 1], 2), vr(sn, 16)))
        ex(8, 12)
        k("v_mfma_f32_32x32x16_bf16 %s, %s, %s, %s" % (vr(O, 16), vr(V[(t - 1) & 1], 4), vr(P, 4), vr(O, 16)))
        ex(12, 16)
        if prio: k("s_setprio 0")
        if bump:
            k("v_add_u32 v%d, %d, v%d" % (AK, bump, AK))
            k("v_add_u32 v%d, %d, v%d" % (AK2, bump, AK2))
            k("v_add_u32 v%d, %d, v%d" % (AV, bump, AV))
        if mid: mid()
        cv(0, 8)
    head()
    k.ts(5)
    n0 = len(k.L)
    mids = {}; pres = {}
    def add(d, T, f): d.setdefault(T, []).append(f)
    d0 = opt.get("s2_d0", 0); dstep = opt.get("s2_dstep", 1)
    for j in range(npro, 20): add(mids, d0 + (j - npro)*dstep, lambda j=j: dma(j))
    sl0 = opt.get("s2_sl0", 16); sls = opt.get("s2_sls", 2)
    ss0 = opt.get("s2_ss0", 36); sss = opt.get("s2_sss", 2)
    if not opt.get("noside"):
        for j in range(8): add(mids, sl0 + j*sls, lambda j=j: side_load1(k, vm, WL, wldpol, j))
        for i in range(4): add(mids, ss0 + i*sss, lambda i=i: side_store1(k, vm, WL, WP, WA, wstpol, i))
    add(mids, 4*pfit, lambda: vm.op("pf", "buffer_load_dword v%d, v%d, s[40:43], 0 offen" % (PFD, PFA)))
    def wbhint(n):
        def f():
            L = k.label("wb")
            k("s_lshl_b32 s3, s11, 3")
            k("s_add_u32 s3, s3, s26")
            k("s_cmp_lg_u32 s3, %d" % n)
            k("s_cbranch_scc1 %s" % L)
            k("buffer_wbl2 sc1")
            k.put(L)
        return f
    for i, T in enumerate(str(opt.get("s2_wb", "")).split("x")):
        if T: add(mids, int(T), wbhint(7 + 8*i))
    def sync(j, tsi):
        def f():
            k.ts(tsi)
            vm.wait(("d", j))
            k("s_barrier")
            k.ts(tsi + 1)
        return f
    syncs = {4: 4, 12: 9, 28: 19}
    if opt.get("s2_sync4"): syncs = {4: 4, 12: 9, 28: 14, 44: 19}
    for n, (T, j) in enumerate(sorted(syncs.items())): add(pres, T, sync(j, 6 + 2*n if n < 3 else 2))
    add(pres, 48, lambda: k.ts(4))
    def run(l):
        return (lambda: [f() for f in l]) if l else None
    for T in range(64):
        tile(T & 15, 40960 if (T & 15) == 15 and T < 63 else 0, run(pres.get(T)), run(mids.get(T)))
    dg = opt.get("s2_diag", "")
    if dg:
        def keep(ln):
            if "A" in dg and ln.startswith("v_mfma_f32_32x32x16_bf16 v[%d:" % O): return False
            if "B" in dg and ln.startswith("v_mfma_f32_32x32x8"): return False
            if "C" in dg and ln.startswith("v_exp"): return False
            if "D" in dg and ln.startswith("ds_read"): return False
            if "E" in dg and ln.startswith("v_cvt"): return False
            if "F" in dg and ln.startswith("v_mfma"): return False
            return True
        k.L[n0:] = [ln for ln in k.L[n0:] if keep(ln)]
        k("s_mov_b32 s31, 1")
    k.put(FIN)
    k.ts(12)
    k("s_waitcnt lgkmcnt(0)")
    k("v_mfma_f32_32x32x16_bf16 %s, %s, %s, %s" % (vr(O, 16), vr(V[1], 4), vr(P, 4), vr(O, 16)))
    k("v_mfma_f32_32x32x16_bf16 %s, %s, %s, %s" % (vr(O, 16), vr(V[1] + 4, 4), vr(P + 4, 4), vr(O, 16)))
    k("v_mov_b32 v5, 0x%x" % f2u(2.0**60))
    k("s_waitcnt vmcnt(0)")
    k("s_nop 14")
    k("v_mov_b32 v6, v%d" % (O + 8))
    k("v_mov_b32 v7, v%d" % (O + 8))
    k("s_nop 1")
    k("v_permlane32_swap_b32 v6, v7")
    k("s_nop 1")
    k("v_cmp_nlt_f32 vcc, v7, v5")
    k("v_rcp_f32 v7, v7")
    k("s_cmp_eq_u32 s31, 0")
    k("s_cselect_b64 s[34:35], vcc, 0")
    k("s_cmp_lg_u64 s[34:35], 0")
    k("s_cbranch_scc1 %s" % FB)
    for r in range(12):
        k("v_mul_f32 v%d, v%d, v7" % (O + r, O + r))
    for r in range(6):
        k("v_cvt_pk_bf16_f32 v%d, v%d, v%d" % (O + r, O + 2*r, O + 2*r + 1))
    k("buffer_store_dwordx4 %s, v%d, s[16:19], s33 offen %s" % (vr(O, 4), OA, stpol))
    k("s_mov_b64 exec, s[22:23]")
    k("buffer_store_dwordx2 %s, v%d, s[16:19], s33 offen %s" % (vr(O + 4, 2), OB, stpol))
    k.tsdump()
    k.put(END)
    k("s_endpgm")
    k.put(FB)
    FL = k.label("fl")
    k("s_mov_b32 s31, 1")
    k("s_mov_b32 s32, 0")
    k("v_mov_b32 v%d, v2" % AK)
    k("v_lshlrev_b32 v%d, 3, v0" % AK2)
    k("v_mov_b32 v6, 0xff800000")
    k.put(FL)
    k("ds_read_b128 %s, v%d" % (vr(K1[0], 4), AK))
    k("ds_read_b128 %s, v%d offset:1024" % (vr(K1[1], 4), AK))
    k("ds_read_b64 %s, v%d offset:2048" % (vr(K2[0], 2), AK2))
    k("s_waitcnt lgkmcnt(0)")
    for t in range(2):
        k("v_mfma_f32_32x32x16_bf16 %s, %s, %s, 0" % (vr(S[t], 16), vr(K1[t], 4), vr(Q1, 4)))
        k("v_mfma_f32_32x32x8bf16_1k %s, %s, %s, %s" % (vr(S[t], 16), vr(K2[0], 2), vr(Q2[t], 2), vr(S[t], 16)))
    k("v_add_u32 v%d, 5120, v%d" % (AK, AK))
    k("v_add_u32 v%d, 5120, v%d" % (AK2, AK2))
    k("s_nop 15")
    for i in range(16):
        k("v_max3_f32 v6, v6, v%d, v%d" % (S[0] + 2*i, S[0] + 2*i + 1))
    k("s_add_u32 s32, s32, 1")
    k("s_cmp_lt_u32 s32, 32")
    k("s_cbranch_scc1 %s" % FL)
    k("v_mov_b32 v%d, v2" % AK)
    k("v_lshlrev_b32 v%d, 3, v0" % AK2)
    k("v_mul_u32_u24 v%d, 320, v9" % AV)
    k("v_lshl_add_u32 v%d, v8, 4, v%d" % (AV, AV))
    k("ds_read_b128 %s, v%d" % (vr(K1[0], 4), AK))
    k("ds_read_b64 %s, v%d offset:2048" % (vr(K2[0], 2), AK2))
    for r in range(16):
        k("v_mov_b32 v%d, 0" % (O + r))
    for r in range(8):
        k("v_mov_b32 v%d, 0" % (P + r))
    k("s_waitcnt lgkmcnt(0)")
    k("v_mfma_f32_32x32x16_bf16 %s, %s, %s, 0" % (vr(S[0], 16), vr(K1[0], 4), vr(Q1, 4)))
    k("v_mfma_f32_32x32x8bf16_1k %s, %s, %s, %s" % (vr(S[0], 16), vr(K2[0], 2), vr(Q2[0], 2), vr(S[0], 16)))
    k("ds_read_b128 %s, v%d offset:1024" % (vr(K1[1], 4), AK))
    k("ds_read_b64 %s, v%d offset:%d" % (vr(K2[1], 2), AK2, 5120 + 2048))
    k("ds_read_b128 %s, v%d offset:5120" % (vr(K1[0], 4), AK))
    k("s_nop 13")
    head()
    k.put(LOOP)
    for t in range(4):
        tile(t, 10240 if t == 3 else 0)
    k("s_add_u32 s32, s32, 1")
    k("s_cmp_lt_u32 s32, 16")
    k("s_cbranch_scc1 %s" % LOOP)
    k("s_branch %s" % FIN)
    return k
```

```python
from asmlib import *
from lay import *
from side import *
from gemm import VM

def gen_s1(opt=None):
    opt = opt or {}
    ldpol = opt.get("s1_ldpol", "")
    stpol = opt.get("s1_stpol", "")
    k = Kern("s1_qkv_kernel", 256, 512, 163840, nv=232)
    k.tson = opt.get("ts", 0); k.kid = 0
    k.ts(0, True); k.ts(1)
    ACC = 64; SX = 128; SQ = 132; SW = 136; SEL = 140
    def XF(p, a): return 144 + p*16 + a*4
    def WF(p, b): return 152 + p*16 + b*4
    def XA(c, a, kk): return 176 + c*8 + a*4 + kk
    def WA(c, b): return 200 + c*2 + b
    XD = 206; WD_ = 210; SA = 214
    END = k.label("end")
    k("s_cmp_ge_u32 s2, 256")
    k("s_cbranch_scc1 %s" % END)
    k("s_load_dwordx4 s[4:7], s[0:1], 0")
    k("s_load_dwordx2 s[8:9], s[0:1], 72")
    k("""
    s_and_b32 s10, s2, 7
    s_lshr_b32 s11, s2, 3
    s_lshr_b32 s24, s10, 1
    s_lshl_b32 s24, s24, 2
    s_and_b32 s3, s11, 3
    s_add_u32 s24, s24, s3
    s_and_b32 s25, s10, 1
    s_lshl_b32 s25, s25, 3
    s_lshr_b32 s3, s11, 2
    s_add_u32 s25, s25, s3
    s_cmp_ge_u32 s25, 15
    """)
    WOJ = k.label("woj")
    k("s_cbranch_scc1 %s" % WOJ)
    LC = k.label("c")
    k("""
    v_lshrrev_b32 v1, 6, v0
    v_and_b32 v0, 63, v0
    v_readfirstlane_b32 s26, v1
    v_lshrrev_b32 v2, 3, v0
    v_lshrrev_b32 v3, 4, v0
    v_and_b32 v4, 7, v0
    s_cmp_lt_u32 s26, 4
    """)
    k("s_cbranch_scc1 %s" % LC)
    k("""
    s_sub_u32 s27, s26, 4
    s_lshl_b32 s29, s27, 12
    s_lshl_b32 s3, s24, 7
    s_lshl_b32 s10, s27, 5
    s_add_u32 s3, s3, s10
    """)
    k("v_add_u32 v5, s3, v2")
    k("s_movk_i32 s10, 1280")
    k("v_mul_lo_u32 v5, v5, s10")
    for i in range(4):
        k("v_add_u32 v6, %d, v3" % (4*i))
        k("v_and_b32 v6, 7, v6")
        k("v_xor_b32 v6, v6, v4")
        k("v_lshl_add_u32 v6, v6, 4, v5")
        k("v_add_u32 v%d, %d, v6" % (XD + i, i*8*1280 - i*1024))
    k("s_lshl_b32 s3, s27, 4")
    k("v_add_u32 v5, s3, v3")
    k("s_movk_i32 s10, 3840")
    k("v_mul_lo_u32 v5, v5, s10")
    k("v_and_b32 v6, 15, v0")
    k("v_lshlrev_b32 v7, 2, v3")
    k("v_xor_b32 v6, v6, v7")
    k("v_lshl_add_u32 v5, v6, 4, v5")
    k("s_lshl_b32 s3, s25, 8")
    k("v_add_u32 v5, s3, v5")
    for i in range(4):
        k("v_add_u32 v%d, %d, v5" % (WD_ + i, i*4*3840 - i*1024))
    k("s_waitcnt lgkmcnt(0)")
    k.ts(12)
    k.srd(12, 4, XB)
    k.srd(16, 6, WQKVB)
    vm = VM(k)
    def batch(g):
        slot = g % 5
        for h, (v, srd, so, val) in enumerate(((XD, 12, 30, 0 if opt.get('s1_fx') else g*128), (WD_, 16, 31, 0 if opt.get('s1_fw') else g*64*3840))):
            for i in range(4):
                L = []
                if i == 0: L = ["s_add_u32 m0, s29, %d" % (slot*32768 + h*16384), "s_mov_b32 s%d, %d" % (so, val)]
                L.append("buffer_load_dwordx4 v%d, s[%d:%d], s%d offen offset:%d %s lds" % (v + i, srd, srd + 3, so, i*1024, ldpol))
                vm.op(("b", g), *L)
    spec = str(opt.get("s1_sched", "D0,D1,B0,D2,B1,D3,D4,B2,D5,B3,D6,D7,B4,D8,B5,D9,B6,B7,B8,B9")).split(",")
    first = True; pfs = False
    for e in spec:
        if e[0] == "D": batch(int(e[1:]))
        elif e[0] == "B":
            j = int(e[1:])
            if first: k.ts(2); first = False
            vm.wait(("b", j))
            k("s_barrier")
            if j in (0, 1, 2, 3, 5, 7, 9): k.ts(3 + (0, 1, 2, 3, 5, 7, 9).index(j))
        else:
            if not pfs:
                pfs = True
                k("s_and_b32 s10, s2, 7")
                k("s_lshr_b32 s3, s10, 1")
                k("s_lshl_b32 s3, s3, 9")
                k("s_lshl_b32 s32, s11, 4")
                k("s_add_u32 s3, s3, s32")
                k("s_lshl_b32 s32, s27, 2")
                k("s_add_u32 s3, s3, s32")
                k("v_and_b32 v8, 3, v0")
                k("v_add_u32 v8, s3, v8")
                k("v_mul_u32_u24 v8, 1280, v8")
                k("v_lshrrev_b32 v9, 2, v0")
                k("v_lshl_add_u32 v8, v9, 7, v8")
                k("s_lshl_b32 s3, s11, 1")
                k("s_lshr_b32 s32, s27, 1")
                k("s_add_u32 s3, s3, s32")
                k("s_mul_i32 s3, s3, 3840")
                k("s_and_b32 s32, s10, 1")
                k("s_lshl_b32 s32, s32, 11")
                k("s_add_u32 s3, s3, s32")
                k("s_and_b32 s32, s27, 1")
                k("s_lshl_b32 s32, s32, 10")
                k("s_add_u32 s3, s3, s32")
                k("v_mov_b32 v10, 245760")
                k("v_mul_lo_u32 v9, v2, v10")
                k("v_lshl_add_u32 v9, v4, 7, v9")
                k("v_add_u32 v9, s3, v9")
            ga, gb = [int(x) for x in e[1:].split("-")]
            while ga <= gb:
                n = min(8, gb - ga + 1)
                k("s_mov_b64 exec, 0x%x" % ((1 << 4*n) - 1))
                k("s_movk_i32 s32, %d" % (ga*128))
                vm.op("pf", "buffer_load_dword v10, v8, s[12:15], s32 offen")
                if n <= 4: k("s_mov_b64 exec, 0x%x" % ((1 << 8*n) - 1))
                else:
                    k("s_mov_b32 exec_lo, -1")
                    k("s_mov_b32 exec_hi, 0x%x" % ((1 << 8*(n - 4)) - 1))
                k("s_mov_b32 s32, %d" % (ga*245760))
                vm.op("pf", "buffer_load_dword v11, v9, s[16:19], s32 offen")
                k("s_mov_b64 exec, -1")
                ga += n
    k("s_barrier")
    k.tsdump()
    k("s_endpgm")
    k.put(LC)
    k("""
    s_lshr_b32 s27, s26, 1
    s_and_b32 s28, s26, 1
    s_waitcnt lgkmcnt(0)
    """)
    k.srd(20, 8, AO)
    k("""
    v_and_b32 v8, 31, v0
    v_lshrrev_b32 v9, 5, v0
    v_lshrrev_b32 v10, 1, v8
    v_and_b32 v10, 7, v10
    s_lshl_b32 s3, s27, 1
    s_add_u32 s32, s3, s28
    s_xor_b32 s33, s32, 1
    s_lshl_b32 s3, s28, 1
    s_add_u32 s34, s3, s27
    s_xor_b32 s35, s34, 1
    """)
    for a in range(2):
        k("s_lshl_b32 s3, s%d, 12" % (32 + a))
        k("v_lshl_add_u32 v11, v8, 7, s3")
        for kk in range(4):
            k("v_add_u32 v12, %d, v9" % (2*kk))
            k("v_xor_b32 v12, v12, v10")
            k("v_lshl_add_u32 v%d, v12, 4, v11" % XA(0, a, kk))
            for c in (1, 2):
                k("v_add_u32 v%d, 0x%x, v%d" % (XA(c, a, kk), c*65536, XA(0, a, kk)))
    k("""
    v_lshrrev_b32 v11, 2, v0
    v_and_b32 v11, 3, v11
    v_lshl_add_u32 v12, v9, 3, v11
    v_lshlrev_b32 v12, 8, v12
    v_and_b32 v13, 1, v3
    v_lshlrev_b32 v13, 1, v13
    v_bfe_u32 v14, v0, 1, 1
    v_or_b32 v13, v13, v14
    v_and_b32 v14, 1, v0
    v_lshl_add_u32 v12, v14, 3, v12
    v_lshl_add_u32 v12, v13, 4, v12
    v_add_u32 v12, 0x4000, v12
    """)
    for b in range(2):
        k("v_xor_b32 v13, s%d, v11" % (34 + b))
        k("v_lshl_add_u32 v%d, v13, 6, v12" % WA(0, b))
        for c in (1, 2):
            k("v_add_u32 v%d, 0x%x, v%d" % (WA(c, b), c*65536, WA(0, b)))
    k("""
    v_xor_b32 v13, v0, v3
    v_and_b32 v13, 1, v13
    v_cmp_eq_u32 vcc, 0, v13
    v_mov_b32 v14, 0x3f803f80
    s_nop 0
    v_cndmask_b32 v140, 0, v14, vcc
    v_mov_b32 v141, v140
    v_mov_b32 v142, v140
    v_mov_b32 v143, v140
    """)
    for r in range(ACC, ACC + 76):
        k("v_mov_b32 v%d, 0" % r)
    LV = k.label("v"); LQK = k.label("qk"); LK = k.label("k"); LA = k.label("adr")
    k("s_mov_b32 s40, 1.0")
    k("s_cmp_ge_u32 s25, 10")
    k("s_cbranch_scc1 %s" % LV)

    def reads(p, s, kk):
        slot = s % 5; c = slot >> 1; o = (slot & 1)*32768
        return ["ds_read_b128 %s, v%d offset:%d" % (vr(XF(p, 0), 4), XA(c, 0, kk), o),
                "ds_read_b64_tr_b16 %s, v%d offset:%d" % (vr(WF(p, 0), 2), WA(c, 0), o + kk*4096),
                "ds_read_b64_tr_b16 %s, v%d offset:%d" % (vr(WF(p, 0) + 2, 2), WA(c, 0), o + kk*4096 + 1024),
                "ds_read_b64_tr_b16 %s, v%d offset:%d" % (vr(WF(p, 1), 2), WA(c, 1), o + kk*4096),
                "ds_read_b64_tr_b16 %s, v%d offset:%d" % (vr(WF(p, 1) + 2, 2), WA(c, 1), o + kk*4096 + 1024),
                "ds_read_b128 %s, v%d offset:%d" % (vr(XF(p, 1), 4), XA(c, 1, kk), o)]
    def mainloop(isv):
        def M(p, a, b):
            d = vr(ACC + (a*2 + b)*16, 16)
            x = vr(XF(p, a), 4); w = vr(WF(p, b), 4)
            A, B = (x, w) if isv else (w, x)
            return "v_mfma_f32_32x32x16_bf16 %s, %s, %s, %s" % (d, A, B, d)
        def stats(p):
            x = XF(p, 0); w = WF(p, 0)
            return ["v_mfma_f32_4x4x4_16b_bf16 %s, %s, %s, %s" % (vr(SQ, 4), vr(x, 2), vr(x, 2), vr(SQ, 4)),
                    "v_mfma_f32_16x16x32_bf16 %s, %s, %s, %s" % (vr(SX, 4), vr(SEL, 4), vr(x, 4), vr(SX, 4)),
                    "v_mfma_f32_16x16x32_bf16 %s, %s, %s, %s" % (vr(SW, 4), vr(SEL, 4), vr(w, 4), vr(SW, 4)),
                    "v_mfma_f32_4x4x4_16b_bf16 %s, %s, %s, %s" % (vr(SQ, 4), vr(x + 2, 2), vr(x + 2, 2), vr(SQ, 4))]
        k.ts(2)
        k("s_barrier")
        k.ts(3)
        for r in reads(0, 0, 0): k(r)
        p = 0
        n0 = len(k.L)
        pend = []
        for s in range(10):
            for kk in range(4):
                last = (s == 9 and kk == 3)
                st = stats(p)
                if kk < 3:
                    R = reads(p ^ 1, s, kk + 1)
                    k("s_waitcnt lgkmcnt(3)")
                    k(M(p, 0, 0)); k(R[0]); k(R[1]); k(R[2])
                    k("s_waitcnt lgkmcnt(4)")
                    k(M(p, 0, 1)); k(R[3]); k(R[4]); k(R[5])
                    k("s_waitcnt lgkmcnt(6)")
                    k(M(p, 1, 0))
                    for _ in range(2):
                        if pend:
                            for ln in pend.pop(0): k(ln)
                    k(M(p, 1, 1))
                    if pend:
                        for ln in pend.pop(0): k(ln)
                    for x in st: k(x)
                else:
                    assert not pend
                    k("s_waitcnt lgkmcnt(0)")
                    k(M(p, 0, 0)); k(M(p, 0, 1))
                    if not last:
                        k("s_barrier")
                        if s + 1 in (1, 2, 3, 5, 7, 9): k.ts(3 + (0, 1, 2, 3, 5, 7, 9).index(s + 1))
                        R = reads(p ^ 1, s + 1, 0)
                        k(M(p, 1, 0))
                        for r in R: k(r)
                        k(M(p, 1, 1))
                    else:
                        k(M(p, 1, 0)); k(M(p, 1, 1))
                    for x in st: k(x)
                p ^= 1
        dg = str(opt.get("s1_diag", ""))
        if dg:
            def keep(ln):
                if "S" in dg and (ln.startswith("v_mfma_f32_4x4") or ln.startswith("v_mfma_f32_16x16")): return False
                if "Q" in dg and ln.startswith("v_mfma_f32_4x4"): return False
                if "D" in dg and ln.startswith("ds_read"): return False
                if "T" in dg and ln.startswith("ds_read_b64"): return False
                if "X" in dg and ln.startswith("ds_read_b128"): return False
                if "M" in dg and ln.startswith("v_mfma_f32_32x32"): return False
                return True
            k.L[n0:] = [ln for ln in k.L[n0:] if keep(ln)]
        k.ts(10)
        k("s_nop 15")
        k("""
        v_and_b32 v13, 3, v0
        v_cmp_eq_u32 vcc, 1, v13
        v_cmp_eq_u32 s[42:43], 2, v13
        v_cmp_eq_u32 s[44:45], 3, v13
        v_and_b32 v14, 16, v0
        v_cmp_ne_u32 s[46:47], 0, v14
        v_cndmask_b32 v15, v132, v133, vcc
        v_cndmask_b32 v15, v15, v134, s[42:43]
        v_cndmask_b32 v15, v15, v135, s[44:45]
        v_cndmask_b32 v16, v128, v129, s[46:47]
        v_cndmask_b32 v17, v136, v137, s[46:47]
        v_mov_b32 v18, v15
        s_nop 1
        v_permlane32_swap_b32 v15, v18
        s_nop 1
        v_add_f32 v15, v15, v18
        """)
        k("v_mul_f32 v16, 0x%x, v16" % f2u(1.0/640))
        k("v_mul_f32 v15, 0x%x, v15" % f2u(1.0/640))
        k("v_fma_f32 v15, -v16, v16, v15")
        k("v_max_f32 v15, 0, v15")
        k("v_add_f32 v15, 0x%x, v15" % f2u(1e-5))
        k("v_rsq_f32 v15, v15")
        k("s_lshl_b32 s3, s32, 7")
        k("v_lshl_add_u32 v18, v8, 2, s3")
        k("v_mul_f32 v15, s40, v15")
        k("s_lshl_b32 s3, s34, 7")
        k("v_lshl_add_u32 v19, v8, 2, s3")
        k("ds_write_b32 v18, v16")
        k("ds_write_b32 v18, v15 offset:512")
        k("ds_write_b32 v19, v17 offset:1024")
        k("s_waitcnt lgkmcnt(0)")
        k("s_barrier")
        k.ts(11)

    k("s_cmp_ge_u32 s25, 5")
    k("s_cbranch_scc1 %s" % LK)
    k("s_mov_b32 s40, 0x%x" % f2u(QSCALE))
    k("s_mov_b32 s36, 81920")
    k("s_lshl_b32 s3, s24, 1")
    k("s_add_u32 s3, s3, s27")
    k("s_mul_i32 s37, s3, 2560")
    k("s_add_u32 s37, s37, 0x%x" % QS)
    k("s_movk_i32 s38, 1280")
    k("s_movk_i32 s39, 1024")
    k("s_movk_i32 s41, 1280")
    k("s_lshl_b32 s48, s25, 5")
    k("s_branch %s" % LA)
    k.put(LK)
    k("s_mov_b32 s36, 163840")
    k("s_lshl_b32 s3, s24, 1")
    k("s_add_u32 s3, s3, s27")
    k("s_mul_i32 s37, s3, 5120")
    k("s_add_u32 s37, s37, 0x%x" % KV)
    k("s_movk_i32 s38, 1024")
    k("s_movk_i32 s39, 2048")
    k("s_movk_i32 s41, 256")
    k("s_sub_u32 s48, s25, 5")
    k("s_lshl_b32 s48, s48, 5")
    k.put(LA)
    k("v_mov_b32 v20, s38")
    k("v_mov_b32 v21, s41")
    k("v_lshlrev_b32 v22, 4, v8")
    k("v_lshl_add_u32 v23, v8, 3, s39")
    k("s_cmp_eq_u32 s28, 0")
    k("s_cselect_b64 s[50:51], -1, 0")
    for b in range(2):
        k("s_lshl_b32 s3, s%d, 3" % (34 + b))
        k("s_add_u32 s3, s3, s48")
        for i in range(4):
            k("v_add_u32 v13, s3, v9")
            if i: k("v_add_u32 v13, %d, v13" % (2*i))
            k("v_mul_u32_u24 v14, 205, v13")
            k("v_lshrrev_b32 v14, 10, v14")
            k("v_mul_u32_u24 v15, 5, v14")
            k("v_sub_u32 v15, v13, v15")
            k("v_cmp_eq_u32 vcc, 4, v15")
            k("v_lshrrev_b32 v16, 1, v15")
            k("v_lshl_add_u32 v16, v16, 9, v22")
            k("v_and_b32 v17, 1, v15")
            k("v_lshl_add_u32 v16, v17, 3, v16")
            k("v_cndmask_b32 v16, v16, v23, vcc")
            k("v_cndmask_b32 v17, v20, v21, vcc")
            k("v_mul_lo_u32 v14, v14, s36")
            k("v_add3_u32 v16, v16, v14, s37")
            k("v_add_u32 v17, v16, v17")
            k("v_cndmask_b32 v%d, v17, v16, s[50:51]" % (SA + (0*2 + b)*4 + i))
            k("v_cndmask_b32 v%d, v16, v17, s[50:51]" % (SA + (1*2 + b)*4 + i))
    mainloop(False)
    for a in range(2):
        k("s_lshl_b32 s3, s%d, 7" % (32 + a))
        k("v_lshl_add_u32 v13, v8, 2, s3")
        k("ds_read_b32 v%d, v13" % (20 + 2*a))
        k("ds_read_b32 v%d, v13 offset:512" % (21 + 2*a))
    for b in range(2):
        k("s_lshl_b32 s3, s%d, 7" % (34 + b))
        k("v_lshl_add_u32 v13, v9, 4, s3")
        for i in range(4):
            k("ds_read_b128 %s, v13 offset:%d" % (vr(24 + 16*b + 4*i, 4), 1024 + 32*i))
    k("s_waitcnt lgkmcnt(0)")
    for a in range(2):
        for b in range(2):
            d = ACC + (a*2 + b)*16
            for i in range(4):
                for h in range(2):
                    r = d + 4*i + 2*h
                    k("v_pk_fma_f32 %s, %s, %s, %s op_sel:[0,0,0] op_sel_hi:[1,0,1] neg_lo:[0,1,0] neg_hi:[0,1,0]" % (vr(r, 2), vr(24 + 16*b + 4*i + 2*h, 2), vr(20 + 2*a, 2), vr(r, 2)))
                for h in range(2):
                    r = d + 4*i + 2*h
                    k("v_pk_mul_f32 %s, %s, %s op_sel:[0,1] op_sel_hi:[1,1]" % (vr(r, 2), vr(r, 2), vr(20 + 2*a, 2)))
                k("v_cvt_pk_bf16_f32 v%d, v%d, v%d" % (d + 4*i, d + 4*i, d + 4*i + 1))
                k("v_cvt_pk_bf16_f32 v%d, v%d, v%d" % (d + 4*i + 1, d + 4*i + 2, d + 4*i + 3))
                k("buffer_store_dwordx2 %s, v%d, s[20:23], 0 offen %s" % (vr(d + 4*i, 2), SA + (a*2 + b)*4 + i, stpol))
    k.tsdump()
    k("s_endpgm")
    k.put(LV)
    k("s_lshl_b32 s3, s24, 1")
    k("s_add_u32 s3, s3, s27")
    k("s_mul_i32 s37, s3, 5120")
    k("s_add_u32 s37, s37, 0x%x" % (KV + 2560))
    k("s_sub_u32 s48, s25, 10")
    k("s_lshl_b32 s48, s48, 7")
    k("s_mov_b32 s36, 163840")
    k("s_mul_i32 s38, s28, 1280")
    k("s_sub_u32 s39, 1280, s38")
    k("v_mul_u32_u24 v16, 320, v9")
    for b in range(2):
        k("s_lshl_b32 s3, s%d, 5" % (34 + b))
        k("s_add_u32 s3, s3, s48")
        k("v_add_u32 v13, s3, v8")
        k("v_mul_u32_u24 v14, 3277, v13")
        k("v_lshrrev_b32 v14, 16, v14")
        k("v_mul_u32_u24 v15, 20, v14")
        k("v_sub_u32 v15, v13, v15")
        k("v_lshl_add_u32 v15, v15, 4, v16")
        k("v_mul_lo_u32 v14, v14, s36")
        k("v_add3_u32 v15, v15, v14, s37")
        k("v_add_u32 v%d, s38, v15" % (SA + 0*2 + b))
        k("v_add_u32 v%d, s39, v15" % (SA + 1*2 + b))
    mainloop(True)
    for b in range(2):
        k("s_lshl_b32 s3, s%d, 7" % (34 + b))
        k("v_lshl_add_u32 v13, v8, 2, s3")
        k("ds_read_b32 v%d, v13 offset:1024" % (20 + 2*b))
    for a in range(2):
        k("s_lshl_b32 s3, s%d, 7" % (32 + a))
        k("v_lshl_add_u32 v13, v9, 4, s3")
        mu = 24 if a == 0 else 144
        rr = 40 if a == 0 else 160
        for i in range(4):
            k("ds_read_b128 %s, v13 offset:%d" % (vr(mu + 4*i, 4), 32*i))
            k("ds_read_b128 %s, v13 offset:%d" % (vr(rr + 4*i, 4), 512 + 32*i))
        if a == 0: k("s_waitcnt lgkmcnt(4)")
    k("s_waitcnt lgkmcnt(0)")
    for a in range(2):
        mu = 24 if a == 0 else 144
        rr = 40 if a == 0 else 160
        for b in range(2):
            d = ACC + (a*2 + b)*16
            for j in range(2):
                for h in range(4):
                    o = 8*j + 2*h
                    k("v_pk_fma_f32 %s, %s, %s, %s op_sel:[0,0,0] op_sel_hi:[1,0,1] neg_lo:[0,1,0] neg_hi:[0,1,0]" % (vr(d + o, 2), vr(mu + o, 2), vr(20 + 2*b, 2), vr(d + o, 2)))
                for h in range(4):
                    o = 8*j + 2*h
                    k("v_pk_mul_f32 %s, %s, %s" % (vr(d + o, 2), vr(d + o, 2), vr(rr + o, 2)))
                for h in range(4):
                    k("v_cvt_pk_bf16_f32 v%d, v%d, v%d" % (d + 8*j + h, d + 8*j + 2*h, d + 8*j + 2*h + 1))
                k("buffer_store_dwordx4 %s, v%d, s[20:23], 0 offen offset:%d %s" % (vr(d + 8*j, 4), SA + a*2 + b, j*640, stpol))
    k.tsdump()
    k.put(END)
    k("s_endpgm")
    k.put(WOJ)
    k("s_load_dwordx2 s[44:45], s[0:1], 16")
    k("v_lshrrev_b32 v1, 6, v0")
    k("v_and_b32 v0, 63, v0")
    k("v_readfirstlane_b32 s26, v1")
    k("s_lshl_b32 s27, s24, 3")
    k("s_add_u32 s27, s27, s26")
    for i in range(2):
        k("s_add_u32 s50, s27, %d" % (128*i))
        side_addr_wo(k, 20 + i, 24 + 2*i)
    k("s_waitcnt lgkmcnt(0)")
    k.srd(36, 44, WOB)
    k.srd(16, 8, WS_END)
    for i in range(2):
        side_loads(k, 32 + 16*i, "", 24 + 2*i)
    for i in range(2):
        k("s_waitcnt vmcnt(%d)" % (8 - 4*i))
        side_stores(k, 32 + 16*i, 96 + 16*i, 20 + i, "")
    k("s_endpgm")
    return k
```

```python
from asmlib import *
from lay import *
from gemm import VM, qreduce

class LG:
    def __init__(self, k):
        self.k = k; self.tags = []; self.done = -1
    def op(self, tag, line):
        self.k(line); self.tags.append(tag)
    def wait(self, *tags):
        idx = max(max(i for i, t in enumerate(self.tags) if t == tag) for tag in tags)
        if idx <= self.done: return
        n = len(self.tags) - 1 - idx
        self.k("s_waitcnt lgkmcnt(%d)" % min(n, 15))
        self.done = idx if n <= 15 else len(self.tags) - 16

def emit_ops(k, vm, tag, ops, pre=(), base=None):
    m0 = None
    pre = list(pre)
    for (a, v, srd, so, io) in ops:
        L = []
        if m0 != a - io:
            m0 = a - io
            L.append("s_mov_b32 m0, %d" % m0 if base is None else "s_add_u32 m0, s%d, %d" % (base, m0))
            first = True
            L += pre if pre else ["s_nop 0"]
            pre = []
        L.append("buffer_load_dwordx4 v%d, s[%d:%d], s%d offen offset:%d lds" % (v, srd, srd + 3, so, io))
        vm.op(tag, *L)

def loader(k, NG, NSLOT, D0, DM, batch, after, tails, tsj=(), xat=None, prebar=None):
    vm = VM(k)
    st = {"n": 0}
    def upto(g):
        while st["n"] <= min(g, NG - 1):
            batch(vm, st["n"])
            if st["n"] in after: after[st["n"]](vm)
            st["n"] += 1
    def bar(vm, j):
        if prebar and j in prebar: prebar[j](vm)
        vm.wait(("b", j))
        k("s_barrier")
        if j in tsj: k.ts(3 + list(tsj).index(j))
    upto(D0 - 1)
    k.ts(2)
    j = 0
    while st["n"] < NG:
        bar(vm, j)
        upto(min(j + D0 + (j + 1)//2, j + DM, j - 2 + NSLOT))
        j += 1
    LB = k.label("tb")
    k("s_cmp_eq_u32 s26, 5")
    k("s_cbranch_scc1 %s" % LB)
    for w, (extra, post) in enumerate(tails):
        if w: k.put(LB)
        v2 = VM(k); v2.tags = list(vm.tags)
        if xat is None:
            if extra: extra(v2)
            for jj in range(j, NG): bar(v2, jj)
        else:
            for p, a in enumerate(xat):
                if a < j and extra: extra(v2, p, len(xat))
            for jj in range(j, NG):
                bar(v2, jj)
                for p, a in enumerate(xat):
                    if a == jj and extra: extra(v2, p, len(xat))
        if post: post(v2)
        k("s_waitcnt vmcnt(0)")
        k.tsdump()
        k("s_endpgm")

def loader_setup(k, NA, KSB, tokoff, short=None):
    LB = k.label("sb"); LJ = k.label("sj")
    if PRIO[0] < 0: k("s_setprio %d" % -PRIO[0])
    k("s_cmp_eq_u32 s26, 5")
    k("s_cbranch_scc1 %s" % LB)
    RA = []
    for i in range(NA):
        k("v_add_u32 v%d, %d, v1" % (8 + i, (i - i % 4)*1024))
        if short and short[1] == i: k("v_subrev_u32 v%d, s%d, v%d" % (8 + i, short[0], 8 + i))
    k("s_mov_b32 s30, s28")
    k("s_mov_b32 s27, %d" % KSB[0])
    k("s_mov_b32 s29, 0")
    k("s_branch %s" % LJ)
    k.put(LB)
    for i in range(NA):
        o = tokoff(i) if i < 8 else (NA + i - 8)*1024
        k("v_add_u32 v%d, %d, v1" % (8 + i, o - (i % 4)*1024))
        if short and i >= 8 and short[2] == NA + i - 8: k("v_subrev_u32 v%d, s%d, v%d" % (8 + i, short[0], 8 + i))
    k("s_mov_b32 s27, %d" % KSB[1])
    k("s_mov_b32 s29, %d" % (NA*1024))
    k.put(LJ)
    k("s_waitcnt lgkmcnt(0)")
    k.ts(11)
    k.srd(12, 8, WS_END)

def std_batch(k, NA, NSLOT, SL, WS):
    def b(vm, g):
        a = (g % NSLOT)*SL
        emit_ops(k, vm, ("b", g), [(a + i*1024, 8 + i, 12, 30 if i < 8 else 28, (i % 4)*1024) for i in range(NA)],
                 ["s_add_u32 s30, s30, s27", "s_add_u32 s28, s28, %d" % WS] if g else [], 29)
    return b

def coop_pf(k, after, spec, g0, gmax, np_, member, lsh, tstride, gstride, half=False):
    st = {"i": 0}
    def mk(n, prev):
        def f(vm):
            if prev: prev(vm)
            if st["i"] == 0:
                member(k)
                if half:
                    k("s_add_u32 s56, s3, %d" % g0)
                    k("s_lshl_b32 s3, s26, 1")
                    k("v_lshrrev_b32 v46, %d, v0" % lsh)
                    k("v_add_u32 v46, s3, v46")
                    k("v_and_b32 v46, 3, v46")
                else:
                    k("s_lshl_b32 s3, s3, 1")
                    k("s_add_u32 s3, s3, s26")
                    k("s_add_u32 s56, s3, %d" % (g0 - 4))
                    k("v_lshrrev_b32 v46, %d, v0" % lsh)
                k("v_and_b32 v47, %d, v0" % ((1 << lsh) - 1))
                k("v_mul_u32_u24 v46, %d, v46" % tstride)
                k("v_lshl_add_u32 v46, v47, 7, v46")
            for _ in range(n):
                k("s_add_u32 s3, s56, %d" % (np_*st["i"]))
                k("s_min_u32 s3, s3, %d" % gmax)
                k("s_mul_i32 s3, s3, %d" % gstride)
                k("s_add_u32 s3, s3, s57")
                if half: k("s_mov_b32 exec_hi, 0")
                vm.op("pf", "buffer_load_dword v47, v46, s[12:15], s3 offen")
                if half: k("s_mov_b64 exec, -1")
                st["i"] += 1
        return f
    for e in str(spec).split(","):
        if not e: continue
        a, n = e.split(":")
        after[int(a)] = mk(int(n), after.get(int(a)))
    return after

def stat_load(k, tt, dst, n):
    k("s_lshl_b32 s37, s%d, 10" % tt)
    k("s_add_u32 s37, s37, 0x%x" % ST)
    k("v_lshlrev_b32 v20, 6, v2")
    k("v_lshl_add_u32 v20, v3, 4, v20")
    return ["buffer_load_dwordx4 %s, v20, s[12:15], s37 offen offset:%d" % (vr(dst + 4*j, 4), 1024*j) for j in range(n)]

def consumer(k, F, T, GK, acc, wf, NB, tok, waddr, taddr, LA, LOOK, hooks=None, tsj=()):
    hooks = hooks or {}
    lg = LG(k)
    R = []; seen = set()
    for f, (ks, n) in enumerate(F):
        if ks not in seen:
            seen.add(ks)
            for j in range(T): R.append(("t", ks, j))
        R.append(("w", f))
    pos = {r: i for i, r in enumerate(R)}
    st = {"nr": 0, "g": -1}
    def rd_upto(i):
        while st["nr"] <= min(i, len(R) - 1):
            r = R[st["nr"]]
            ks = r[1] if r[0] == "t" else F[r[1]][0]
            while ks//GK > st["g"]:
                st["g"] += 1
                k("s_barrier")
                if st["g"] in tsj: k.ts(3 + list(tsj).index(st["g"]))
                if ("sync", st["g"]) in hooks: hooks[("sync", st["g"])](lg)
            if r[0] == "t":
                a = taddr(ks, r[2]); v = LA[1]; d = tok(ks, r[2])
            else:
                a = waddr(*F[r[1]]); v = LA[0]; d = wf(r[1] % NB)
            lg.op(r, "ds_read_b128 %s, v%d offset:%d" % (d, v + (a >> 16), a & 0xffff))
            st["nr"] += 1
    first = set()
    for f, (ks, n) in enumerate(F):
        rd_upto(pos[("w", f)] + LOOK)
        lg.wait(("w", f))
        for j in range(T):
            k("v_mfma_f32_16x16x32_bf16 %s, %s, %s, %s" % (acc(n, j), wf(f % NB), tok(ks, j), acc(n, j) if n in first else "0"))
            if ("m", f, j) in hooks: hooks[("m", f, j)](lg)
        first.add(n)
        if ("f", f) in hooks: hooks[("f", f)](lg)
    k.ts(12)
    return lg

def head(k, END, ptrs):
    k("s_cmp_ge_u32 s2, 256")
    k("s_cbranch_scc1 %s" % END)
    for (s, o) in ptrs: k("s_load_dwordx2 s[%d:%d], s[0:1], %d" % (s, s + 1, o))
    k("""
    v_lshrrev_b32 v1, 6, v0
    v_and_b32 v0, 63, v0
    v_readfirstlane_b32 s26, v1
    v_lshlrev_b32 v1, 4, v0
    s_and_b32 s10, s2, 7
    s_lshr_b32 s11, s2, 3
    """)

PRIO = [0]
def lane_setup(k, toff):
    if PRIO[0] > 0: k("s_setprio %d" % PRIO[0])
    k("""
    v_and_b32 v2, 15, v0
    v_lshrrev_b32 v3, 4, v0
    v_mov_b32 v4, v1
    v_add_u32 v5, 0x10000, v1
    v_add_u32 v6, 0x20000, v1
    """)
    k("s_mul_i32 s3, s26, %d" % toff)
    for i in range(3): k("v_add_u32 v%d, s3, v%d" % (7 + i, 4 + i))

def tile_offsets(k, n):
    for i in range(n):
        k("s_add_u32 s3, s41, %d" % i)
        k("s_lshr_b32 s42, s3, 1")
        k("s_lshl_b32 s42, s42, 10")
        k("s_and_b32 s3, s3, 1")
        k("s_lshl_b32 s3, s3, 3")
        k("s_add_u32 s42, s42, s3")
        k("s_add_u32 s%d, s42, s40" % (44 + i))

def qreduce2(k, a, b, t, u):
    for op in ("v_permlane16_swap_b32", "v_permlane32_swap_b32"):
        k("v_mov_b32 v%d, v%d" % (t, a))
        k("v_mov_b32 v%d, v%d" % (u, b))
        k("s_nop 0")
        k("%s v%d, v%d" % (op, a, t))
        k("%s v%d, v%d" % (op, b, u))
        k("s_nop 0")
        k("v_add_f32 v%d, v%d, v%d" % (a, a, t))
        k("v_add_f32 v%d, v%d, v%d" % (b, b, u))

def n5_addr(NSLOT, SL):
    def waddr(ks, n):
        i = (ks & 1)*5 + n
        return ((ks//2) % NSLOT)*SL + (i*1024 if i < 9 else 17408)
    def taddr(ks, j):
        return ((ks//2) % NSLOT)*SL + 9216 + (ks & 1)*1024
    return waddr, taddr

def gen_s3(opt=None):
    opt = opt or {}
    PRIO[0] = opt.get("prio", 0)
    stpol = opt.get("s3_stpol", "")
    NSLOT = 8; SL = 18432; XL = NSLOT*SL
    k = Kern("s3_wo_kernel", 256, 384, XL + 10240, nv=128)
    k.tson = opt.get("ts", 0); k.kid = 2
    k.ts(0, True); k.ts(1)
    END = k.label("end"); LC = k.label("c")
    ACC = 32; WF = 52; NB = 8; TOK = 84; ONES = 28
    head(k, END, [(8, 72), (4, 0)])
    k("""
    s_and_b32 s3, s10, 1
    s_lshl_b32 s24, s3, 4
    s_lshr_b32 s3, s10, 1
    s_lshl_b32 s3, s3, 2
    s_add_u32 s24, s24, s3
    s_and_b32 s3, s11, 3
    s_add_u32 s24, s24, s3
    s_lshl_b32 s24, s24, 2
    s_lshr_b32 s25, s11, 2
    """)
    k("s_cmp_lt_u32 s26, 4")
    k("s_cbranch_scc1 %s" % LC)
    k("s_mul_i32 s28, s25, %d" % (100*1024))
    k("s_add_u32 s28, s28, 0x%x" % WO)
    k("s_mul_i32 s30, s24, %d" % (20*1024))
    k("s_add_u32 s30, s30, 0x%x" % AO)
    k("s_mov_b32 s57, s30")
    loader_setup(k, 9, (10240, 2048), lambda i: (i >> 1)*20480 + (i & 1)*1024)
    XV = 17; CF = 32; CA = 24
    def setup2(vm):
        k.srd(16, 4, XB)
        k("s_lshl_b32 s3, s24, 4")
        k("s_mul_i32 s31, s3, 1280")
        k("s_mul_i32 s3, s25, 160")
        k("s_add_u32 s31, s31, s3")
        k("s_sub_u32 s39, s26, 4")
        k("s_mul_i32 s3, s39, 320")
        k("s_mul_i32 s38, s39, 5120")
        k("v_add_u32 v43, s3, v0")
        for n in range(5):
            k("v_add_u32 v40, %d, v43" % (64*n))
            k("v_mul_u32_u24 v41, 6554, v40")
            k("v_lshrrev_b32 v41, 16, v41")
            k("v_mul_u32_u24 v42, 10, v41")
            k("v_sub_u32 v40, v40, v42")
            k("v_mul_u32_u24 v41, 1280, v41")
            k("v_lshl_add_u32 v%d, v40, 4, v41" % (XV + n))
        if opt.get("csp", 1): return
        k("""
        s_xor_b32 s3, s10, s39
        s_and_b32 s3, s3, 1
        s_lshl_b32 s3, s3, 5
        s_add_u32 s32, s3, s11
        s_min_u32 s33, s32, 55
        s_mul_i32 s34, s33, 4682
        s_lshr_b32 s34, s34, 16
        s_mul_i32 s3, s34, 14
        s_sub_u32 s33, s33, s3
        s_lshr_b32 s3, s10, 1
        s_lshl_b32 s3, s3, 2
        s_add_u32 s35, s3, s34
        s_mul_i32 s36, s35, 14
        s_add_u32 s36, s36, s33
        s_lshl_b32 s36, s36, 6
        s_cmp_eq_u32 s33, 6
        s_cselect_b32 s3, 1, 0
        s_cmp_eq_u32 s33, 13
        s_cselect_b32 s3, 1, s3
        s_cmp_eq_u32 s34, 3
        s_cselect_b32 s3, s3, 0
        s_sub_u32 s33, s33, s3
        s_mul_i32 s37, s35, 280
        s_add_u32 s37, s37, s33
        s_lshl_b32 s37, s37, 10
        """)
        k("s_add_u32 s37, s37, 0x%x" % GU)
        k("s_add_u32 s36, s36, 0x%x" % CS)
        for r in range(4): k("v_mov_b32 v%d, 0x3f803f80" % (ONES + r))
    def xload(vm):
        emit_ops(k, vm, "x", [(XL + n*1024, XV + n, 16, 31, 0) for n in range(5)], base=38)
    def cload(vm, p=0, n=1):
        for s in range(20*p//n, 20*(p + 1)//n):
            if opt.get("s3_nocl"):
                vm.op(("c", s), "s_nop 0"); continue
            vm.op(("c", s), "buffer_load_dwordx4 %s, v1, s[12:15], s37 offen" % vr(CF + 4*s, 4))
            if s < 19: k("s_add_u32 s37, s37, %d" % (14*1024))
    def ctail(vm):
        for s in range(20):
            if s % 5 == 0: vm.wait(("c", s + 4))
            k("v_mfma_f32_16x16x32_bf16 %s, %s, %s, %s" % (vr(CA, 4), vr(CF + 4*s, 4), vr(ONES, 4), vr(CA, 4) if s else "0"))
        E2 = k.label("e2")
        k("s_cmp_lt_u32 s32, 56")
        k("s_cbranch_scc0 %s" % E2)
        k("v_and_b32 v2, 0x300, v1")
        k("v_lshrrev_b32 v2, 4, v2")
        k("s_mov_b32 s38, 0x00010001")
        k("s_mov_b32 s39, 0x00010001")
        k("s_mov_b64 exec, s[38:39]")
        k("s_nop 7")
        k("buffer_store_dwordx4 %s, v2, s[12:15], s36 offen %s" % (vr(CA, 4), stpol))
        k.put(E2)
    def gupf(vm, p=0, np_=1):
        if not opt.get("s3_pf", 1): return
        for n in range(3*p//np_, 3*(p + 1)//np_):
            k("v_add_u32 v40, %d, v0" % (64*n))
            if n == 2: k("v_min_u32 v40, 159, v40")
            k("v_lshrrev_b32 v41, 3, v40")
            k("v_and_b32 v40, 7, v40")
            k("v_mul_u32_u24 v41, 14336, v41")
            k("v_lshl_add_u32 v40, v40, 7, v41")
            vm.op("pf", "buffer_load_dword v%d, v40, s[12:15], s37 offen" % (44 + n))
    d0 = opt.get("s3_d0", 3)
    tsj = [0, 1, 2, 4, 6, 8, 9]
    aft = coop_pf(k, {}, opt.get("s3_cp", ""), opt.get("s3_cp0", 2), 9, 8, lambda k: k("s_mov_b32 s3, s25"), 4, 20480, 2048, True)
    for g, fn in ((opt.get("s3_su", d0 - 1), setup2), (opt.get("s3_xa", 7), xload)):
        aft[g] = (lambda a, b: lambda vm: (a(vm), b(vm)))(aft[g], fn) if g in aft else fn
    def gpf2(vm, p=0, np_=1):
        for n in range(opt.get("s3_gpf", 0)):
            k("s_lshl_b32 s3, s11, 1")
            k("s_add_u32 s3, s3, s26")
            k("s_add_u32 s3, s3, %d" % (64*n - 4))
            k("s_lshl_b32 s3, s3, 6")
            k("v_add_u32 v40, s3, v0")
            k("v_lshrrev_b32 v41, 4, v40")
            k("v_mul_u32_u24 v41, 9363, v41")
            k("v_lshrrev_b32 v41, 16, v41")
            k("v_mul_u32_u24 v42, 112, v41")
            k("v_sub_u32 v40, v40, v42")
            k("v_and_b32 v42, 3, v41")
            k("v_lshrrev_b32 v41, 2, v41")
            k("v_mul_u32_u24 v42, %d, v42" % (280*8))
            k("v_mul_u32_u24 v41, 112, v41")
            k("v_add3_u32 v40, v40, v41, v42")
            k("v_lshlrev_b32 v40, 7, v40")
            k("s_lshr_b32 s3, s10, 1")
            k("s_mul_i32 s3, s3, %d" % (4*280*1024))
            k("s_add_u32 s3, s3, 0x%x" % GU)
            vm.op("pf", "buffer_load_dword v%d, v40, s[12:15], s3 offen" % (44 + n))
    csp = opt.get("csp", 1)
    loader(k, 10, NSLOT, d0, opt.get("s3_dm", 4), std_batch(k, 9, NSLOT, SL, 10240), aft,
           [(gpf2, None), (gpf2, None)] if csp else [(cload, ctail), (gupf, None)], tsj,
           [int(x) for x in str(opt["s3_xat"]).split("x")] if "s3_xat" in opt else None)
    k.put(LC)
    lane_setup(k, 2048)
    k("s_add_u32 s24, s24, s26")
    k("v_mov_b32 v%d, 0x3f803f80" % ONES)
    k("s_mul_i32 s3, s26, 2560")
    k("s_add_u32 s3, s3, %d" % XL)
    k("v_mul_u32_u24 v20, 160, v2")
    k("v_lshl_add_u32 v20, v3, 3, v20")
    k("v_add_u32 v20, s3, v20")
    k("s_mul_i32 s40, s24, 20480")
    k("s_add_u32 s40, s40, 0x%x" % HF)
    k("s_mul_i32 s41, s25, 5")
    tile_offsets(k, 5)
    k("s_lshl_b32 s3, s24, 10")
    k("s_lshl_b32 s43, s25, 3")
    k("s_add_u32 s43, s43, s3")
    k("s_add_u32 s43, s43, 0x%x" % ST)
    k("v_lshlrev_b32 v21, 6, v2")
    k("v_mov_b32 v24, 0")
    k("v_mov_b32 v25, 0")
    k("s_waitcnt lgkmcnt(0)")
    k.srd(12, 8, WS_END)
    k.ts(2)
    XR = 100; XU = 108
    def xread(lg):
        for i in range(5): lg.op("x", "ds_read_b64 %s, v20 offset:%d" % (vr(XR + 2*i, 2), 32*i))
    def xunp(i):
        def f(lg):
            x = XR + 2*i; u = XU + 4*i
            k("v_lshlrev_b32 v%d, 16, v%d" % (u + 2, x + 1))
            k("v_and_b32 v%d, 0xffff0000, v%d" % (u + 3, x + 1))
            k("v_and_b32 v%d, 0xffff0000, v%d" % (u + 1, x))
            k("v_lshlrev_b32 v%d, 16, v%d" % (u, x))
        return f
    F = [(ks, n) for ks in range(20) for n in range(5)]
    hooks = {("sync", 9): xread}
    for i in range(5): hooks[("f", 95 + i)] = xunp(4 - i)
    wa, ta = n5_addr(NSLOT, SL)
    consumer(k, F, 1, 2, lambda n, j: vr(ACC + 4*n, 4), lambda b: vr(WF + 4*b, 4), NB, lambda ks, j: vr(TOK + 4*(ks & 3), 4),
             wa, ta, (4, 7), opt.get("s3_look", 5), hooks, tsj)
    for i in range(5):
        a = ACC + 4*i
        k("v_pk_add_f32 %s, %s, %s" % (vr(a, 2), vr(a, 2), vr(XU + 4*i, 2)))
        k("v_pk_add_f32 %s, %s, %s" % (vr(a + 2, 2), vr(a + 2, 2), vr(XU + 4*i + 2, 2)))
        k("v_cvt_pk_bf16_f32 v%d, v%d, v%d" % (a, a, a + 1))
        k("v_cvt_pk_bf16_f32 v%d, v%d, v%d" % (a + 1, a + 2, a + 3))
        k("buffer_store_dwordx2 %s, v1, s[12:15], s%d offen %s" % (vr(a, 2), 44 + i, stpol))
    for i in range(5):
        a = ACC + 4*i
        for h in range(2):
            k("v_dot2c_f32_bf16 v24, v%d, v%d" % (a + h, ONES))
            k("v_dot2c_f32_bf16 v25, v%d, v%d" % (a + h, a + h))
    k("s_nop 2")
    qreduce2(k, 24, 25, 22, 23)
    k("s_mov_b64 exec, 0xffff")
    k("buffer_store_dwordx2 v[24:25], v21, s[12:15], s43 offen %s" % stpol)
    k.tsdump()
    k.put(END)
    k("s_endpgm")
    return k

def gen_s4(opt=None):
    opt = opt or {}
    stpol = opt.get("s4_stpol", "")
    NSLOT = 7; SL = 22528; CL = NSLOT*SL
    LT = opt.get("s4_lt", 4)
    k = Kern("s4_gu_kernel", 256, 384, CL + 1024, nv=240)
    k.tson = opt.get("ts", 0); k.kid = 3
    k.ts(0, True); k.ts(1)
    END = k.label("end"); LC = k.label("c")
    ACC = 32; WF = 144; NB = 8; TOK = 176; NT = max(LT, 2); CSV = TOK + 8*NT; STV = CSV
    assert CSV + 16 <= 240
    head(k, END, [(8, 72)])
    k("""
    s_and_b32 s3, s10, 1
    s_lshl_b32 s24, s3, 3
    s_and_b32 s3, s11, 7
    s_add_u32 s24, s24, s3
    s_lshl_b32 s24, s24, 3
    s_lshr_b32 s34, s11, 3
    s_lshr_b32 s33, s10, 1
    s_lshl_b32 s25, s33, 2
    s_add_u32 s25, s25, s34
    """)
    k("s_cmp_lt_u32 s26, 4")
    k("s_cbranch_scc1 %s" % LC)
    k("s_mul_i32 s28, s25, %d" % (280*1024))
    k("s_add_u32 s28, s28, 0x%x" % GU)
    k("s_mul_i32 s30, s24, %d" % (20*1024))
    k("s_add_u32 s30, s30, 0x%x" % HF)
    k("s_cmp_eq_u32 s34, 3")
    k("s_cselect_b32 s36, 1024, 0")
    k("s_mov_b32 s57, s30")
    loader_setup(k, 11, (14336, 1024), lambda i: i*20480, (36, 6, 13))
    csp = opt.get("csp", 1)
    def csload(vm):
        if not csp:
            k("s_mul_i32 s38, s25, 896")
            k("s_add_u32 s38, s38, 0x%x" % CS)
            emit_ops(k, vm, "cs", [(CL, 1, 12, 38, 0)])
            return
        k("s_mul_i32 s38, s25, 17920")
        k("s_mul_i32 s39, s26, 448")
        k("s_add_u32 s38, s38, s39")
        k("s_add_u32 s38, s38, 0x%x" % (CS - 4*448))
        k("v_and_b32 v20, 31, v0")
        k("v_min_u32 v20, 27, v20")
        k("v_lshlrev_b32 v20, 4, v20")
        k("v_lshrrev_b32 v21, 5, v0")
        k("v_mul_u32_u24 v21, 0x380, v21")
        k("v_add_u32 v21, v21, v20")
        k("s_add_u32 s39, s39, %d" % (CL - 4*448))
        k("v_add_u32 v20, s39, v20")
        for p in range(10):
            pre = ["s_add_u32 s38, s38, 5376"] if p and p % 3 == 0 else []
            vm.op("cs", *(pre + ["buffer_load_dwordx4 %s, v21, s[12:15], s38 offen offset:%d" % (vr(48 + 4*p, 4), 1792*(p % 3))]))
    def csred(vm):
        vm.wait("cs")
        for st in (5, 2, 1):
            for p in range(st):
                for r in range(4): k("v_add_f32 v%d, v%d, v%d" % (48 + 4*p + r, 48 + 4*p + r, 48 + 4*(p + st) + r))
        for r in range(4): k("v_add_f32 v%d, v%d, v%d" % (48 + r, 48 + r, 64 + r))
        for r in range(4): k("v_mov_b32 v%d, v%d" % (52 + r, 48 + r))
        k("s_nop 0")
        for r in range(4): k("v_permlane32_swap_b32 v%d, v%d" % (48 + r, 52 + r))
        k("s_nop 0")
        for r in range(4): k("v_add_f32 v%d, v%d, v%d" % (48 + r, 48 + r, 52 + r))
        k("ds_write_b128 v20, v[48:51]")
        k("s_waitcnt lgkmcnt(0)")
    def wdpf(h):
        def f(vm):
            if not opt.get("s4_pf", 1): return
            k("s_bfe_u32 s3, s10, 0x10001")
            k("s_lshl_b32 s3, s3, 5")
            k("s_add_u32 s3, s3, s11")
            k("s_mul_i32 s38, s3, 34560")
            k("s_add_u32 s38, s38, 0x%x" % (WD + h*16384))
            k("v_lshlrev_b32 v40, 7, v0")
            k("v_add_u32 v41, 8192, v40")
            vm.op("pf", "buffer_load_dword v44, v40, s[12:15], s38 offen")
            vm.op("pf", "buffer_load_dword v45, v41, s[12:15], s38 offen")
            if h == 0:
                k("v_min_u32 v42, 13, v0")
                k("v_lshlrev_b32 v42, 7, v42")
                k("s_add_u32 s38, s38, 32768")
                vm.op("pf", "buffer_load_dword v46, v42, s[12:15], s38 offen")
        return f
    d0 = opt.get("s4_d0", 2)
    tsj = [0, 1, 2, 4, 8, 12, 16, 19]
    WB = [int(x) for x in str(opt.get("s4_wb", "")).split("x") if x]
    def wbtail(h):
        def f(vm):
            for n, i in enumerate(WB):
                k("s_barrier")
                if h == 0:
                    L = k.label("wb")
                    k("s_cmp_lg_u32 s11, %d" % n)
                    k("s_cbranch_scc1 %s" % L)
                    k("buffer_wbl2 sc1")
                    k.put(L)
        return f
    loader(k, 20, NSLOT, d0, opt.get("s4_dm", 5), std_batch(k, 11, NSLOT, SL, 14336),
           coop_pf(k, {opt.get("s4_csl", 19): csload} if csp else {6: csload}, opt.get("s4_cp", ""), opt.get("s4_cp0", 4), 19, 8, lambda k: k("s_mov_b32 s3, s34"), 3, 20480, 1024),
           [(wdpf(0), wbtail(0)), (wdpf(1), wbtail(1))], tsj, None, {opt.get("s4_csr", 19): csred} if csp else None)
    k.put(LC)
    lane_setup(k, 2048)
    k("s_lshl_b32 s3, s26, 1")
    k("s_add_u32 s24, s24, s3")
    L = stat_load(k, 24, STV, 2)
    k("s_mul_i32 s41, s33, 27")
    k("s_mul_i32 s3, s34, 7")
    k("s_add_u32 s41, s41, s3")
    k("s_mul_i32 s40, s24, %d" % (54*1024))
    k("s_add_u32 s40, s40, 0x%x" % HH)
    k("v_add_u32 v10, %d, v1" % (54*1024))
    k("v_lshlrev_b32 v21, 4, v3")
    k("v_add_u32 v21, %d, v21" % CL)
    tile_offsets(k, 7)
    k("s_waitcnt lgkmcnt(0)")
    k.srd(12, 8, WS_END)
    k.ts(2)
    F = [(ks, n) for ks in range(20 - LT) for n in range(14)]
    f0 = len(F)
    F += [(ks, n) for i in range(7) for ks in range(20 - LT, 20) for n in (i, i + 7)]
    def put(lines, w=None):
        def f(lg):
            if w: lg.wait(w)
            for ln in lines: k(ln)
        return f
    def stats(lg):
        k("s_waitcnt vmcnt(0)")
        k("v_add_f32 v22, v%d, v%d" % (STV, STV + 2))
        k("v_add_f32 v23, v%d, v%d" % (STV + 4, STV + 6))
        qreduce2(k, 22, 23, 24, 25)
        k("v_mul_f32 v22, 0x%x, v22" % f2u(-1.0/640))
        k("v_mul_f32 v23, 0x%x, v23" % f2u(-1.0/640))
    hooks = {("f", 30): put(L[:1]), ("f", 36): put(L[1:]), ("f", 120): stats}
    def csread(i):
        def f(lg):
            for h in range(2):
                lg.op(("cs", i), "ds_read_b128 %s, v21 offset:%d" % (vr(CSV + 8*(i & 1) + 4*h, 4), 64*(i + 7*h)))
        return f
    def epi(i):
        O = []
        c = CSV + 8*(i & 1)
        for j in range(2):
            g = ACC + 8*i + 4*j
            O += ["v_fma_f32 v%d, v%d, v%d, v%d" % (g + r, c + r, 22 + j, g + r) for r in range(4)]
            O += ["v_max_f32 v%d, 0, v%d" % (g + r, g + r) for r in range(4)]
        for j in range(2):
            g = ACC + 8*i + 4*j; u = g + 56
            O += ["v_fma_f32 v%d, v%d, v%d, v%d" % (u + r, c + 4 + r, 22 + j, u + r) for r in range(4)]
            O += ["v_mul_f32 v%d, v%d, v%d" % (g + r, g + r, u + r) for r in range(4)]
            O += ["v_cvt_pk_bf16_f32 v%d, v%d, v%d" % (g, g, g + 1), "v_cvt_pk_bf16_f32 v%d, v%d, v%d" % (g + 1, g + 2, g + 3)]
            if opt.get("s4_hack"):
                if i & 1: O += ["s_and_b32 s3, s%d, 0xfffffff0" % (44 + i), "buffer_store_dwordx4 %s, v%d, s[12:15], s3 offen %s" % (vr(g, 4), 1 if j == 0 else 10, stpol)]
            else:
                O += ["buffer_store_dwordx2 %s, v%d, s[12:15], s%d offen %s" % (vr(g, 2), 1 if j == 0 else 10, 44 + i, stpol)]
        return O
    for i in range(7):
        hooks[("f", f0 + 2*LT*i + (2*LT - 3 if csp else 1))] = csread(i)
        if i < 6:
            O = epi(i); ns = 4*LT - 1
            for m in range(ns):
                f = f0 + 2*LT*(i + 1) + (m + 1)//2
                hooks[("m", f, (m + 1) & 1)] = put(O[len(O)*m//ns: len(O)*(m + 1)//ns], ("cs", i))
    for i in WB: hooks[("f", f0 + 2*LT*i)] = put(["s_barrier"])
    def waddr(ks, n): return (ks % NSLOT)*SL + (n*1024 if n < 11 else (n + 8)*1024)
    def taddr(ks, j): return (ks % NSLOT)*SL + 11264 + j*1024
    lg = consumer(k, F, 2, 1, lambda n, j: vr(ACC + 8*n + 4*j, 4), lambda b: vr(WF + 4*b, 4), NB,
                  lambda ks, j: vr(TOK + 8*(ks % NT) + 4*j, 4), waddr, taddr, (4, 7), opt.get("s4_look", 5), hooks, tsj)
    E2 = k.label("e2")
    k("s_cmp_eq_u32 s34, 3")
    k("s_cbranch_scc1 %s" % E2)
    lg.wait(("cs", 6))
    k("s_nop 2")
    c = CSV; i = 6
    PK = " op_sel:[0,%d,0] op_sel_hi:[1,%d,1]"
    for j in range(2):
        g = ACC + 8*i + 4*j
        for h in range(2): k("v_pk_fma_f32 %s, %s, v[22:23], %s" % (vr(g + 2*h, 2), vr(c + 2*h, 2), vr(g + 2*h, 2)) + PK % (j, j))
        for r in range(4): k("v_max_f32 v%d, 0, v%d" % (g + r, g + r))
    for j in range(2):
        g = ACC + 8*i + 4*j; u = g + 56
        for h in range(2): k("v_pk_fma_f32 %s, %s, v[22:23], %s" % (vr(u + 2*h, 2), vr(c + 4 + 2*h, 2), vr(u + 2*h, 2)) + PK % (j, j))
        for h in range(2): k("v_pk_mul_f32 %s, %s, %s" % (vr(g + 2*h, 2), vr(g + 2*h, 2), vr(u + 2*h, 2)))
        k("v_cvt_pk_bf16_f32 v%d, v%d, v%d" % (g, g, g + 1))
        k("v_cvt_pk_bf16_f32 v%d, v%d, v%d" % (g + 1, g + 2, g + 3))
        k("buffer_store_dwordx2 %s, v%d, s[12:15], s%d offen %s" % (vr(g, 2), 1 if j == 0 else 10, 44 + i, stpol))
    k.put(E2)
    k.tsdump()
    k.put(END)
    k("s_endpgm")
    return k

def gen_s5(opt=None):
    opt = opt or {}
    stpol = opt.get("s5_stpol", "")
    raw = "4" in str(opt.get("g2", ""))
    NSLOT = 8; SL = 18432
    k = Kern("s5_dn_kernel", 256, 384, NSLOT*SL, nv=128)
    k.tson = opt.get("ts", 0); k.kid = 4
    k.ts(0, True); k.ts(1)
    END = k.label("end"); LC = k.label("c")
    ACC = 32; WF = 52; NB = 8; TOK = 84; HR = 100; HU = 108
    head(k, END, [(8, 72), (4, 56)])
    k("""
    s_and_b32 s3, s10, 1
    s_lshl_b32 s24, s3, 1
    s_lshr_b32 s3, s10, 2
    s_add_u32 s24, s24, s3
    s_lshl_b32 s24, s24, 3
    s_and_b32 s3, s11, 7
    s_add_u32 s24, s24, s3
    s_lshl_b32 s24, s24, 2
    s_bfe_u32 s25, s10, 0x10001
    s_lshl_b32 s25, s25, 2
    s_lshr_b32 s3, s11, 3
    s_add_u32 s25, s25, s3
    """)
    k("s_cmp_lt_u32 s26, 4")
    k("s_cbranch_scc1 %s" % LC)
    k("s_mul_i32 s28, s25, %d" % (270*1024))
    k("s_add_u32 s28, s28, 0x%x" % WD)
    k("s_mul_i32 s30, s24, %d" % (54*1024))
    k("s_add_u32 s30, s30, 0x%x" % HH)
    k("s_mov_b32 s57, s30")
    loader_setup(k, 9, (10240, 2048), lambda i: (i >> 1)*55296 + (i & 1)*1024)
    tsj = [0, 1, 2, 6, 10, 14, 18, 22, 26]
    loader(k, 27, NSLOT, opt.get("s5_d0", 3), opt.get("s5_dm", 5), std_batch(k, 9, NSLOT, SL, 10240),
           coop_pf(k, {}, opt.get("s5_cp", ""), opt.get("s5_cp0", 3), 26, 8, lambda k: k("s_lshr_b32 s3, s11, 3"), 4, 55296, 2048),
           [(None, None), (None, None)], tsj)
    k.put(LC)
    lane_setup(k, 2048)
    k("s_add_u32 s24, s24, s26")
    L = stat_load(k, 24, 24, 1)
    k("s_mul_i32 s40, s24, 20")
    k("s_mul_i32 s41, s25, 5")
    k("s_lshr_b32 s3, s41, 1")
    k("s_add_u32 s40, s40, s3")
    k("s_lshl_b32 s40, s40, 10")
    k("s_add_u32 s40, s40, 0x%x" % HF)
    k("s_waitcnt lgkmcnt(0)")
    k.srd(12, 8, WS_END)
    k.srd(16, 4, XB)
    k("s_lshl_b32 s3, s24, 4")
    k("v_add_u32 v18, s3, v2")
    k("v_mul_u32_u24 v18, 1280, v18")
    k("s_mul_i32 s3, s25, 160")
    k("v_add_u32 v18, s3, v18")
    k("v_lshl_add_u32 v21, v3, 3, v18")
    k("v_and_b32 v22, 1, v3")
    k("v_lshl_add_u32 v18, v22, 5, v18")
    k("v_lshrrev_b32 v22, 1, v3")
    k("v_lshl_add_u32 v18, v22, 4, v18")
    def stats(lg):
        k("s_waitcnt vmcnt(0)")
        k("v_add_f32 v30, v24, v26")
        k("v_add_f32 v31, v25, v27")
        qreduce2(k, 30, 31, 22, 23)
        k("v_mul_f32 v30, 0x%x, v30" % f2u(1.0/640))
        k("v_mul_f32 v31, 0x%x, v31" % f2u(1.0/640))
        k("v_fma_f32 v30, -v30, v30, v31")
        k("v_max_f32 v30, 0, v30")
        k("v_add_f32 v30, 0x%x, v30" % f2u(1e-5))
        k("v_rcp_f32 v30, v30")
    k.ts(2)
    HB = [10, 14, 24]
    def hload(i):
        return lambda lg: k("buffer_load_dwordx4 %s, v1, s[12:15], s40 offen offset:%d" % (vr(HB[i], 4), 1024*i))
    def hunp(i):
        def f(lg):
            if i == 0:
                k("s_waitcnt vmcnt(0)")
                k("s_bitcmp1_b32 s25, 0")
                k("s_cselect_b64 vcc, -1, 0")
            hv = [10, 12, 14, 16, 24, 26]
            for h in range(2):
                k("v_cndmask_b32 v%d, v%d, v%d, vcc" % (HR + h, hv[i] + h, hv[i + 1] + h))
            k("v_lshlrev_b32 v%d, 16, v%d" % (HU + 4*i, HR))
            k("v_and_b32 v%d, 0xffff0000, v%d" % (HU + 4*i + 1, HR))
            k("v_lshlrev_b32 v%d, 16, v%d" % (HU + 4*i + 2, HR + 1))
            k("v_and_b32 v%d, 0xffff0000, v%d" % (HU + 4*i + 3, HR + 1))
        return f
    h0 = opt.get("s5_h0", 12)
    hooks = {("sync", h0 + i): hload(i) for i in range(3)}
    for i in range(5): hooks[("sync", 21 + i)] = hunp(i)
    if raw:
        hooks[("sync", 3)] = lambda lg: k(L[0])
        hooks[("sync", 10)] = stats
    F = [(ks, n) for ks in range(54) for n in range(5)]
    wa, ta = n5_addr(NSLOT, SL)
    consumer(k, F, 1, 2, lambda n, j: vr(ACC + 4*n, 4), lambda b: vr(WF + 4*b, 4), NB, lambda ks, j: vr(TOK + 4*(ks & 3), 4),
             wa, ta, (4, 7), opt.get("s5_look", 5), hooks, tsj)
    k("s_nop 3")
    R = [WF, WF + 2, WF + 4, WF + 6, WF + 8]
    for i in range(5):
        a = ACC + 4*i
        for h in range(2):
            if raw: k("v_pk_fma_f32 %s, %s, v[30:31], %s op_sel:[0,0,0] op_sel_hi:[1,0,1]" % (vr(a + 2*h, 2), vr(a + 2*h, 2), vr(HU + 4*i + 2*h, 2)))
            else: k("v_pk_add_f32 %s, %s, %s" % (vr(a + 2*h, 2), vr(a + 2*h, 2), vr(HU + 4*i + 2*h, 2)))
        k("v_cvt_pk_bf16_f32 v%d, v%d, v%d" % (R[i], a, a + 1))
        k("v_cvt_pk_bf16_f32 v%d, v%d, v%d" % (R[i] + 1, a + 2, a + 3))
    k("buffer_store_dwordx2 %s, v21, s[16:19], 0 offen offset:128 %s" % (vr(R[4], 2), stpol))
    for p in range(2):
        k("v_permlane16_swap_b32 v%d, v%d" % (R[2*p], R[2*p + 1]))
        k("v_permlane16_swap_b32 v%d, v%d" % (R[2*p] + 1, R[2*p + 1] + 1))
    k("s_nop 1")
    for p in range(2):
        k("buffer_store_dwordx4 %s, v18, s[16:19], 0 offen offset:%d %s" % (vr(R[2*p], 4), 64*p, stpol))
    k.tsdump()
    k.put(END)
    k("s_endpgm")
    return k
```

```python
from asmlib import *
from lay import *
from side import *
from gemm import VM

def gen_s2(opt=None):
    opt = opt or {}
    stpol = opt.get("s2_stpol", "")
    wstpol = opt.get("s2_wstpol", "")
    wldpol = opt.get("s2_wldpol", "")
    prio = opt.get("s2_prio", 1)
    npro = opt.get("s2_npro", 5)
    pfit = opt.get("s2_pfit", 13)
    k = Kern("s2_att_kernel", 256, 512, 163840, nv=168)
    k.tson = opt.get("ts", 0); k.kid = 1
    k.ts(0, True); k.ts(1)
    Q1 = 16; Q2 = (20, 22); CI = 24; O = 40; S = (56, 72); P = 88
    K1 = (96, 100); K2 = (104, 106); V = (108, 116)
    AK = 124; AK2 = 125; AV = 126; PFD = 127
    WL = 128; WP = 144; WA = 160; OA = 161; OB = 162; PFA = 163
    END = k.label("end"); PRO = k.label("pro"); LOOP = k.label("loop"); BACK = k.label("back"); STUB = k.label("stub")
    FB = k.label("fb"); FIN = k.label("fin")
    VMASK = 0x000fffff
    k("s_cmp_ge_u32 s2, 256")
    k("s_cbranch_scc1 %s" % END)
    k("s_load_dwordx2 s[8:9], s[0:1], 72")
    k("s_load_dwordx2 s[4:5], s[0:1], 0")
    k("s_load_dwordx4 s[44:47], s[0:1], 32")
    k("s_load_dwordx2 s[48:49], s[0:1], 48")
    k("""
    v_lshrrev_b32 v1, 6, v0
    v_and_b32 v0, 63, v0
    v_readfirstlane_b32 s26, v1
    s_and_b32 s10, s2, 7
    s_lshr_b32 s11, s2, 3
    s_and_b32 s3, s11, 3
    s_lshl_b32 s24, s10, 2
    s_add_u32 s24, s24, s3
    s_lshr_b32 s25, s11, 2
    s_lshl_b32 s25, s25, 3
    s_add_u32 s25, s25, s26
    v_lshlrev_b32 v2, 4, v0
    v_and_b32 v8, 31, v0
    v_lshrrev_b32 v9, 5, v0
    v_lshlrev_b32 v3, 3, v8
    """)
    k("s_lshl_b32 s3, s24, 6")
    k("s_add_u32 s3, s3, s25")
    k("s_mul_i32 s27, s3, 1280")
    k("s_mul_i32 s28, s24, 163840")
    k("s_lshl_b32 s29, s26, 10")
    k("s_add_u32 s28, s28, s29")
    k("s_add_u32 s28, s28, 0x%x" % KV)
    k("s_waitcnt lgkmcnt(0)")
    k.srd(12, 8, AO)
    vm = VM(k)
    def dma(i):
        vm.op(("d", i), "s_add_u32 m0, s29, %d" % (i*8192), "s_add_u32 s28, s28, 8192" if i else "s_nop 0",
              "buffer_load_dwordx4 v2, s[12:15], s28 offen lds")
    dma(0)
    vm.op("q", "buffer_load_dwordx4 %s, v2, s[12:15], s27 offen" % vr(Q1, 4))
    vm.op("q", "buffer_load_dwordx2 %s, v3, s[12:15], s27 offen offset:1024" % vr(Q2[0], 2))
    for i in range(1, npro): dma(i)
    k.ts(2)
    k.srd(16, 8, WS_END)
    k("v_mov_b32 v4, 0x3f803f80")
    k("v_cmp_eq_u32 vcc, 20, v8")
    k("v_cmp_gt_u32 s[22:23], 32, v0")
    k("s_mov_b32 s20, 0x%x" % VMASK)
    k("s_mov_b32 s21, 0x%x" % VMASK)
    for r in range(16):
        k("v_cndmask_b32 v%d, 0, v4, vcc" % (V[0] + r))
    k("s_mov_b32 s31, 0")
    k("s_lshr_b32 s3, s24, 1")
    k("s_mul_i32 s3, s3, 5")
    k("s_and_b32 s34, s24, 1")
    k("s_lshl_b32 s35, s34, 1")
    k("s_add_u32 s35, s35, s3")
    k("s_add_u32 s3, s3, 4")
    k("v_add_u32 v4, s35, v9")
    k("v_bfe_u32 v5, v0, 4, 1")
    k("s_lshl_b32 s33, s25, 1")
    k("v_add_u32 v5, s33, v5")
    k("v_mul_u32_u24 v5, 20, v5")
    k("v_and_b32 v10, 15, v0")
    k("v_lshrrev_b32 v11, 2, v4")
    k("v_add_u32 v11, v11, v5")
    k("v_and_b32 v4, 3, v4")
    k("v_lshl_add_u32 v4, v4, 4, v10")
    k("v_lshlrev_b32 v4, 4, v4")
    k("v_lshl_add_u32 v%d, v11, 10, v4" % OA)
    k("s_lshr_b32 s35, s3, 2")
    k("s_and_b32 s3, s3, 3")
    k("s_lshl_b32 s3, s3, 8")
    k("s_lshl_b32 s34, s34, 3")
    k("s_add_u32 s3, s3, s34")
    k("v_add_u32 v5, s35, v5")
    k("v_lshl_add_u32 v10, v10, 4, s3")
    k("v_lshl_add_u32 v%d, v5, 10, v10" % OB)
    k("s_mov_b32 s33, 0x%x" % AO)
    k("s_lshl_b32 s50, s2, 3")
    k("s_add_u32 s50, s50, s26")
    csp = opt.get("csp", 1)
    side_addr_gud(k, WA, 4 if csp else None)
    if csp:
        for r in range(4): k("v_mov_b32 v%d, 0x3f803f80" % (164 + r))
    k("s_lshl_b32 s3, s11, 3")
    k("s_add_u32 s3, s3, s26")
    k("s_lshl_b32 s58, s3, 13")
    k("v_lshlrev_b32 v%d, 7, v0" % PFA)
    k("s_cmp_ge_u32 s3, 100")
    k("s_cselect_b32 s40, s4, s8")
    k("s_cselect_b32 s41, s5, s9")
    k("s_and_b32 s41, s41, 0xffff")
    k("s_mov_b32 s43, 0x00020000")
    k("s_and_b32 s34, s10, 1")
    k("s_lshl_b32 s34, s34, 2")
    k("s_lshr_b32 s35, s10, 1")
    k("s_add_u32 s34, s34, s35")
    k("s_mul_i32 s34, s34, 327680")
    k("s_add_u32 s35, s34, 327680")
    k("s_sub_u32 s34, s34, %d" % (100*8192))
    k("s_cmp_ge_u32 s3, 100")
    k("s_cselect_b32 s34, s34, 0x%x" % WO)
    k("s_cselect_b32 s42, s35, 0x%x" % (WO + WOB))
    k("s_add_u32 s58, s58, s34")
    k("v_add_u32 v%d, s58, v%d" % (PFA, PFA))
    k("v_mov_b32 v%d, v2" % AK)
    k("v_lshlrev_b32 v%d, 3, v0" % AK2)
    k("v_mul_u32_u24 v%d, 320, v9" % AV)
    k("v_lshl_add_u32 v%d, v8, 4, v%d" % (AV, AV))
    for r in range(16):
        k("v_mov_b32 v%d, 0" % (O + r))
    for r in range(8):
        k("v_mov_b32 v%d, 0" % (P + r))
    k.ts(3)
    vm.wait(("d", 2))
    k("s_barrier")
    k.ts(4)
    k("ds_read_b128 %s, v%d" % (vr(K1[0], 4), AK))
    k("ds_read_b64 %s, v%d offset:2048" % (vr(K2[0], 2), AK2))
    k("v_cndmask_b32 v%d, v%d, 0, s[22:23]" % (Q2[1], Q2[0]))
    k("v_cndmask_b32 v%d, v%d, 0, s[22:23]" % (Q2[1] + 1, Q2[0] + 1))
    k("v_cndmask_b32 v%d, 0, v%d, s[22:23]" % (Q2[0], Q2[0]))
    k("v_cndmask_b32 v%d, 0, v%d, s[22:23]" % (Q2[0] + 1, Q2[0] + 1))
    k("s_waitcnt lgkmcnt(0)")
    k("v_mfma_f32_32x32x16_bf16 %s, %s, %s, 0" % (vr(S[0], 16), vr(K1[0], 4), vr(Q1, 4)))
    k("v_mfma_f32_32x32x8bf16_1k %s, %s, %s, %s" % (vr(S[0], 16), vr(K2[0], 2), vr(Q2[0], 2), vr(S[0], 16)))
    k("ds_read_b128 %s, v%d offset:1024" % (vr(K1[1], 4), AK))
    k("ds_read_b64 %s, v%d offset:%d" % (vr(K2[1], 2), AK2, 5120 + 2048))
    k("ds_read_b128 %s, v%d offset:5120" % (vr(K1[0], 4), AK))
    k("s_nop 13")
    k("v_max3_f32 v6, v%d, v%d, v%d" % (S[0], S[0] + 1, S[0] + 2))
    k("v_max3_f32 v7, v%d, v%d, v%d" % (S[0] + 3, S[0] + 4, S[0] + 5))
    for i in range(2):
        k("v_max3_f32 v6, v6, v%d, v%d" % (S[0] + 6 + 4*i, S[0] + 7 + 4*i))
        k("v_max3_f32 v7, v7, v%d, v%d" % (S[0] + 8 + 4*i, S[0] + 9 + 4*i))
    k("v_max3_f32 v6, v6, v%d, v%d" % (S[0] + 14, S[0] + 15))
    k("v_max_f32 v6, v6, v7")
    def head():
        k("v_mov_b32 v7, v6")
        k("s_mov_b32 s32, 0")
        k("s_nop 0")
        k("v_permlane32_swap_b32 v6, v7")
        k("s_nop 1")
        k("v_max_f32 v6, v6, v7")
        for r in range(16):
            k("v_sub_f32 v%d, v%d, v6" % (S[0] + r, S[0] + r))
        for r in range(16):
            k("v_sub_f32 v%d, 0, v6" % (CI + r))
        k("s_waitcnt lgkmcnt(0)")
    def koff(t): return (t >> 1)*5120 + (t & 1)*1024
    def voff(t, j): return (t >> 1)*5120 + 2560 + ((t & 1)*2 + j)*640
    def tile(t, bump=0, pre=None, mid=None):
        sc = S[t & 1]; sn = S[(t + 1) & 1]
        def ex(a, b):
            for i in range(a, b): k("v_exp_f32 v%d, v%d" % (sc + i, sc + i))
        def cv(a, b):
            for i in range(a, b): k("v_cvt_pk_bf16_f32 v%d, v%d, v%d" % (P + i, sc + 2*i, sc + 2*i + 1))
        if pre: pre()
        if prio: k("s_setprio 1")
        k("v_mfma_f32_32x32x16_bf16 %s, %s, %s, %s" % (vr(sn, 16), vr(K1[(t + 1) & 1], 4), vr(Q1, 4), vr(CI, 16)))
        k("ds_read_b128 %s, v%d offset:%d" % (vr(K1[(t + 1) & 1], 4), AK, koff(t + 3)))
        if t & 1:
            p1 = (t + 1)//2 + 1
            k("ds_read_b64 %s, v%d offset:%d" % (vr(K2[p1 & 1], 2), AK2, p1*5120 + 2048))
        ex(0, 4)
        k("s_waitcnt lgkmcnt(%d)" % (2 if t & 1 else 1))
        k("v_mfma_f32_32x32x16_bf16 %s, %s, %s, %s" % (vr(O, 16), vr(V[(t - 1) & 1] + 4, 4), vr(P + 4, 4), vr(O, 16)))
        k("s_mov_b64 exec, s[20:21]")
        k("ds_read_b128 %s, v%d offset:%d" % (vr(V[t & 1], 4), AV, voff(t, 0)))
        k("ds_read_b128 %s, v%d offset:%d" % (vr(V[t & 1] + 4, 4), AV, voff(t, 1)))
        k("s_mov_b64 exec, -1")
        ex(4, 8)
        k("v_mfma_f32_32x32x8bf16_1k %s, %s, %s, %s" % (vr(sn, 16), vr(K2[((t + 1) >> 1) & 1], 2), vr(Q2[(t + 1) & 1], 2), vr(sn, 16)))
        ex(8, 12)
        k("v_mfma_f32_32x32x16_bf16 %s, %s, %s, %s" % (vr(O, 16), vr(V[(t - 1) & 1], 4), vr(P, 4), vr(O, 16)))
        ex(12, 16)
        if prio: k("s_setprio 0")
        if bump:
            k("v_add_u32 v%d, %d, v%d" % (AK, bump, AK))
            k("v_add_u32 v%d, %d, v%d" % (AK2, bump, AK2))
            k("v_add_u32 v%d, %d, v%d" % (AV, bump, AV))
        if mid: mid()
        cv(0, 8)
    head()
    k.ts(5)
    n0 = len(k.L)
    mids = {}; pres = {}
    def add(d, T, f): d.setdefault(T, []).append(f)
    d0 = opt.get("s2_d0", 0); dstep = opt.get("s2_dstep", 1)
    for j in range(npro, 20): add(mids, d0 + (j - npro)*dstep, lambda j=j: dma(j))
    sl0 = opt.get("s2_sl0", 16); sls = opt.get("s2_sls", 2)
    ss0 = opt.get("s2_ss0", 36); sss = opt.get("s2_sss", 2)
    if not opt.get("noside"):
        for j in range(8): add(mids, sl0 + j*sls, lambda j=j: side_load1(k, vm, WL, wldpol, j))
        for i in range(4): add(mids, ss0 + i*sss, lambda i=i: side_store1(k, vm, WL, WP, WA, wstpol, i))
        if csp:
            add(mids, ss0 + 3*sss + 1, lambda: side_cs1(k, WL, WP, 164))
            add(mids, ss0 + 3*sss + 2, lambda: side_cs2(k, vm, WL, 4, wstpol))
    add(mids, 4*pfit, lambda: vm.op("pf", "buffer_load_dword v%d, v%d, s[40:43], 0 offen" % (PFD, PFA)))
    def wbhint(n):
        def f():
            L = k.label("wb")
            k("s_lshl_b32 s3, s11, 3")
            k("s_add_u32 s3, s3, s26")
            k("s_cmp_lg_u32 s3, %d" % n)
            k("s_cbranch_scc1 %s" % L)
            k("buffer_wbl2 sc1")
            k.put(L)
        return f
    for i, T in enumerate(str(opt.get("s2_wb", "")).split("x")):
        if T: add(mids, int(T), wbhint(7 + 8*i))
    def sync(j, tsi):
        def f():
            k.ts(tsi)
            vm.wait(("d", j))
            k("s_barrier")
            k.ts(tsi + 1)
        return f
    syncs = {4: 4, 12: 9, 28: 19}
    if opt.get("s2_sync4"): syncs = {4: 4, 12: 9, 28: 14, 44: 19}
    for n, (T, j) in enumerate(sorted(syncs.items())): add(pres, T, sync(j, 6 + 2*n if n < 3 else 2))
    add(pres, 48, lambda: k.ts(4))
    def run(l):
        return (lambda: [f() for f in l]) if l else None
    for T in range(64):
        tile(T & 15, 40960 if (T & 15) == 15 and T < 63 else 0, run(pres.get(T)), run(mids.get(T)))
    dg = opt.get("s2_diag", "")
    if dg:
        def keep(ln):
            if "A" in dg and ln.startswith("v_mfma_f32_32x32x16_bf16 v[%d:" % O): return False
            if "B" in dg and ln.startswith("v_mfma_f32_32x32x8"): return False
            if "C" in dg and ln.startswith("v_exp"): return False
            if "D" in dg and ln.startswith("ds_read"): return False
            if "E" in dg and ln.startswith("v_cvt"): return False
            if "F" in dg and ln.startswith("v_mfma"): return False
            return True
        k.L[n0:] = [ln for ln in k.L[n0:] if keep(ln)]
        k("s_mov_b32 s31, 1")
    k.put(FIN)
    k.ts(12)
    k("s_waitcnt lgkmcnt(0)")
    k("v_mfma_f32_32x32x16_bf16 %s, %s, %s, %s" % (vr(O, 16), vr(V[1], 4), vr(P, 4), vr(O, 16)))
    k("v_mfma_f32_32x32x16_bf16 %s, %s, %s, %s" % (vr(O, 16), vr(V[1] + 4, 4), vr(P + 4, 4), vr(O, 16)))
    k("v_mov_b32 v5, 0x%x" % f2u(2.0**60))
    k("s_waitcnt vmcnt(0)")
    k("s_nop 14")
    k("v_mov_b32 v6, v%d" % (O + 8))
    k("v_mov_b32 v7, v%d" % (O + 8))
    k("s_nop 1")
    k("v_permlane32_swap_b32 v6, v7")
    k("s_nop 1")
    k("v_cmp_nlt_f32 vcc, v7, v5")
    k("v_rcp_f32 v7, v7")
    k("s_cmp_eq_u32 s31, 0")
    k("s_cselect_b64 s[34:35], vcc, 0")
    k("s_cmp_lg_u64 s[34:35], 0")
    k("s_cbranch_scc1 %s" % FB)
    for r in range(12):
        k("v_mul_f32 v%d, v%d, v7" % (O + r, O + r))
    for r in range(6):
        k("v_cvt_pk_bf16_f32 v%d, v%d, v%d" % (O + r, O + 2*r, O + 2*r + 1))
    k("buffer_store_dwordx4 %s, v%d, s[16:19], s33 offen %s" % (vr(O, 4), OA, stpol))
    k("s_mov_b64 exec, s[22:23]")
    k("buffer_store_dwordx2 %s, v%d, s[16:19], s33 offen %s" % (vr(O + 4, 2), OB, stpol))
    k.tsdump()
    k.put(END)
    k("s_endpgm")
    k.put(FB)
    FL = k.label("fl")
    k("s_mov_b32 s31, 1")
    k("s_mov_b32 s32, 0")
    k("v_mov_b32 v%d, v2" % AK)
    k("v_lshlrev_b32 v%d, 3, v0" % AK2)
    k("v_mov_b32 v6, 0xff800000")
    k.put(FL)
    k("ds_read_b128 %s, v%d" % (vr(K1[0], 4), AK))
    k("ds_read_b128 %s, v%d offset:1024" % (vr(K1[1], 4), AK))
    k("ds_read_b64 %s, v%d offset:2048" % (vr(K2[0], 2), AK2))
    k("s_waitcnt lgkmcnt(0)")
    for t in range(2):
        k("v_mfma_f32_32x32x16_bf16 %s, %s, %s, 0" % (vr(S[t], 16), vr(K1[t], 4), vr(Q1, 4)))
        k("v_mfma_f32_32x32x8bf16_1k %s, %s, %s, %s" % (vr(S[t], 16), vr(K2[0], 2), vr(Q2[t], 2), vr(S[t], 16)))
    k("v_add_u32 v%d, 5120, v%d" % (AK, AK))
    k("v_add_u32 v%d, 5120, v%d" % (AK2, AK2))
    k("s_nop 15")
    for i in range(16):
        k("v_max3_f32 v6, v6, v%d, v%d" % (S[0] + 2*i, S[0] + 2*i + 1))
    k("s_add_u32 s32, s32, 1")
    k("s_cmp_lt_u32 s32, 32")
    k("s_cbranch_scc1 %s" % FL)
    k("v_mov_b32 v%d, v2" % AK)
    k("v_lshlrev_b32 v%d, 3, v0" % AK2)
    k("v_mul_u32_u24 v%d, 320, v9" % AV)
    k("v_lshl_add_u32 v%d, v8, 4, v%d" % (AV, AV))
    k("ds_read_b128 %s, v%d" % (vr(K1[0], 4), AK))
    k("ds_read_b64 %s, v%d offset:2048" % (vr(K2[0], 2), AK2))
    for r in range(16):
        k("v_mov_b32 v%d, 0" % (O + r))
    for r in range(8):
        k("v_mov_b32 v%d, 0" % (P + r))
    k("s_waitcnt lgkmcnt(0)")
    k("v_mfma_f32_32x32x16_bf16 %s, %s, %s, 0" % (vr(S[0], 16), vr(K1[0], 4), vr(Q1, 4)))
    k("v_mfma_f32_32x32x8bf16_1k %s, %s, %s, %s" % (vr(S[0], 16), vr(K2[0], 2), vr(Q2[0], 2), vr(S[0], 16)))
    k("ds_read_b128 %s, v%d offset:1024" % (vr(K1[1], 4), AK))
    k("ds_read_b64 %s, v%d offset:%d" % (vr(K2[1], 2), AK2, 5120 + 2048))
    k("ds_read_b128 %s, v%d offset:5120" % (vr(K1[0], 4), AK))
    k("s_nop 13")
    head()
    k.put(LOOP)
    for t in range(4):
        tile(t, 10240 if t == 3 else 0)
    k("s_add_u32 s32, s32, 1")
    k("s_cmp_lt_u32 s32, 16")
    k("s_cbranch_scc1 %s" % LOOP)
    k("s_branch %s" % FIN)
    return k
```

```python
from asmlib import *
from lay import *
from side import *
from gemm import VM

def gen_s2(opt=None):
    opt = opt or {}
    stpol = opt.get("s2_stpol", "")
    wstpol = opt.get("s2_wstpol", "")
    wldpol = opt.get("s2_wldpol", "")
    prio = opt.get("s2_prio", 1)
    npro = opt.get("s2_npro", 4)
    pfit = opt.get("s2_pfit", 13)
    k = Kern("s2_att_kernel", 256, 1024, 163840, nv=128)
    k.tson = opt.get("ts", 0); k.kid = 1
    k.ts(0, True); k.ts(1)
    Q1 = 16; Q2 = (20, 22); CI = 24; O = 40; S = (56, 72); P = 88
    K1 = (96, 100); K2 = (104, 106); V = (108, 116)
    AK = 124; AK2 = 125; AV = 126; PFD = 127
    OA = 13; OB = 14; PFA = 15
    END = k.label("end"); PRO = k.label("pro"); LOOP = k.label("loop"); BACK = k.label("back"); STUB = k.label("stub")
    FB = k.label("fb"); FIN = k.label("fin")
    VMASK = 0x000fffff
    k("s_cmp_ge_u32 s2, 256")
    k("s_cbranch_scc1 %s" % END)
    k("s_load_dwordx2 s[8:9], s[0:1], 72")
    k("s_load_dwordx2 s[4:5], s[0:1], 0")
    k("s_load_dwordx4 s[44:47], s[0:1], 32")
    k("s_load_dwordx2 s[48:49], s[0:1], 48")
    k("""
    v_lshrrev_b32 v1, 6, v0
    v_and_b32 v0, 63, v0
    v_readfirstlane_b32 s26, v1
    s_and_b32 s10, s2, 7
    s_lshr_b32 s11, s2, 3
    s_and_b32 s3, s11, 3
    s_lshl_b32 s24, s10, 2
    s_add_u32 s24, s24, s3
    s_lshr_b32 s25, s11, 2
    s_lshl_b32 s25, s25, 3
    s_and_b32 s27, s26, 7
    s_lshr_b32 s30, s26, 3
    s_add_u32 s25, s25, s27
    s_mul_i32 s30, s30, 81920
    s_lshl_b32 s29, s27, 10
    s_add_u32 s29, s29, s30
    v_lshlrev_b32 v2, 4, v0
    v_and_b32 v8, 31, v0
    v_lshrrev_b32 v9, 5, v0
    v_lshlrev_b32 v3, 3, v8
    """)
    k("s_lshl_b32 s3, s24, 6")
    k("s_add_u32 s3, s3, s25")
    k("s_mul_i32 s27, s3, 1280")
    k("s_mul_i32 s28, s24, 163840")
    k("s_add_u32 s28, s28, s29")
    k("s_add_u32 s28, s28, 0x%x" % KV)
    k("s_waitcnt lgkmcnt(0)")
    k.srd(12, 8, AO)
    vm = VM(k)
    def dma(i):
        vm.op(("d", i), "s_add_u32 m0, s29, %d" % (i*8192), "s_add_u32 s28, s28, 8192" if i else "s_nop 0",
              "buffer_load_dwordx4 v2, s[12:15], s28 offen lds")
    dma(0)
    vm.op("q", "buffer_load_dwordx4 %s, v2, s[12:15], s27 offen" % vr(Q1, 4))
    vm.op("q", "buffer_load_dwordx2 %s, v3, s[12:15], s27 offen offset:1024" % vr(Q2[0], 2))
    for i in range(1, npro): dma(i)
    k.ts(2)
    k.srd(16, 8, WS_END)
    k("v_mov_b32 v4, 0x3f803f80")
    k("v_cmp_eq_u32 vcc, 20, v8")
    k("v_cmp_gt_u32 s[22:23], 32, v0")
    k("s_mov_b32 s20, 0x%x" % VMASK)
    k("s_mov_b32 s21, 0x%x" % VMASK)
    for r in range(16):
        k("v_cndmask_b32 v%d, 0, v4, vcc" % (V[0] + r))
    k("s_mov_b32 s31, 0")
    k("s_lshr_b32 s59, s26, 3")
    k("s_lshl_b32 s59, s59, 2")
    k("s_and_b32 s3, s26, 3")
    k("s_add_u32 s59, s59, s3")
    k("s_lshr_b32 s3, s24, 1")
    k("s_mul_i32 s3, s3, 5")
    k("s_and_b32 s34, s24, 1")
    k("s_lshl_b32 s35, s34, 1")
    k("s_add_u32 s35, s35, s3")
    k("s_add_u32 s3, s3, 4")
    k("v_add_u32 v4, s35, v9")
    k("v_bfe_u32 v5, v0, 4, 1")
    k("s_lshl_b32 s33, s25, 1")
    k("v_add_u32 v5, s33, v5")
    k("v_mul_u32_u24 v5, 20, v5")
    k("v_and_b32 v10, 15, v0")
    k("v_lshrrev_b32 v11, 2, v4")
    k("v_add_u32 v11, v11, v5")
    k("v_and_b32 v4, 3, v4")
    k("v_lshl_add_u32 v4, v4, 4, v10")
    k("v_lshlrev_b32 v4, 4, v4")
    k("v_lshl_add_u32 v%d, v11, 10, v4" % OA)
    k("s_lshr_b32 s35, s3, 2")
    k("s_and_b32 s3, s3, 3")
    k("s_lshl_b32 s3, s3, 8")
    k("s_lshl_b32 s34, s34, 3")
    k("s_add_u32 s3, s3, s34")
    k("v_add_u32 v5, s35, v5")
    k("v_lshl_add_u32 v10, v10, 4, s3")
    k("v_lshl_add_u32 v%d, v5, 10, v10" % OB)
    k("s_mov_b32 s33, 0x%x" % AO)
    k("s_lshl_b32 s3, s11, 4")
    k("s_add_u32 s3, s3, s26")
    k("s_lshl_b32 s58, s3, 13")
    k("v_lshlrev_b32 v%d, 7, v0" % PFA)
    k("s_cmp_ge_u32 s3, 100")
    k("s_cselect_b32 s40, s4, s8")
    k("s_cselect_b32 s41, s5, s9")
    k("s_and_b32 s41, s41, 0xffff")
    k("s_mov_b32 s43, 0x00020000")
    k("s_and_b32 s34, s10, 1")
    k("s_lshl_b32 s34, s34, 2")
    k("s_lshr_b32 s35, s10, 1")
    k("s_add_u32 s34, s34, s35")
    k("s_mul_i32 s34, s34, 327680")
    k("s_add_u32 s35, s34, 327680")
    k("s_sub_u32 s34, s34, %d" % (100*8192))
    k("s_cmp_ge_u32 s3, 100")
    k("s_cselect_b32 s34, s34, 0x%x" % WO)
    k("s_cselect_b32 s42, s35, 0x%x" % (WO + WOB))
    k("s_add_u32 s58, s58, s34")
    k("v_add_u32 v%d, s58, v%d" % (PFA, PFA))
    k("v_add_u32 v%d, s30, v2" % AK)
    k("v_lshl_add_u32 v%d, v0, 3, s30" % AK2)
    k("v_mul_u32_u24 v%d, 320, v9" % AV)
    k("v_lshl_add_u32 v%d, v8, 4, v%d" % (AV, AV))
    k("v_add_u32 v%d, s30, v%d" % (AV, AV))
    for r in range(16):
        k("v_mov_b32 v%d, 0" % (O + r))
    for r in range(8):
        k("v_mov_b32 v%d, 0" % (P + r))
    k.ts(3)
    vm.wait(("d", opt.get("s2_w0", 1)))
    k("s_barrier")
    k.ts(4)
    k("ds_read_b128 %s, v%d" % (vr(K1[0], 4), AK))
    k("ds_read_b64 %s, v%d offset:2048" % (vr(K2[0], 2), AK2))
    k("v_cndmask_b32 v%d, v%d, 0, s[22:23]" % (Q2[1], Q2[0]))
    k("v_cndmask_b32 v%d, v%d, 0, s[22:23]" % (Q2[1] + 1, Q2[0] + 1))
    k("v_cndmask_b32 v%d, 0, v%d, s[22:23]" % (Q2[0], Q2[0]))
    k("v_cndmask_b32 v%d, 0, v%d, s[22:23]" % (Q2[0] + 1, Q2[0] + 1))
    k("s_waitcnt lgkmcnt(0)")
    k("v_mfma_f32_32x32x16_bf16 %s, %s, %s, 0" % (vr(S[0], 16), vr(K1[0], 4), vr(Q1, 4)))
    k("v_mfma_f32_32x32x8bf16_1k %s, %s, %s, %s" % (vr(S[0], 16), vr(K2[0], 2), vr(Q2[0], 2), vr(S[0], 16)))
    k("ds_read_b128 %s, v%d offset:1024" % (vr(K1[1], 4), AK))
    k("ds_read_b64 %s, v%d offset:%d" % (vr(K2[1], 2), AK2, 5120 + 2048))
    k("ds_read_b128 %s, v%d offset:5120" % (vr(K1[0], 4), AK))
    k("s_nop 13")
    k("v_max3_f32 v6, v%d, v%d, v%d" % (S[0], S[0] + 1, S[0] + 2))
    k("v_max3_f32 v7, v%d, v%d, v%d" % (S[0] + 3, S[0] + 4, S[0] + 5))
    for i in range(2):
        k("v_max3_f32 v6, v6, v%d, v%d" % (S[0] + 6 + 4*i, S[0] + 7 + 4*i))
        k("v_max3_f32 v7, v7, v%d, v%d" % (S[0] + 8 + 4*i, S[0] + 9 + 4*i))
    k("v_max3_f32 v6, v6, v%d, v%d" % (S[0] + 14, S[0] + 15))
    k("v_max_f32 v6, v6, v7")
    def head():
        k("v_mov_b32 v7, v6")
        k("s_mov_b32 s32, 0")
        k("s_nop 0")
        k("v_permlane32_swap_b32 v6, v7")
        k("s_nop 1")
        k("v_max_f32 v6, v6, v7")
        for r in range(16):
            k("v_sub_f32 v%d, v%d, v6" % (S[0] + r, S[0] + r))
        for r in range(16):
            k("v_sub_f32 v%d, 0, v6" % (CI + r))
        k("s_waitcnt lgkmcnt(0)")
    def koff(t): return (t >> 1)*5120 + (t & 1)*1024
    def voff(t, j): return (t >> 1)*5120 + 2560 + ((t & 1)*2 + j)*640
    def tile(t, bump=0, pre=None, mid=None):
        sc = S[t & 1]; sn = S[(t + 1) & 1]
        def ex(a, b):
            for i in range(a, b): k("v_exp_f32 v%d, v%d" % (sc + i, sc + i))
        def cv(a, b):
            for i in range(a, b): k("v_cvt_pk_bf16_f32 v%d, v%d, v%d" % (P + i, sc + 2*i, sc + 2*i + 1))
        if pre: pre()
        if prio: k("s_setprio 1")
        k("v_mfma_f32_32x32x16_bf16 %s, %s, %s, %s" % (vr(sn, 16), vr(K1[(t + 1) & 1], 4), vr(Q1, 4), vr(CI, 16)))
        k("ds_read_b128 %s, v%d offset:%d" % (vr(K1[(t + 1) & 1], 4), AK, koff(t + 3)))
        if t & 1:
            p1 = (t + 1)//2 + 1
            k("ds_read_b64 %s, v%d offset:%d" % (vr(K2[p1 & 1], 2), AK2, p1*5120 + 2048))
        ex(0, 4)
        k("s_waitcnt lgkmcnt(%d)" % (2 if t & 1 else 1))
        k("v_mfma_f32_32x32x16_bf16 %s, %s, %s, %s" % (vr(O, 16), vr(V[(t - 1) & 1] + 4, 4), vr(P + 4, 4), vr(O, 16)))
        k("s_mov_b64 exec, s[20:21]")
        k("ds_read_b128 %s, v%d offset:%d" % (vr(V[t & 1], 4), AV, voff(t, 0)))
        k("ds_read_b128 %s, v%d offset:%d" % (vr(V[t & 1] + 4, 4), AV, voff(t, 1)))
        k("s_mov_b64 exec, -1")
        ex(4, 8)
        k("v_mfma_f32_32x32x8bf16_1k %s, %s, %s, %s" % (vr(sn, 16), vr(K2[((t + 1) >> 1) & 1], 2), vr(Q2[(t + 1) & 1], 2), vr(sn, 16)))
        ex(8, 12)
        k("v_mfma_f32_32x32x16_bf16 %s, %s, %s, %s" % (vr(O, 16), vr(V[(t - 1) & 1], 4), vr(P, 4), vr(O, 16)))
        ex(12, 16)
        if prio: k("s_setprio 0")
        if bump:
            k("v_add_u32 v%d, %d, v%d" % (AK, bump, AK))
            k("v_add_u32 v%d, %d, v%d" % (AK2, bump, AK2))
            k("v_add_u32 v%d, %d, v%d" % (AV, bump, AV))
        if mid: mid()
        cv(0, 8)
    head()
    k.ts(5)
    n0 = len(k.L)
    mids = {}; pres = {}
    def add(d, T, f): d.setdefault(T, []).append(f)
    d0 = opt.get("s2_d0", 0); dstep = opt.get("s2_dstep", 1)
    for j in range(npro, 10): add(mids, d0 + (j - npro)*dstep, lambda j=j: dma(j))
    sl0 = opt.get("s2_sl0", 16); sls = opt.get("s2_sls", 2)
    ss0 = opt.get("s2_ss0", 36); sss = opt.get("s2_sss", 2)
    add(mids, 2*pfit, lambda: vm.op("pf", "buffer_load_dword v%d, v%d, s[40:43], 0 offen" % (PFD, PFA)))
    def wbhint(n):
        def f():
            L = k.label("wb")
            k("s_lshl_b32 s3, s11, 4")
            k("s_add_u32 s3, s3, s26")
            k("s_cmp_lg_u32 s3, %d" % n)
            k("s_cbranch_scc1 %s" % L)
            k("buffer_wbl2 sc1")
            k.put(L)
        return f
    for i, T in enumerate(str(opt.get("s2_wb", "")).split("x")):
        if T: add(mids, int(T), wbhint(7 + 8*i))
    def sync(j, tsi):
        def f():
            k.ts(tsi)
            vm.wait(("d", j))
            k("s_barrier")
            k.ts(tsi + 1)
        return f
    syncs = dict(tuple(int(x) for x in e.split(":")) for e in str(opt.get("s2_sync", "3:3,9:6,19:9")).split(","))
    for n, (T, j) in enumerate(sorted(syncs.items())): add(pres, T, sync(j, 6 + 2*n if n < 3 else 2))
    add(pres, 26, lambda: k.ts(4))
    def run(l):
        return (lambda: [f() for f in l]) if l else None
    for T in range(32):
        tile(T & 15, 40960 if T == 15 else 0, run(pres.get(T)), run(mids.get(T)))
    dg = opt.get("s2_diag", "")
    if dg:
        def keep(ln):
            if "A" in dg and ln.startswith("v_mfma_f32_32x32x16_bf16 v[%d:" % O): return False
            if "B" in dg and ln.startswith("v_mfma_f32_32x32x8"): return False
            if "C" in dg and ln.startswith("v_exp"): return False
            if "D" in dg and ln.startswith("ds_read"): return False
            if "E" in dg and ln.startswith("v_cvt"): return False
            if "F" in dg and ln.startswith("v_mfma"): return False
            return True
        k.L[n0:] = [ln for ln in k.L[n0:] if keep(ln)]
        k("s_mov_b32 s31, 1")
    k.put(FIN)
    k.ts(12)
    k("s_waitcnt lgkmcnt(0)")
    k("v_mfma_f32_32x32x16_bf16 %s, %s, %s, %s" % (vr(O, 16), vr(V[1], 4), vr(P, 4), vr(O, 16)))
    k("v_mfma_f32_32x32x16_bf16 %s, %s, %s, %s" % (vr(O, 16), vr(V[1] + 4, 4), vr(P + 4, 4), vr(O, 16)))
    k("v_mov_b32 v5, 0x%x" % f2u(2.0**60))
    k("s_waitcnt vmcnt(0)")
    k("s_nop 14")
    k("v_mov_b32 v6, v%d" % (O + 8))
    k("v_mov_b32 v7, v%d" % (O + 8))
    k("s_nop 1")
    k("v_permlane32_swap_b32 v6, v7")
    k("s_nop 1")
    k("v_cmp_nlt_f32 vcc, v7, v5")
    k("s_sub_u32 s3, s29, s30")
    k("s_lshl_b32 s3, s3, 2")
    k("v_add_u32 v4, s3, v2")
    k("s_cmp_eq_u32 s31, 0")
    k("s_cselect_b64 s[34:35], vcc, 0")
    k("s_cmp_lg_u64 s[34:35], 0")
    k("s_cbranch_scc1 %s" % FB)
    H0 = k.label("h0")
    k("s_cmp_eq_u32 s30, 0")
    k("s_barrier")
    k("s_cbranch_scc1 %s" % H0)
    k("v_mov_b32 v%d, v%d" % (O + 12, CI))
    for i in range(3): k("ds_write_b128 v4, %s offset:%d" % (vr(O + 4*i, 4), 1024*i))
    k("ds_write_b32 v4, v%d offset:3072" % (O + 12))
    k("s_waitcnt lgkmcnt(0)")
    k("s_barrier")
    k.tsdump(wave=59)
    k("s_endpgm")
    k.put(H0)
    k("s_barrier")
    k("ds_read_b32 v5, v4 offset:3072")
    for i in (2, 0, 1): k("ds_read_b128 %s, v4 offset:%d" % (vr(S[0] + 4*i, 4), 1024*i))
    k("s_waitcnt lgkmcnt(3)")
    k("v_min_f32 v6, v5, v%d" % CI)
    k("v_sub_f32 v5, v6, v5")
    k("v_sub_f32 v6, v6, v%d" % CI)
    k("v_exp_f32 v5, v5")
    k("v_exp_f32 v6, v6")
    k("s_waitcnt lgkmcnt(2)")
    k("v_mul_f32 v7, v%d, v5" % (S[0] + 8))
    k("v_fma_f32 v7, v%d, v6, v7" % (O + 8))
    k("v_mov_b32 v4, v7")
    k("s_nop 1")
    k("v_permlane32_swap_b32 v4, v7")
    k("s_nop 1")
    k("v_rcp_f32 v7, v7")
    k("s_waitcnt lgkmcnt(0)")
    k("v_mul_f32 v5, v5, v7")
    k("v_mul_f32 v6, v6, v7")
    for r in range(12):
        k("v_mul_f32 v%d, v%d, v6" % (O + r, O + r))
    for r in range(12):
        k("v_fma_f32 v%d, v%d, v5, v%d" % (O + r, S[0] + r, O + r))
    for r in range(6):
        k("v_cvt_pk_bf16_f32 v%d, v%d, v%d" % (O + r, O + 2*r, O + 2*r + 1))
    k("buffer_store_dwordx4 %s, v%d, s[16:19], s33 offen %s" % (vr(O, 4), OA, stpol))
    k("s_mov_b64 exec, s[22:23]")
    k("buffer_store_dwordx2 %s, v%d, s[16:19], s33 offen %s" % (vr(O + 4, 2), OB, stpol))
    k.tsdump(wave=59)
    k.put(END)
    k("s_endpgm")
    k.put(FB)
    FL = k.label("fl")
    k("s_mov_b32 s31, 1")
    k("s_mov_b32 s32, 0")
    k("v_add_u32 v%d, s30, v2" % AK)
    k("v_lshl_add_u32 v%d, v0, 3, s30" % AK2)
    k("v_mov_b32 v6, 0xff800000")
    k.put(FL)
    k("ds_read_b128 %s, v%d" % (vr(K1[0], 4), AK))
    k("ds_read_b128 %s, v%d offset:1024" % (vr(K1[1], 4), AK))
    k("ds_read_b64 %s, v%d offset:2048" % (vr(K2[0], 2), AK2))
    k("s_waitcnt lgkmcnt(0)")
    for t in range(2):
        k("v_mfma_f32_32x32x16_bf16 %s, %s, %s, 0" % (vr(S[t], 16), vr(K1[t], 4), vr(Q1, 4)))
        k("v_mfma_f32_32x32x8bf16_1k %s, %s, %s, %s" % (vr(S[t], 16), vr(K2[0], 2), vr(Q2[t], 2), vr(S[t], 16)))
    k("v_add_u32 v%d, 5120, v%d" % (AK, AK))
    k("v_add_u32 v%d, 5120, v%d" % (AK2, AK2))
    k("s_nop 15")
    for i in range(16):
        k("v_max3_f32 v6, v6, v%d, v%d" % (S[0] + 2*i, S[0] + 2*i + 1))
    k("s_add_u32 s32, s32, 1")
    k("s_cmp_lt_u32 s32, 16")
    k("s_cbranch_scc1 %s" % FL)
    k("v_add_u32 v%d, s30, v2" % AK)
    k("v_lshl_add_u32 v%d, v0, 3, s30" % AK2)
    k("v_mul_u32_u24 v%d, 320, v9" % AV)
    k("v_lshl_add_u32 v%d, v8, 4, v%d" % (AV, AV))
    k("v_add_u32 v%d, s30, v%d" % (AV, AV))
    k("ds_read_b128 %s, v%d" % (vr(K1[0], 4), AK))
    k("ds_read_b64 %s, v%d offset:2048" % (vr(K2[0], 2), AK2))
    for r in range(16):
        k("v_mov_b32 v%d, 0" % (O + r))
    for r in range(8):
        k("v_mov_b32 v%d, 0" % (P + r))
    k("s_waitcnt lgkmcnt(0)")
    k("v_mfma_f32_32x32x16_bf16 %s, %s, %s, 0" % (vr(S[0], 16), vr(K1[0], 4), vr(Q1, 4)))
    k("v_mfma_f32_32x32x8bf16_1k %s, %s, %s, %s" % (vr(S[0], 16), vr(K2[0], 2), vr(Q2[0], 2), vr(S[0], 16)))
    k("ds_read_b128 %s, v%d offset:1024" % (vr(K1[1], 4), AK))
    k("ds_read_b64 %s, v%d offset:%d" % (vr(K2[1], 2), AK2, 5120 + 2048))
    k("ds_read_b128 %s, v%d offset:5120" % (vr(K1[0], 4), AK))
    k("s_nop 13")
    head()
    k.put(LOOP)
    for t in range(4):
        tile(t, 10240 if t == 3 else 0)
    k("s_add_u32 s32, s32, 1")
    k("s_cmp_lt_u32 s32, 8")
    k("s_cbranch_scc1 %s" % LOOP)
    k("s_branch %s" % FIN)
    return k
```

```python
from asmlib import *
from lay import *

def _dest_5(k, WA):
    k("s_lshl_b32 s3, s52, 2")
    k("v_lshrrev_b32 v14, 2, v11")
    k("v_add_u32 v14, s3, v14")
    k("v_mul_u32_u24 v15, 205, v14")
    k("v_lshrrev_b32 v15, 10, v15")
    k("v_mul_u32_u24 v%d, 5, v15" % WA)
    k("v_sub_u32 v14, v14, v%d" % WA)
    k("v_mul_u32_u24 v15, s54, v15")
    k("s_mul_i32 s3, s51, 5")
    k("v_add3_u32 v14, v14, v15, s3")

def _finish(k, WA, SA=12, CA=None):
    if CA is not None:
        k("v_and_b32 v15, 3, v11")
        k("v_lshlrev_b32 v15, 4, v15")
        k("v_lshl_add_u32 v15, v10, 2, v15")
        k("v_lshl_add_u32 v15, v14, 6, v15")
        k("v_add_u32 v%d, s59, v15" % CA)
    k("v_and_b32 v15, 3, v11")
    k("v_lshlrev_b32 v15, 6, v15")
    k("v_lshl_add_u32 v15, v10, 8, v15")
    k("v_lshl_add_u32 v14, v14, 10, v15")
    k("v_add_u32 v%d, s55, v14" % WA)
    k("s_lshl_b32 s3, s52, 7")
    k("v_lshl_add_u32 v11, v11, 3, s3")
    k("v_mad_u32_u24 v%d, v12, s53, v11" % SA)
    k("v_mad_u32_u24 v%d, v13, s53, v11" % (SA + 1))

def side_addr_wo(k, WA, SA):
    k("v_lshrrev_b32 v10, 4, v0")
    k("v_and_b32 v11, 15, v0")
    k("s_mul_i32 s51, s50, 6554")
    k("s_lshr_b32 s51, s51, 16")
    k("s_mul_i32 s52, s51, 10")
    k("s_sub_u32 s52, s50, s52")
    k("s_movk_i32 s53, 1280")
    k("s_lshl_b32 s3, s51, 2")
    k("v_add_u32 v12, s3, v10")
    k("v_mul_u32_u24 v13, 205, v12")
    k("v_lshrrev_b32 v13, 10, v13")
    k("v_mul_u32_u24 v14, 5, v13")
    k("v_sub_u32 v12, v12, v14")
    k("v_mul_u32_u24 v13, 40, v13")
    k("v_cmp_eq_u32 vcc, 4, v12")
    k("v_lshrrev_b32 v14, 1, v12")
    k("v_mul_u32_u24 v14, 20, v14")
    k("v_and_b32 v12, 1, v12")
    k("v_lshl_add_u32 v14, v12, 2, v14")
    k("v_cndmask_b32 v14, v14, 16, vcc")
    k("v_add_u32 v12, v13, v14")
    k("v_mov_b32 v13, 8")
    k("v_cndmask_b32 v13, v13, 20, vcc")
    k("v_add_u32 v13, v12, v13")
    k("s_movk_i32 s54, 100")
    k("s_mov_b32 s55, 0x%x" % WO)
    k("s_cmp_ge_u32 s50, 200")
    k("s_cselect_b32 s55, 0x40000000, s55")
    _dest_5(k, WA)
    _finish(k, WA, SA)

def side_addr_gud(k, WA, CA=None):
    LD = k.label("d"); LU = k.label("u"); LGU = k.label("gu"); LF = k.label("f")
    k("v_lshrrev_b32 v10, 4, v0")
    k("v_and_b32 v11, 15, v0")
    k("s_cmp_lt_u32 s50, 1080")
    k("s_cbranch_scc1 %s" % LD)
    k.srd(36, 48, WGB)
    k("s_sub_u32 s50, s50, 1080")
    k("s_mul_i32 s51, s50, 6554")
    k("s_lshr_b32 s51, s51, 16")
    k("s_mul_i32 s52, s51, 10")
    k("s_sub_u32 s52, s50, s52")
    k("s_movk_i32 s53, 1280")
    k("s_lshl_b32 s3, s51, 5")
    k("v_lshl_add_u32 v12, v10, 2, s3")
    k("v_add_u32 v13, 16, v12")
    k("s_movk_i32 s54, 270")
    k("s_mov_b32 s55, 0x%x" % WD)
    if CA is not None: k("s_mov_b32 s59, 0x40000000")
    k("s_cmp_ge_u32 s50, 540")
    k("s_cselect_b32 s55, 0x40000000, s55")
    _dest_5(k, WA)
    k("s_branch %s" % LF)
    k.put(LD)
    k("s_cmp_ge_u32 s50, 540")
    k("s_cbranch_scc1 %s" % LU)
    k.srd(36, 44, WGB)
    k("s_mov_b32 s56, 0")
    k("s_branch %s" % LGU)
    k.put(LU)
    k.srd(36, 46, WGB)
    k("s_sub_u32 s50, s50, 540")
    k("s_mov_b32 s56, 7")
    k.put(LGU)
    k("s_mul_i32 s51, s50, 2428")
    k("s_lshr_b32 s51, s51, 16")
    k("s_mul_i32 s52, s51, 27")
    k("s_sub_u32 s52, s50, s52")
    k("s_movk_i32 s53, 3456")
    k("s_lshl_b32 s3, s51, 5")
    k("v_lshl_add_u32 v12, v10, 2, s3")
    k("v_add_u32 v13, 16, v12")
    k("s_mov_b32 s55, 0x%x" % GU)
    if CA is not None: k("s_mov_b32 s59, 0x%x" % CS)
    k("s_lshl_b32 s3, s52, 2")
    k("v_lshrrev_b32 v14, 2, v11")
    k("v_add_u32 v14, s3, v14")
    k("v_mul_u32_u24 v15, 2428, v14")
    k("v_lshrrev_b32 v15, 16, v15")
    k("v_mul_u32_u24 v%d, 27, v15" % WA)
    k("v_sub_u32 v14, v14, v%d" % WA)
    k("v_mul_u32_u24 v%d, 37, v14" % WA)
    k("v_lshrrev_b32 v%d, 8, v%d" % (WA, WA))
    k("v_lshl_add_u32 v15, v15, 2, v%d" % WA)
    k("v_mul_u32_u24 v%d, 7, v%d" % (WA, WA))
    k("v_sub_u32 v14, v14, v%d" % WA)
    k("v_mul_u32_u24 v15, 280, v15")
    k("s_mul_i32 s3, s51, 14")
    k("s_add_u32 s3, s3, s56")
    k("v_add3_u32 v14, v14, v15, s3")
    k.put(LF)
    _finish(k, WA, 12, CA)

def side_loads(k, WL, pol, SA=12, srd=36):
    k("s_mov_b32 s57, 0")
    for j in range(4):
        k("buffer_load_dwordx2 %s, v%d, s[%d:%d], s57 offen %s" % (vr(WL + 2*j, 2), SA, srd, srd + 3, pol))
        k("buffer_load_dwordx2 %s, v%d, s[%d:%d], s57 offen %s" % (vr(WL + 8 + 2*j, 2), SA + 1, srd, srd + 3, pol))
        if j < 3: k("s_add_u32 s57, s57, s53")

def side_stores(k, WL, WP, WA, pol, srd=16):
    k("s_mov_b32 s50, 0x05040100")
    k("s_mov_b32 s51, 0x07060302")
    for i in range(4):
        for m in range(4):
            lo = WL + 4*m + (i >> 1); hi = lo + 2
            k("v_perm_b32 v%d, v%d, v%d, s%d" % (WP + 4*i + m, hi, lo, 50 + (i & 1)))
        k("buffer_store_dwordx4 %s, v%d, s[%d:%d], 0 offen offset:%d %s" % (vr(WP + 4*i, 4), WA, srd, srd + 3, 16*i, pol))

def side_load1(k, vm, WL, pol, n, SA=12, srd=36):
    j = n >> 1; h = n & 1
    pre = []
    if n == 0: pre = ["s_mov_b32 s57, 0"]
    elif h == 0: pre = ["s_add_u32 s57, s57, s53"]
    vm.op("sl", *(pre + ["buffer_load_dwordx2 %s, v%d, s[%d:%d], s57 offen %s" % (vr(WL + 8*h + 2*j, 2), SA + h, srd, srd + 3, pol)]))

def side_store1(k, vm, WL, WP, WA, pol, i, srd=16):
    if i == 0:
        k("s_mov_b32 s50, 0x05040100")
        k("s_mov_b32 s51, 0x07060302")
        vm.wait("sl")
    for m in range(4):
        lo = WL + 4*m + (i >> 1); hi = lo + 2
        k("v_perm_b32 v%d, v%d, v%d, s%d" % (WP + 4*i + m, hi, lo, 50 + (i & 1)))
    vm.op("ss", "buffer_store_dwordx4 %s, v%d, s[%d:%d], 0 offen offset:%d %s" % (vr(WP + 4*i, 4), WA, srd, srd + 3, 16*i, pol))

def side_cs1(k, WL, WP, ONE):
    for i in range(4):
        k("v_mfma_f32_16x16x32_bf16 %s, %s, %s, 0" % (vr(WL + 4*i, 4), vr(ONE, 4), vr(WP + 4*i, 4)))

def side_cs2(k, vm, WL, CA, pol, srd=16):
    for i in range(1, 4):
        k("v_mov_b32_dpp v%d, v%d quad_perm:[0,1,2,3] row_mask:0x%x bank_mask:0xf" % (WL, WL + 4*i, 1 << i))
    vm.op("cs", "buffer_store_dword v%d, v%d, s[%d:%d], 0 offen %s" % (WL, CA, srd, srd + 3, pol))
```

```python
from asmlib import *
from lay import *
from gemm import VM, qreduce

class LG:
    def __init__(self, k):
        self.k = k; self.tags = []; self.done = -1
    def op(self, tag, line):
        self.k(line); self.tags.append(tag)
    def wait(self, *tags):
        idx = max(max(i for i, t in enumerate(self.tags) if t == tag) for tag in tags)
        if idx <= self.done: return
        n = len(self.tags) - 1 - idx
        self.k("s_waitcnt lgkmcnt(%d)" % min(n, 15))
        self.done = idx if n <= 15 else len(self.tags) - 16

def emit_ops(k, vm, tag, ops, pre=(), base=None):
    m0 = None
    pre = list(pre)
    for (a, v, srd, so, io) in ops:
        L = []
        if m0 != a - io:
            m0 = a - io
            L.append("s_mov_b32 m0, %d" % m0 if base is None else "s_add_u32 m0, s%d, %d" % (base, m0))
            first = True
            L += pre if pre else ["s_nop 0"]
            pre = []
        L.append("buffer_load_dwordx4 v%d, s[%d:%d], s%d offen offset:%d lds" % (v, srd, srd + 3, so, io))
        vm.op(tag, *L)

def loader(k, NG, NSLOT, D0, DM, batch, after, tails, tsj=(), xat=None, prebar=None):
    vm = VM(k)
    st = {"n": 0}
    def upto(g):
        while st["n"] <= min(g, NG - 1):
            batch(vm, st["n"])
            if st["n"] in after: after[st["n"]](vm)
            st["n"] += 1
    def bar(vm, j):
        if prebar and j in prebar: prebar[j](vm)
        vm.wait(("b", j))
        k("s_barrier")
        if j in tsj: k.ts(3 + list(tsj).index(j))
    upto(D0 - 1)
    k.ts(2)
    j = 0
    while st["n"] < NG:
        bar(vm, j)
        upto(min(j + D0 + (j + 1)//2, j + DM, j - 2 + NSLOT))
        j += 1
    LB = k.label("tb")
    k("s_cmp_eq_u32 s26, 5")
    k("s_cbranch_scc1 %s" % LB)
    for w, (extra, post) in enumerate(tails):
        if w: k.put(LB)
        v2 = VM(k); v2.tags = list(vm.tags)
        if xat is None:
            if extra: extra(v2)
            for jj in range(j, NG): bar(v2, jj)
        else:
            for p, a in enumerate(xat):
                if a < j and extra: extra(v2, p, len(xat))
            for jj in range(j, NG):
                bar(v2, jj)
                for p, a in enumerate(xat):
                    if a == jj and extra: extra(v2, p, len(xat))
        if post: post(v2)
        k("s_waitcnt vmcnt(0)")
        k.tsdump()
        k("s_endpgm")

def loader_setup(k, NA, KSB, tokoff, short=None):
    LB = k.label("sb"); LJ = k.label("sj")
    if PRIO[0] < 0: k("s_setprio %d" % -PRIO[0])
    k("s_cmp_eq_u32 s26, 5")
    k("s_cbranch_scc1 %s" % LB)
    RA = []
    for i in range(NA):
        k("v_add_u32 v%d, %d, v1" % (8 + i, (i - i % 4)*1024))
        if short and short[1] == i: k("v_subrev_u32 v%d, s%d, v%d" % (8 + i, short[0], 8 + i))
    k("s_mov_b32 s30, s28")
    k("s_mov_b32 s27, %d" % KSB[0])
    k("s_mov_b32 s29, 0")
    k("s_branch %s" % LJ)
    k.put(LB)
    for i in range(NA):
        o = tokoff(i) if i < 8 else (NA + i - 8)*1024
        k("v_add_u32 v%d, %d, v1" % (8 + i, o - (i % 4)*1024))
        if short and i >= 8 and short[2] == NA + i - 8: k("v_subrev_u32 v%d, s%d, v%d" % (8 + i, short[0], 8 + i))
    k("s_mov_b32 s27, %d" % KSB[1])
    k("s_mov_b32 s29, %d" % (NA*1024))
    k.put(LJ)
    k("s_waitcnt lgkmcnt(0)")
    k.ts(11)
    k.srd(12, 8, WS_END)

def std_batch(k, NA, NSLOT, SL, WS):
    def b(vm, g):
        a = (g % NSLOT)*SL
        emit_ops(k, vm, ("b", g), [(a + i*1024, 8 + i, 12, 30 if i < 8 else 28, (i % 4)*1024) for i in range(NA)],
                 ["s_add_u32 s30, s30, s27", "s_add_u32 s28, s28, %d" % WS] if g else [], 29)
    return b

def coop_pf(k, after, spec, g0, gmax, np_, member, lsh, tstride, gstride, half=False):
    st = {"i": 0}
    def mk(n, prev):
        def f(vm):
            if prev: prev(vm)
            if st["i"] == 0:
                member(k)
                if half:
                    k("s_add_u32 s56, s3, %d" % g0)
                    k("s_lshl_b32 s3, s26, 1")
                    k("v_lshrrev_b32 v46, %d, v0" % lsh)
                    k("v_add_u32 v46, s3, v46")
                    k("v_and_b32 v46, 3, v46")
                else:
                    k("s_lshl_b32 s3, s3, 1")
                    k("s_add_u32 s3, s3, s26")
                    k("s_add_u32 s56, s3, %d" % (g0 - 4))
                    k("v_lshrrev_b32 v46, %d, v0" % lsh)
                k("v_and_b32 v47, %d, v0" % ((1 << lsh) - 1))
                k("v_mul_u32_u24 v46, %d, v46" % tstride)
                k("v_lshl_add_u32 v46, v47, 7, v46")
            for _ in range(n):
                k("s_add_u32 s3, s56, %d" % (np_*st["i"]))
                k("s_min_u32 s3, s3, %d" % gmax)
                k("s_mul_i32 s3, s3, %d" % gstride)
                k("s_add_u32 s3, s3, s57")
                if half: k("s_mov_b32 exec_hi, 0")
                vm.op("pf", "buffer_load_dword v47, v46, s[12:15], s3 offen")
                if half: k("s_mov_b64 exec, -1")
                st["i"] += 1
        return f
    for e in str(spec).split(","):
        if not e: continue
        a, n = e.split(":")
        after[int(a)] = mk(int(n), after.get(int(a)))
    return after

def stat_load(k, tt, dst, n):
    k("s_lshl_b32 s37, s%d, 10" % tt)
    k("s_add_u32 s37, s37, 0x%x" % ST)
    k("v_lshlrev_b32 v20, 6, v2")
    k("v_lshl_add_u32 v20, v3, 4, v20")
    return ["buffer_load_dwordx4 %s, v20, s[12:15], s37 offen offset:%d" % (vr(dst + 4*j, 4), 1024*j) for j in range(n)]

def consumer(k, F, T, GK, acc, wf, NB, tok, waddr, taddr, LA, LOOK, hooks=None, tsj=()):
    hooks = hooks or {}
    lg = LG(k)
    R = []; seen = set()
    for f, (ks, n) in enumerate(F):
        if ks not in seen:
            seen.add(ks)
            for j in range(T): R.append(("t", ks, j))
        R.append(("w", f))
    pos = {r: i for i, r in enumerate(R)}
    st = {"nr": 0, "g": -1}
    def rd_upto(i):
        while st["nr"] <= min(i, len(R) - 1):
            r = R[st["nr"]]
            ks = r[1] if r[0] == "t" else F[r[1]][0]
            while ks//GK > st["g"]:
                st["g"] += 1
                k("s_barrier")
                if st["g"] in tsj: k.ts(3 + list(tsj).index(st["g"]))
                if ("sync", st["g"]) in hooks: hooks[("sync", st["g"])](lg)
            if r[0] == "t":
                a = taddr(ks, r[2]); v = LA[1]; d = tok(ks, r[2])
            else:
                a = waddr(*F[r[1]]); v = LA[0]; d = wf(r[1] % NB)
            lg.op(r, "ds_read_b128 %s, v%d offset:%d" % (d, v + (a >> 16), a & 0xffff))
            st["nr"] += 1
    first = set()
    for f, (ks, n) in enumerate(F):
        rd_upto(pos[("w", f)] + LOOK)
        lg.wait(("w", f))
        for j in range(T):
            k("v_mfma_f32_16x16x32_bf16 %s, %s, %s, %s" % (acc(n, j), wf(f % NB), tok(ks, j), acc(n, j) if n in first else "0"))
            if ("m", f, j) in hooks: hooks[("m", f, j)](lg)
        first.add(n)
        if ("f", f) in hooks: hooks[("f", f)](lg)
    k.ts(12)
    return lg

def head(k, END, ptrs):
    k("s_cmp_ge_u32 s2, 256")
    k("s_cbranch_scc1 %s" % END)
    for (s, o) in ptrs: k("s_load_dwordx2 s[%d:%d], s[0:1], %d" % (s, s + 1, o))
    k("""
    v_lshrrev_b32 v1, 6, v0
    v_and_b32 v0, 63, v0
    v_readfirstlane_b32 s26, v1
    v_lshlrev_b32 v1, 4, v0
    s_and_b32 s10, s2, 7
    s_lshr_b32 s11, s2, 3
    """)

PRIO = [0]
def lane_setup(k, toff):
    if PRIO[0] > 0: k("s_setprio %d" % PRIO[0])
    k("""
    v_and_b32 v2, 15, v0
    v_lshrrev_b32 v3, 4, v0
    v_mov_b32 v4, v1
    v_add_u32 v5, 0x10000, v1
    v_add_u32 v6, 0x20000, v1
    """)
    k("s_mul_i32 s3, s26, %d" % toff)
    for i in range(3): k("v_add_u32 v%d, s3, v%d" % (7 + i, 4 + i))

def tile_offsets(k, n):
    for i in range(n):
        k("s_add_u32 s3, s41, %d" % i)
        k("s_lshr_b32 s42, s3, 1")
        k("s_lshl_b32 s42, s42, 10")
        k("s_and_b32 s3, s3, 1")
        k("s_lshl_b32 s3, s3, 3")
        k("s_add_u32 s42, s42, s3")
        k("s_add_u32 s%d, s42, s40" % (44 + i))

def qreduce2(k, a, b, t, u):
    for op in ("v_permlane16_swap_b32", "v_permlane32_swap_b32"):
        k("v_mov_b32 v%d, v%d" % (t, a))
        k("v_mov_b32 v%d, v%d" % (u, b))
        k("s_nop 0")
        k("%s v%d, v%d" % (op, a, t))
        k("%s v%d, v%d" % (op, b, u))
        k("s_nop 0")
        k("v_add_f32 v%d, v%d, v%d" % (a, a, t))
        k("v_add_f32 v%d, v%d, v%d" % (b, b, u))

def n5_addr(NSLOT, SL):
    def waddr(ks, n):
        i = (ks & 1)*5 + n
        return ((ks//2) % NSLOT)*SL + (i*1024 if i < 9 else 17408)
    def taddr(ks, j):
        return ((ks//2) % NSLOT)*SL + 9216 + (ks & 1)*1024
    return waddr, taddr

def gen_s3(opt=None):
    opt = opt or {}
    PRIO[0] = opt.get("prio", 0)
    stpol = opt.get("s3_stpol", "").replace("_", " ")
    fl3 = opt.get("fl3", 0)
    NSLOT = 8; SL = 18432; XL = NSLOT*SL
    k = Kern("s3_wo_kernel", 256, 384, XL + 10240, nv=128)
    k.tson = opt.get("ts", 0); k.kid = 2
    k.ts(0, True); k.ts(1)
    END = k.label("end"); LC = k.label("c")
    ACC = 32; WF = 52; NB = 8; TOK = 84; ONES = 28
    head(k, END, [(8, 72), (4, 0)])
    k("""
    s_and_b32 s3, s10, 1
    s_lshl_b32 s24, s3, 4
    s_lshr_b32 s3, s10, 1
    s_lshl_b32 s3, s3, 2
    s_add_u32 s24, s24, s3
    s_and_b32 s3, s11, 3
    s_add_u32 s24, s24, s3
    s_lshl_b32 s24, s24, 2
    s_lshr_b32 s25, s11, 2
    """)
    k("s_cmp_lt_u32 s26, 4")
    k("s_cbranch_scc1 %s" % LC)
    k("s_mul_i32 s28, s25, %d" % (100*1024))
    k("s_add_u32 s28, s28, 0x%x" % WO)
    k("s_mul_i32 s30, s24, %d" % (20*1024))
    k("s_add_u32 s30, s30, 0x%x" % AO)
    k("s_mov_b32 s57, s30")
    loader_setup(k, 9, (10240, 2048), lambda i: (i >> 1)*20480 + (i & 1)*1024)
    XV = 17; CF = 32; CA = 24
    def setup2(vm):
        k.srd(16, 4, XB)
        k("s_lshl_b32 s3, s24, 4")
        k("s_mul_i32 s31, s3, 1280")
        k("s_mul_i32 s3, s25, 160")
        k("s_add_u32 s31, s31, s3")
        k("s_sub_u32 s39, s26, 4")
        k("s_mul_i32 s3, s39, 320")
        k("s_mul_i32 s38, s39, 5120")
        k("v_add_u32 v43, s3, v0")
        for n in range(5):
            k("v_add_u32 v40, %d, v43" % (64*n))
            k("v_mul_u32_u24 v41, 6554, v40")
            k("v_lshrrev_b32 v41, 16, v41")
            k("v_mul_u32_u24 v42, 10, v41")
            k("v_sub_u32 v40, v40, v42")
            k("v_mul_u32_u24 v41, 1280, v41")
            k("v_lshl_add_u32 v%d, v40, 4, v41" % (XV + n))
        if opt.get("csp", 1): return
        k("""
        s_xor_b32 s3, s10, s39
        s_and_b32 s3, s3, 1
        s_lshl_b32 s3, s3, 5
        s_add_u32 s32, s3, s11
        s_min_u32 s33, s32, 55
        s_mul_i32 s34, s33, 4682
        s_lshr_b32 s34, s34, 16
        s_mul_i32 s3, s34, 14
        s_sub_u32 s33, s33, s3
        s_lshr_b32 s3, s10, 1
        s_lshl_b32 s3, s3, 2
        s_add_u32 s35, s3, s34
        s_mul_i32 s36, s35, 14
        s_add_u32 s36, s36, s33
        s_lshl_b32 s36, s36, 6
        s_cmp_eq_u32 s33, 6
        s_cselect_b32 s3, 1, 0
        s_cmp_eq_u32 s33, 13
        s_cselect_b32 s3, 1, s3
        s_cmp_eq_u32 s34, 3
        s_cselect_b32 s3, s3, 0
        s_sub_u32 s33, s33, s3
        s_mul_i32 s37, s35, 280
        s_add_u32 s37, s37, s33
        s_lshl_b32 s37, s37, 10
        """)
        k("s_add_u32 s37, s37, 0x%x" % GU)
        k("s_add_u32 s36, s36, 0x%x" % CS)
        for r in range(4): k("v_mov_b32 v%d, 0x3f803f80" % (ONES + r))
    def xload(vm):
        emit_ops(k, vm, "x", [(XL + n*1024, XV + n, 16, 31, 0) for n in range(5)], base=38)
    def cload(vm, p=0, n=1):
        for s in range(20*p//n, 20*(p + 1)//n):
            if opt.get("s3_nocl"):
                vm.op(("c", s), "s_nop 0"); continue
            vm.op(("c", s), "buffer_load_dwordx4 %s, v1, s[12:15], s37 offen" % vr(CF + 4*s, 4))
            if s < 19: k("s_add_u32 s37, s37, %d" % (14*1024))
    def ctail(vm):
        for s in range(20):
            if s % 5 == 0: vm.wait(("c", s + 4))
            k("v_mfma_f32_16x16x32_bf16 %s, %s, %s, %s" % (vr(CA, 4), vr(CF + 4*s, 4), vr(ONES, 4), vr(CA, 4) if s else "0"))
        E2 = k.label("e2")
        k("s_cmp_lt_u32 s32, 56")
        k("s_cbranch_scc0 %s" % E2)
        k("v_and_b32 v2, 0x300, v1")
        k("v_lshrrev_b32 v2, 4, v2")
        k("s_mov_b32 s38, 0x00010001")
        k("s_mov_b32 s39, 0x00010001")
        k("s_mov_b64 exec, s[38:39]")
        k("s_nop 7")
        k("buffer_store_dwordx4 %s, v2, s[12:15], s36 offen %s" % (vr(CA, 4), stpol))
        k.put(E2)
    def gupf(vm, p=0, np_=1):
        if not opt.get("s3_pf", 1): return
        for n in range(3*p//np_, 3*(p + 1)//np_):
            k("v_add_u32 v40, %d, v0" % (64*n))
            if n == 2: k("v_min_u32 v40, 159, v40")
            k("v_lshrrev_b32 v41, 3, v40")
            k("v_and_b32 v40, 7, v40")
            k("v_mul_u32_u24 v41, 14336, v41")
            k("v_lshl_add_u32 v40, v40, 7, v41")
            vm.op("pf", "buffer_load_dword v%d, v40, s[12:15], s37 offen" % (44 + n))
    d0 = opt.get("s3_d0", 3)
    tsj = [0, 1, 2, 4, 6, 8, 9]
    aft = coop_pf(k, {}, opt.get("s3_cp", ""), opt.get("s3_cp0", 2), 9, 8, lambda k: k("s_mov_b32 s3, s25"), 4, 20480, 2048, True)
    for g, fn in ((opt.get("s3_su", d0 - 1), setup2), (opt.get("s3_xa", 7), xload)):
        aft[g] = (lambda a, b: lambda vm: (a(vm), b(vm)))(aft[g], fn) if g in aft else fn
    def gpf2(vm, p=0, np_=1):
        for n in range(opt.get("s3_gpf", 0)):
            k("s_lshl_b32 s3, s11, 1")
            k("s_add_u32 s3, s3, s26")
            k("s_add_u32 s3, s3, %d" % (64*n - 4))
            k("s_lshl_b32 s3, s3, 6")
            k("v_add_u32 v40, s3, v0")
            k("v_lshrrev_b32 v41, 4, v40")
            k("v_mul_u32_u24 v41, 9363, v41")
            k("v_lshrrev_b32 v41, 16, v41")
            k("v_mul_u32_u24 v42, 112, v41")
            k("v_sub_u32 v40, v40, v42")
            k("v_and_b32 v42, 3, v41")
            k("v_lshrrev_b32 v41, 2, v41")
            k("v_mul_u32_u24 v42, %d, v42" % (280*8))
            k("v_mul_u32_u24 v41, 112, v41")
            k("v_add3_u32 v40, v40, v41, v42")
            k("v_lshlrev_b32 v40, 7, v40")
            k("s_lshr_b32 s3, s10, 1")
            k("s_mul_i32 s3, s3, %d" % (4*280*1024))
            k("s_add_u32 s3, s3, 0x%x" % GU)
            vm.op("pf", "buffer_load_dword v%d, v40, s[12:15], s3 offen" % (44 + n))
    csp = opt.get("csp", 1)
    loader(k, 10, NSLOT, d0, opt.get("s3_dm", 4), std_batch(k, 9, NSLOT, SL, 10240), aft,
           [(gpf2, None), (gpf2, None)] if csp else [(cload, ctail), (gupf, None)], tsj,
           [int(x) for x in str(opt["s3_xat"]).split("x")] if "s3_xat" in opt else None)
    k.put(LC)
    lane_setup(k, 2048)
    k("s_add_u32 s24, s24, s26")
    k("v_mov_b32 v%d, 0x3f803f80" % ONES)
    k("s_mul_i32 s3, s26, 2560")
    k("s_add_u32 s3, s3, %d" % XL)
    k("v_mul_u32_u24 v20, 160, v2")
    k("v_lshl_add_u32 v20, v3, 3, v20")
    k("v_add_u32 v20, s3, v20")
    k("s_mul_i32 s40, s24, 20480")
    k("s_add_u32 s40, s40, 0x%x" % HF)
    if fl3:
        k("s_lshl_b32 s44, s25, 11")
        k("s_add_u32 s44, s44, s40")
        k("s_lshl_b32 s45, s25, 9")
        k("s_add_u32 s45, s45, s40")
        k("s_add_u32 s45, s45, %d" % (16*1024))
        k("v_lshrrev_b32 v11, 1, v3")
        k("v_lshlrev_b32 v11, 8, v11")
        k("v_lshl_add_u32 v11, v2, 4, v11")
    else:
        k("s_mul_i32 s41, s25, 5")
        tile_offsets(k, 5)
    k("s_lshl_b32 s3, s24, 10")
    k("s_lshl_b32 s43, s25, 3")
    k("s_add_u32 s43, s43, s3")
    k("s_add_u32 s43, s43, 0x%x" % ST)
    k("v_lshlrev_b32 v21, 6, v2")
    k("v_mov_b32 v24, 0")
    k("v_mov_b32 v25, 0")
    k("s_waitcnt lgkmcnt(0)")
    k.srd(12, 8, WS_END)
    k.ts(2)
    XR = 100; XU = 108
    def xread(lg):
        for i in range(5): lg.op("x", "ds_read_b64 %s, v20 offset:%d" % (vr(XR + 2*i, 2), 32*i))
    def xunp(i):
        def f(lg):
            x = XR + 2*i; u = XU + 4*i
            k("v_lshlrev_b32 v%d, 16, v%d" % (u + 2, x + 1))
            k("v_and_b32 v%d, 0xffff0000, v%d" % (u + 3, x + 1))
            k("v_and_b32 v%d, 0xffff0000, v%d" % (u + 1, x))
            k("v_lshlrev_b32 v%d, 16, v%d" % (u, x))
        return f
    F = [(ks, n) for ks in range(20) for n in range(5)]
    hooks = {("sync", 9): xread}
    for i in range(5): hooks[("f", 95 + i)] = xunp(4 - i)
    wa, ta = n5_addr(NSLOT, SL)
    consumer(k, F, 1, 2, lambda n, j: vr(ACC + 4*n, 4), lambda b: vr(WF + 4*b, 4), NB, lambda ks, j: vr(TOK + 4*(ks & 3), 4),
             wa, ta, (4, 7), opt.get("s3_look", 5), hooks, tsj)
    for i in range(5):
        a = ACC + 4*i
        k("v_pk_add_f32 %s, %s, %s" % (vr(a, 2), vr(a, 2), vr(XU + 4*i, 2)))
        k("v_pk_add_f32 %s, %s, %s" % (vr(a + 2, 2), vr(a + 2, 2), vr(XU + 4*i + 2, 2)))
        d = a - 2 if fl3 and i & 1 else a
        k("v_cvt_pk_bf16_f32 v%d, v%d, v%d" % (d, a, a + 1))
        k("v_cvt_pk_bf16_f32 v%d, v%d, v%d" % (d + 1, a + 2, a + 3))
        if not fl3: k("buffer_store_dwordx2 %s, v1, s[12:15], s%d offen %s" % (vr(a, 2), 44 + i, stpol))
        elif i & 1: k("buffer_store_dwordx4 %s, v1, s[12:15], s44 offen offset:%d %s" % (vr(a - 4, 4), 1024*(i >> 1), stpol))
        elif i == 4:
            for r in range(4): k("v_mov_b32 v%d, v%d" % (WF + r, a + (r & 1)))
            k("s_nop 0")
            k("v_permlane16_swap_b32 v%d, v%d" % (WF, WF + 2))
            k("v_permlane16_swap_b32 v%d, v%d" % (WF + 1, WF + 3))
            k("s_mov_b32 exec_lo, 0xffff")
            k("s_mov_b32 exec_hi, 0xffff")
            k("buffer_store_dwordx4 %s, v11, s[12:15], s45 offen %s" % (vr(WF, 4), stpol))
            k("s_mov_b64 exec, -1")
    for i in range(5):
        a = ACC + 4*i - (2 if fl3 and i & 1 else 0)
        for h in range(2):
            k("v_dot2c_f32_bf16 v24, v%d, v%d" % (a + h, ONES))
            k("v_dot2c_f32_bf16 v25, v%d, v%d" % (a + h, a + h))
    k("s_nop 2")
    qreduce2(k, 24, 25, 22, 23)
    k("s_mov_b64 exec, 0xffff")
    k("buffer_store_dwordx2 v[24:25], v21, s[12:15], s43 offen")
    k.tsdump()
    k.put(END)
    k("s_endpgm")
    return k

def gen_s4(opt=None):
    opt = opt or {}
    stpol = opt.get("s4_stpol", "").replace("_", " ")
    fl4 = opt.get("fl4", 0)
    NSLOT = 7; SL = 22528; CL = NSLOT*SL
    LT = opt.get("s4_lt", 4)
    k = Kern("s4_gu_kernel", 256, 384, CL + 1024, nv=240)
    k.tson = opt.get("ts", 0); k.kid = 3
    k.ts(0, True); k.ts(1)
    END = k.label("end"); LC = k.label("c")
    ACC = 32; WF = 144; NB = 8; TOK = 176; NT = max(LT, 2); CSV = TOK + 8*NT; STV = CSV
    assert CSV + 16 <= 240
    head(k, END, [(8, 72)])
    k("""
    s_and_b32 s3, s10, 1
    s_lshl_b32 s24, s3, 3
    s_and_b32 s3, s11, 7
    s_add_u32 s24, s24, s3
    s_lshl_b32 s24, s24, 3
    s_lshr_b32 s34, s11, 3
    s_lshr_b32 s33, s10, 1
    s_lshl_b32 s25, s33, 2
    s_add_u32 s25, s25, s34
    """)
    k("s_cmp_lt_u32 s26, 4")
    k("s_cbranch_scc1 %s" % LC)
    k("s_mul_i32 s28, s25, %d" % (280*1024))
    k("s_add_u32 s28, s28, 0x%x" % GU)
    k("s_mul_i32 s30, s24, %d" % (20*1024))
    k("s_add_u32 s30, s30, 0x%x" % HF)
    k("s_cmp_eq_u32 s34, 3")
    k("s_cselect_b32 s36, 1024, 0")
    k("s_mov_b32 s57, s30")
    loader_setup(k, 11, (14336, 1024), lambda i: i*20480, (36, 6, 13))
    csp = opt.get("csp", 1)
    def csload(vm):
        if not csp:
            k("s_mul_i32 s38, s25, 896")
            k("s_add_u32 s38, s38, 0x%x" % CS)
            emit_ops(k, vm, "cs", [(CL, 1, 12, 38, 0)])
            return
        k("s_mul_i32 s38, s25, 17920")
        k("s_mul_i32 s39, s26, 448")
        k("s_add_u32 s38, s38, s39")
        k("s_add_u32 s38, s38, 0x%x" % (CS - 4*448))
        k("v_and_b32 v20, 31, v0")
        k("v_min_u32 v20, 27, v20")
        k("v_lshlrev_b32 v20, 4, v20")
        k("v_lshrrev_b32 v21, 5, v0")
        k("v_mul_u32_u24 v21, 0x380, v21")
        k("v_add_u32 v21, v21, v20")
        k("s_add_u32 s39, s39, %d" % (CL - 4*448))
        k("v_add_u32 v20, s39, v20")
        for p in range(10):
            pre = ["s_add_u32 s38, s38, 5376"] if p and p % 3 == 0 else []
            vm.op("cs", *(pre + ["buffer_load_dwordx4 %s, v21, s[12:15], s38 offen offset:%d" % (vr(48 + 4*p, 4), 1792*(p % 3))]))
    def csred(vm):
        vm.wait("cs")
        for st in (5, 2, 1):
            for p in range(st):
                for r in range(4): k("v_add_f32 v%d, v%d, v%d" % (48 + 4*p + r, 48 + 4*p + r, 48 + 4*(p + st) + r))
        for r in range(4): k("v_add_f32 v%d, v%d, v%d" % (48 + r, 48 + r, 64 + r))
        for r in range(4): k("v_mov_b32 v%d, v%d" % (52 + r, 48 + r))
        k("s_nop 0")
        for r in range(4): k("v_permlane32_swap_b32 v%d, v%d" % (48 + r, 52 + r))
        k("s_nop 0")
        for r in range(4): k("v_add_f32 v%d, v%d, v%d" % (48 + r, 48 + r, 52 + r))
        k("ds_write_b128 v20, v[48:51]")
        k("s_waitcnt lgkmcnt(0)")
    def wdpf(h):
        def f(vm):
            if not opt.get("s4_pf", 1): return
            k("s_bfe_u32 s3, s10, 0x10001")
            k("s_lshl_b32 s3, s3, 5")
            k("s_add_u32 s3, s3, s11")
            k("s_mul_i32 s38, s3, 34560")
            k("s_add_u32 s38, s38, 0x%x" % (WD + h*16384))
            k("v_lshlrev_b32 v40, 7, v0")
            k("v_add_u32 v41, 8192, v40")
            vm.op("pf", "buffer_load_dword v44, v40, s[12:15], s38 offen")
            vm.op("pf", "buffer_load_dword v45, v41, s[12:15], s38 offen")
            if h == 0:
                k("v_min_u32 v42, 13, v0")
                k("v_lshlrev_b32 v42, 7, v42")
                k("s_add_u32 s38, s38, 32768")
                vm.op("pf", "buffer_load_dword v46, v42, s[12:15], s38 offen")
        return f
    d0 = opt.get("s4_d0", 2)
    tsj = [0, 1, 2, 4, 8, 12, 16, 19]
    WB = [int(x) for x in str(opt.get("s4_wb", "")).split("x") if x]
    def wbtail(h):
        def f(vm):
            for n, i in enumerate(WB):
                k("s_barrier")
                if h == 0:
                    L = k.label("wb")
                    k("s_cmp_lg_u32 s11, %d" % n)
                    k("s_cbranch_scc1 %s" % L)
                    k("buffer_wbl2 sc1")
                    k.put(L)
        return f
    loader(k, 20, NSLOT, d0, opt.get("s4_dm", 5), std_batch(k, 11, NSLOT, SL, 14336),
           coop_pf(k, {opt.get("s4_csl", 19): csload} if csp else {6: csload}, opt.get("s4_cp", ""), opt.get("s4_cp0", 4), 19, 8, lambda k: k("s_mov_b32 s3, s34"), 3, 20480, 1024),
           [(wdpf(0), wbtail(0)), (wdpf(1), wbtail(1))], tsj, None, {opt.get("s4_csr", 19): csred} if csp else None)
    k.put(LC)
    lane_setup(k, 2048)
    k("s_lshl_b32 s3, s26, 1")
    k("s_add_u32 s24, s24, s3")
    L = stat_load(k, 24, STV, 2)
    k("s_mul_i32 s41, s33, 27")
    k("s_mul_i32 s3, s34, 7")
    k("s_add_u32 s41, s41, s3")
    k("s_mul_i32 s40, s24, %d" % (54*1024))
    k("s_add_u32 s40, s40, 0x%x" % HH)
    k("v_add_u32 v10, %d, v1" % (54*1024))
    k("v_lshlrev_b32 v21, 4, v3")
    k("v_add_u32 v21, %d, v21" % CL)
    if fl4:
        k("s_mul_i32 s44, s25, 3072")
        k("s_add_u32 s44, s44, s40")
        k("s_mul_i32 s3, s33, 3")
        k("s_add_u32 s3, s3, s34")
        k("s_lshl_b32 s3, s3, 9")
        k("s_add_u32 s45, s3, s40")
        k("s_add_u32 s45, s45, %d" % (48*1024))
        k("v_and_b32 v11, 1, v3")
        k("v_mul_u32_u24 v11, %d, v11" % (54*1024))
        k("v_lshl_add_u32 v11, v2, 4, v11")
        k("v_lshrrev_b32 v12, 1, v3")
        k("v_lshl_add_u32 v11, v12, 8, v11")
    else: tile_offsets(k, 7)
    k("s_waitcnt lgkmcnt(0)")
    k.srd(12, 8, WS_END)
    k.ts(2)
    F = [(ks, n) for ks in range(20 - LT) for n in range(14)]
    f0 = len(F)
    F += [(ks, n) for i in range(7) for ks in range(20 - LT, 20) for n in (i, i + 7)]
    def put(lines, w=None):
        def f(lg):
            if w: lg.wait(w)
            for ln in lines: k(ln)
        return f
    def stats(lg):
        k("s_waitcnt vmcnt(0)")
        k("v_add_f32 v22, v%d, v%d" % (STV, STV + 2))
        k("v_add_f32 v23, v%d, v%d" % (STV + 4, STV + 6))
        qreduce2(k, 22, 23, 24, 25)
        k("v_mul_f32 v22, 0x%x, v22" % f2u(-1.0/640))
        k("v_mul_f32 v23, 0x%x, v23" % f2u(-1.0/640))
    hooks = {("f", 30): put(L[:1]), ("f", 36): put(L[1:]), ("f", 120): stats}
    def csread(i):
        def f(lg):
            for h in range(2):
                lg.op(("cs", i), "ds_read_b128 %s, v21 offset:%d" % (vr(CSV + 8*(i & 1) + 4*h, 4), 64*(i + 7*h)))
        return f
    def epi(i):
        O = []
        c = CSV + 8*(i & 1)
        for j in range(2):
            g = ACC + 8*i + 4*j
            O += ["v_fma_f32 v%d, v%d, v%d, v%d" % (g + r, c + r, 22 + j, g + r) for r in range(4)]
            O += ["v_max_f32 v%d, 0, v%d" % (g + r, g + r) for r in range(4)]
        for j in range(2):
            g = ACC + 8*i + 4*j; u = g + 56
            O += ["v_fma_f32 v%d, v%d, v%d, v%d" % (u + r, c + 4 + r, 22 + j, u + r) for r in range(4)]
            O += ["v_mul_f32 v%d, v%d, v%d" % (g + r, g + r, u + r) for r in range(4)]
            d = g - 6 if fl4 and i & 1 else g
            O += ["v_cvt_pk_bf16_f32 v%d, v%d, v%d" % (d, g, g + 1), "v_cvt_pk_bf16_f32 v%d, v%d, v%d" % (d + 1, g + 2, g + 3)]
            if fl4:
                if i & 1: O += ["buffer_store_dwordx4 %s, v%d, s[12:15], s44 offen offset:%d %s" % (vr(g - 8, 4), 1 if j == 0 else 10, 1024*(i >> 1), stpol)]
            elif opt.get("s4_hack"):
                if i & 1: O += ["s_and_b32 s3, s%d, 0xfffffff0" % (44 + i), "buffer_store_dwordx4 %s, v%d, s[12:15], s3 offen %s" % (vr(g, 4), 1 if j == 0 else 10, stpol)]
            else:
                O += ["buffer_store_dwordx2 %s, v%d, s[12:15], s%d offen %s" % (vr(g, 2), 1 if j == 0 else 10, 44 + i, stpol)]
        return O
    for i in range(7):
        hooks[("f", f0 + 2*LT*i + (2*LT - 3 if csp else 1))] = csread(i)
        if i < 6:
            O = epi(i); ns = 4*LT - 1
            for m in range(ns):
                f = f0 + 2*LT*(i + 1) + (m + 1)//2
                hooks[("m", f, (m + 1) & 1)] = put(O[len(O)*m//ns: len(O)*(m + 1)//ns], ("cs", i))
    for i in WB: hooks[("f", f0 + 2*LT*i)] = put(["s_barrier"])
    def waddr(ks, n): return (ks % NSLOT)*SL + (n*1024 if n < 11 else (n + 8)*1024)
    def taddr(ks, j): return (ks % NSLOT)*SL + 11264 + j*1024
    lg = consumer(k, F, 2, 1, lambda n, j: vr(ACC + 8*n + 4*j, 4), lambda b: vr(WF + 4*b, 4), NB,
                  lambda ks, j: vr(TOK + 8*(ks % NT) + 4*j, 4), waddr, taddr, (4, 7), opt.get("s4_look", 5), hooks, tsj)
    E2 = k.label("e2")
    k("s_cmp_eq_u32 s34, 3")
    k("s_cbranch_scc1 %s" % E2)
    lg.wait(("cs", 6))
    k("s_nop 2")
    c = CSV; i = 6
    PK = " op_sel:[0,%d,0] op_sel_hi:[1,%d,1]"
    for j in range(2):
        g = ACC + 8*i + 4*j
        for h in range(2): k("v_pk_fma_f32 %s, %s, v[22:23], %s" % (vr(g + 2*h, 2), vr(c + 2*h, 2), vr(g + 2*h, 2)) + PK % (j, j))
        for r in range(4): k("v_max_f32 v%d, 0, v%d" % (g + r, g + r))
    for j in range(2):
        g = ACC + 8*i + 4*j; u = g + 56
        for h in range(2): k("v_pk_fma_f32 %s, %s, v[22:23], %s" % (vr(u + 2*h, 2), vr(c + 4 + 2*h, 2), vr(u + 2*h, 2)) + PK % (j, j))
        for h in range(2): k("v_pk_mul_f32 %s, %s, %s" % (vr(g + 2*h, 2), vr(g + 2*h, 2), vr(u + 2*h, 2)))
        d = g - 2*j if fl4 else g
        k("v_cvt_pk_bf16_f32 v%d, v%d, v%d" % (d, g, g + 1))
        k("v_cvt_pk_bf16_f32 v%d, v%d, v%d" % (d + 1, g + 2, g + 3))
        if not fl4: k("buffer_store_dwordx2 %s, v%d, s[12:15], s%d offen %s" % (vr(g, 2), 1 if j == 0 else 10, 44 + i, stpol))
    if fl4:
        g = ACC + 8*i
        k("s_nop 0")
        k("v_permlane16_swap_b32 v%d, v%d" % (g, g + 2))
        k("v_permlane16_swap_b32 v%d, v%d" % (g + 1, g + 3))
        k("s_nop 0")
        k("buffer_store_dwordx4 %s, v11, s[12:15], s45 offen %s" % (vr(g, 4), stpol))
    k.put(E2)
    k.tsdump()
    k.put(END)
    k("s_endpgm")
    return k

def gen_s5(opt=None):
    opt = opt or {}
    stpol = opt.get("s5_stpol", "").replace("_", " ")
    fl3 = opt.get("fl3", 0)
    raw = "4" in str(opt.get("g2", ""))
    NSLOT = 8; SL = 18432
    k = Kern("s5_dn_kernel", 256, 384, NSLOT*SL, nv=128)
    k.tson = opt.get("ts", 0); k.kid = 4
    k.ts(0, True); k.ts(1)
    END = k.label("end"); LC = k.label("c")
    ACC = 32; WF = 52; NB = 8; TOK = 84; HR = 100; HU = 108
    head(k, END, [(8, 72), (4, 56)])
    k("""
    s_and_b32 s3, s10, 1
    s_lshl_b32 s24, s3, 1
    s_lshr_b32 s3, s10, 2
    s_add_u32 s24, s24, s3
    s_lshl_b32 s24, s24, 3
    s_and_b32 s3, s11, 7
    s_add_u32 s24, s24, s3
    s_lshl_b32 s24, s24, 2
    s_bfe_u32 s25, s10, 0x10001
    s_lshl_b32 s25, s25, 2
    s_lshr_b32 s3, s11, 3
    s_add_u32 s25, s25, s3
    """)
    k("s_cmp_lt_u32 s26, 4")
    k("s_cbranch_scc1 %s" % LC)
    k("s_mul_i32 s28, s25, %d" % (270*1024))
    k("s_add_u32 s28, s28, 0x%x" % WD)
    k("s_mul_i32 s30, s24, %d" % (54*1024))
    k("s_add_u32 s30, s30, 0x%x" % HH)
    k("s_mov_b32 s57, s30")
    loader_setup(k, 9, (10240, 2048), lambda i: (i >> 1)*55296 + (i & 1)*1024)
    tsj = [0, 1, 2, 6, 10, 14, 18, 22, 26]
    loader(k, 27, NSLOT, opt.get("s5_d0", 3), opt.get("s5_dm", 5), std_batch(k, 9, NSLOT, SL, 10240),
           coop_pf(k, {}, opt.get("s5_cp", ""), opt.get("s5_cp0", 3), 26, 8, lambda k: k("s_lshr_b32 s3, s11, 3"), 4, 55296, 2048),
           [(None, None), (None, None)], tsj)
    k.put(LC)
    lane_setup(k, 2048)
    k("s_add_u32 s24, s24, s26")
    L = stat_load(k, 24, 24, 1)
    k("s_mul_i32 s40, s24, 20")
    if fl3:
        k("s_lshl_b32 s40, s40, 10")
        k("s_add_u32 s40, s40, 0x%x" % HF)
        k("s_lshl_b32 s41, s25, 9")
        k("s_add_u32 s41, s41, s40")
        k("s_add_u32 s41, s41, %d" % (16*1024))
        k("s_lshl_b32 s3, s25, 11")
        k("s_add_u32 s40, s40, s3")
        k("v_lshrrev_b32 v19, 1, v3")
        k("v_lshlrev_b32 v19, 8, v19")
        k("v_lshl_add_u32 v19, v2, 4, v19")
        k("v_and_b32 v22, 1, v3")
        k("v_lshl_add_u32 v19, v22, 3, v19")
    else:
        k("s_mul_i32 s41, s25, 5")
        k("s_lshr_b32 s3, s41, 1")
        k("s_add_u32 s40, s40, s3")
        k("s_lshl_b32 s40, s40, 10")
        k("s_add_u32 s40, s40, 0x%x" % HF)
    k("s_waitcnt lgkmcnt(0)")
    k.srd(12, 8, WS_END)
    k.srd(16, 4, XB)
    k("s_lshl_b32 s3, s24, 4")
    k("v_add_u32 v18, s3, v2")
    k("v_mul_u32_u24 v18, 1280, v18")
    k("s_mul_i32 s3, s25, 160")
    k("v_add_u32 v18, s3, v18")
    k("v_lshl_add_u32 v21, v3, 3, v18")
    k("v_and_b32 v22, 1, v3")
    k("v_lshl_add_u32 v18, v22, 5, v18")
    k("v_lshrrev_b32 v22, 1, v3")
    k("v_lshl_add_u32 v18, v22, 4, v18")
    def stats(lg):
        k("s_waitcnt vmcnt(0)")
        k("v_add_f32 v30, v24, v26")
        k("v_add_f32 v31, v25, v27")
        qreduce2(k, 30, 31, 22, 23)
        k("v_mul_f32 v30, 0x%x, v30" % f2u(1.0/640))
        k("v_mul_f32 v31, 0x%x, v31" % f2u(1.0/640))
        k("v_fma_f32 v30, -v30, v30, v31")
        k("v_max_f32 v30, 0, v30")
        k("v_add_f32 v30, 0x%x, v30" % f2u(1e-5))
        k("v_rcp_f32 v30, v30")
    k.ts(2)
    HB = [10, 14, 24]
    def hload(i):
        if fl3 and i == 2: return lambda lg: k("buffer_load_dwordx2 v[24:25], v19, s[12:15], s41 offen")
        return lambda lg: k("buffer_load_dwordx4 %s, v1, s[12:15], s40 offen offset:%d" % (vr(HB[i], 4), 1024*i))
    def hunp(i):
        def f(lg):
            if i == 0:
                k("s_waitcnt vmcnt(0)")
                k("s_bitcmp1_b32 s25, 0")
                k("s_cselect_b64 vcc, -1, 0")
            hv = [10, 12, 14, 16, 24, 26]
            x = hv[i] if fl3 else HR
            for h in range(0 if fl3 else 2):
                k("v_cndmask_b32 v%d, v%d, v%d, vcc" % (HR + h, hv[i] + h, hv[i + 1] + h))
            k("v_lshlrev_b32 v%d, 16, v%d" % (HU + 4*i, x))
            k("v_and_b32 v%d, 0xffff0000, v%d" % (HU + 4*i + 1, x))
            k("v_lshlrev_b32 v%d, 16, v%d" % (HU + 4*i + 2, x + 1))
            k("v_and_b32 v%d, 0xffff0000, v%d" % (HU + 4*i + 3, x + 1))
        return f
    h0 = opt.get("s5_h0", 12)
    hooks = {("sync", h0 + i): hload(i) for i in range(3)}
    for i in range(5): hooks[("sync", 21 + i)] = hunp(i)
    if raw:
        hooks[("sync", 3)] = lambda lg: k(L[0])
        hooks[("sync", 10)] = stats
    F = [(ks, n) for ks in range(54) for n in range(5)]
    wa, ta = n5_addr(NSLOT, SL)
    consumer(k, F, 1, 2, lambda n, j: vr(ACC + 4*n, 4), lambda b: vr(WF + 4*b, 4), NB, lambda ks, j: vr(TOK + 4*(ks & 3), 4),
             wa, ta, (4, 7), opt.get("s5_look", 5), hooks, tsj)
    k("s_nop 3")
    R = [WF, WF + 2, WF + 4, WF + 6, WF + 8]
    for i in range(5):
        a = ACC + 4*i
        for h in range(2):
            if raw: k("v_pk_fma_f32 %s, %s, v[30:31], %s op_sel:[0,0,0] op_sel_hi:[1,0,1]" % (vr(a + 2*h, 2), vr(a + 2*h, 2), vr(HU + 4*i + 2*h, 2)))
            else: k("v_pk_add_f32 %s, %s, %s" % (vr(a + 2*h, 2), vr(a + 2*h, 2), vr(HU + 4*i + 2*h, 2)))
        k("v_cvt_pk_bf16_f32 v%d, v%d, v%d" % (R[i], a, a + 1))
        k("v_cvt_pk_bf16_f32 v%d, v%d, v%d" % (R[i] + 1, a + 2, a + 3))
    k("buffer_store_dwordx2 %s, v21, s[16:19], 0 offen offset:128 %s" % (vr(R[4], 2), stpol))
    for p in range(2):
        k("v_permlane16_swap_b32 v%d, v%d" % (R[2*p], R[2*p + 1]))
        k("v_permlane16_swap_b32 v%d, v%d" % (R[2*p] + 1, R[2*p + 1] + 1))
    k("s_nop 1")
    for p in range(2):
        k("buffer_store_dwordx4 %s, v18, s[16:19], 0 offen offset:%d %s" % (vr(R[2*p], 4), 64*p, stpol))
    k.tsdump()
    k.put(END)
    k("s_endpgm")
    return k
```

```python
from asmlib import *
from lay import *
from side import *
from gemm import VM

def gen_s2(opt=None):
    opt = opt or {}
    stpol = opt.get("s2_stpol", "")
    wstpol = opt.get("s2_wstpol", "")
    wldpol = opt.get("s2_wldpol", "")
    prio = opt.get("s2_prio", 1)
    npro = opt.get("s2_npro", 5)
    pfit = opt.get("s2_pfit", 13)
    k = Kern("s2_att_kernel", 256, 512, 163840, nv=168)
    k.tson = opt.get("ts", 0); k.kid = 1
    k.ts(0, True); k.ts(1)
    Q1 = 16; Q2 = (20, 22); CI = 24; O = 40; S = (56, 72); P = 88
    K1 = (96, 100); K2 = (104, 106); V = (108, 116)
    AK = 124; AK2 = 125; AV = 126; PFD = 127
    WL = 128; WP = 144; WA = 160; OA = 161; OB = 162; PFA = 163
    END = k.label("end"); PRO = k.label("pro"); LOOP = k.label("loop"); BACK = k.label("back"); STUB = k.label("stub")
    FB = k.label("fb"); FIN = k.label("fin")
    VMASK = 0x000fffff
    k("s_cmp_ge_u32 s2, 256")
    k("s_cbranch_scc1 %s" % END)
    k("s_load_dwordx2 s[8:9], s[0:1], 72")
    k("s_load_dwordx2 s[4:5], s[0:1], 0")
    k("s_load_dwordx4 s[44:47], s[0:1], 32")
    k("s_load_dwordx2 s[48:49], s[0:1], 48")
    k("""
    v_lshrrev_b32 v1, 6, v0
    v_and_b32 v0, 63, v0
    v_readfirstlane_b32 s26, v1
    s_and_b32 s10, s2, 7
    s_lshr_b32 s11, s2, 3
    s_and_b32 s3, s11, 3
    s_lshl_b32 s24, s10, 2
    s_add_u32 s24, s24, s3
    s_lshr_b32 s25, s11, 2
    s_lshl_b32 s25, s25, 3
    s_add_u32 s25, s25, s26
    v_lshlrev_b32 v2, 4, v0
    v_and_b32 v8, 31, v0
    v_lshrrev_b32 v9, 5, v0
    v_lshlrev_b32 v3, 3, v8
    """)
    k("s_lshl_b32 s3, s24, 6")
    k("s_add_u32 s3, s3, s25")
    k("s_mul_i32 s27, s3, 1280")
    k("s_mul_i32 s28, s24, 163840")
    k("s_lshl_b32 s29, s26, 10")
    k("s_add_u32 s28, s28, s29")
    k("s_add_u32 s28, s28, 0x%x" % KV)
    k("s_waitcnt lgkmcnt(0)")
    k.srd(12, 8, AO)
    vm = VM(k)
    def dma(i):
        vm.op(("d", i), "s_add_u32 m0, s29, %d" % (i*8192), "s_add_u32 s28, s28, 8192" if i else "s_nop 0",
              "buffer_load_dwordx4 v2, s[12:15], s28 offen lds")
    dma(0)
    vm.op("q", "buffer_load_dwordx4 %s, v2, s[12:15], s27 offen" % vr(Q1, 4))
    vm.op("q", "buffer_load_dwordx2 %s, v3, s[12:15], s27 offen offset:1024" % vr(Q2[0], 2))
    for i in range(1, npro): dma(i)
    k.ts(2)
    k.srd(16, 8, WS_END)
    k("v_mov_b32 v4, 0x3f803f80")
    k("v_cmp_eq_u32 vcc, 20, v8")
    k("v_cmp_gt_u32 s[22:23], 32, v0")
    k("s_mov_b32 s20, 0x%x" % VMASK)
    k("s_mov_b32 s21, 0x%x" % VMASK)
    trim = opt.get("s2_trim", 1)
    for r in range(2 if trim else 16):
        k("v_cndmask_b32 v%d, 0, v4, vcc" % (V[0] + r))
    if trim:
        for r in range(1, 8): k("v_mov_b64 %s, %s" % (vr(V[0] + 2*r, 2), vr(V[0], 2)))
    k("s_mov_b32 s31, 0")
    k("s_lshr_b32 s3, s24, 1")
    k("s_mul_i32 s3, s3, 5")
    k("s_and_b32 s34, s24, 1")
    k("s_lshl_b32 s35, s34, 1")
    k("s_add_u32 s35, s35, s3")
    k("s_add_u32 s3, s3, 4")
    k("v_add_u32 v4, s35, v9")
    k("v_bfe_u32 v5, v0, 4, 1")
    k("s_lshl_b32 s33, s25, 1")
    k("v_add_u32 v5, s33, v5")
    k("v_mul_u32_u24 v5, 20, v5")
    k("v_and_b32 v10, 15, v0")
    k("v_lshrrev_b32 v11, 2, v4")
    k("v_add_u32 v11, v11, v5")
    k("v_and_b32 v4, 3, v4")
    k("v_lshl_add_u32 v4, v4, 4, v10")
    k("v_lshlrev_b32 v4, 4, v4")
    k("v_lshl_add_u32 v%d, v11, 10, v4" % OA)
    k("s_lshr_b32 s35, s3, 2")
    k("s_and_b32 s3, s3, 3")
    k("s_lshl_b32 s3, s3, 8")
    k("s_lshl_b32 s34, s34, 3")
    k("s_add_u32 s3, s3, s34")
    k("v_add_u32 v5, s35, v5")
    k("v_lshl_add_u32 v10, v10, 4, s3")
    k("v_lshl_add_u32 v%d, v5, 10, v10" % OB)
    k("s_mov_b32 s33, 0x%x" % AO)
    k("s_lshl_b32 s50, s2, 3")
    k("s_add_u32 s50, s50, s26")
    csp = opt.get("csp", 1)
    FULL[0] = opt.get("fl4", 0); FULL[1] = opt.get("fl3", 0)
    if FULL[0] and FULL[1] and csp and opt.get('s2_bf', 1): side_addr_gud2(k, WA, 4)
    else: side_addr_gud(k, WA, 4 if csp else None)
    if csp:
        for r in range(4): k("v_mov_b32 v%d, 0x3f803f80" % (164 + r))
    k("s_lshl_b32 s3, s11, 3")
    k("s_add_u32 s3, s3, s26")
    k("s_lshl_b32 s58, s3, 13")
    k("v_lshlrev_b32 v%d, 7, v0" % PFA)
    k("s_cmp_ge_u32 s3, 100")
    k("s_cselect_b32 s40, s4, s8")
    k("s_cselect_b32 s41, s5, s9")
    k("s_and_b32 s41, s41, 0xffff")
    k("s_mov_b32 s43, 0x00020000")
    k("s_and_b32 s34, s10, 1")
    k("s_lshl_b32 s34, s34, 2")
    k("s_lshr_b32 s35, s10, 1")
    k("s_add_u32 s34, s34, s35")
    k("s_mul_i32 s34, s34, 327680")
    k("s_add_u32 s35, s34, 327680")
    k("s_sub_u32 s34, s34, %d" % (100*8192))
    k("s_cmp_ge_u32 s3, 100")
    k("s_cselect_b32 s34, s34, 0x%x" % WO)
    k("s_cselect_b32 s42, s35, 0x%x" % (WO + WOB))
    k("s_add_u32 s58, s58, s34")
    k("v_add_u32 v%d, s58, v%d" % (PFA, PFA))
    k("v_mov_b32 v%d, v2" % AK)
    k("v_lshlrev_b32 v%d, 3, v0" % AK2)
    k("v_mul_u32_u24 v%d, 320, v9" % AV)
    k("v_lshl_add_u32 v%d, v8, 4, v%d" % (AV, AV))
    if not trim:
        for r in range(16):
            k("v_mov_b32 v%d, 0" % (O + r))
        for r in range(8):
            k("v_mov_b32 v%d, 0" % (P + r))
    k.ts(3)
    vm.wait(("d", 2))
    k("s_barrier")
    k.ts(4)
    k("ds_read_b128 %s, v%d" % (vr(K1[0], 4), AK))
    k("ds_read_b64 %s, v%d offset:2048" % (vr(K2[0], 2), AK2))
    k("v_cndmask_b32 v%d, v%d, 0, s[22:23]" % (Q2[1], Q2[0]))
    k("v_cndmask_b32 v%d, v%d, 0, s[22:23]" % (Q2[1] + 1, Q2[0] + 1))
    k("v_cndmask_b32 v%d, 0, v%d, s[22:23]" % (Q2[0], Q2[0]))
    k("v_cndmask_b32 v%d, 0, v%d, s[22:23]" % (Q2[0] + 1, Q2[0] + 1))
    k("s_waitcnt lgkmcnt(0)")
    k("v_mfma_f32_32x32x16_bf16 %s, %s, %s, 0" % (vr(S[0], 16), vr(K1[0], 4), vr(Q1, 4)))
    k("v_mfma_f32_32x32x8bf16_1k %s, %s, %s, %s" % (vr(S[0], 16), vr(K2[0], 2), vr(Q2[0], 2), vr(S[0], 16)))
    k("ds_read_b128 %s, v%d offset:1024" % (vr(K1[1], 4), AK))
    k("ds_read_b64 %s, v%d offset:%d" % (vr(K2[1], 2), AK2, 5120 + 2048))
    k("ds_read_b128 %s, v%d offset:5120" % (vr(K1[0], 4), AK))
    k("s_nop 13")
    k("v_max3_f32 v6, v%d, v%d, v%d" % (S[0], S[0] + 1, S[0] + 2))
    k("v_max3_f32 v7, v%d, v%d, v%d" % (S[0] + 3, S[0] + 4, S[0] + 5))
    for i in range(2):
        k("v_max3_f32 v6, v6, v%d, v%d" % (S[0] + 6 + 4*i, S[0] + 7 + 4*i))
        k("v_max3_f32 v7, v7, v%d, v%d" % (S[0] + 8 + 4*i, S[0] + 9 + 4*i))
    k("v_max3_f32 v6, v6, v%d, v%d" % (S[0] + 14, S[0] + 15))
    k("v_max_f32 v6, v6, v7")
    def head():
        k("v_mov_b32 v7, v6")
        k("s_mov_b32 s32, 0")
        k("s_nop 0")
        k("v_permlane32_swap_b32 v6, v7")
        k("s_nop 1")
        k("v_max_f32 v6, v6, v7")
        if trim:
            k("v_sub_f32 v%d, 0, v6" % CI)
            k("v_sub_f32 v%d, 0, v6" % (CI + 1))
            for r in range(1, 8): k("v_mov_b64 %s, %s" % (vr(CI + 2*r, 2), vr(CI, 2)))
            for r in range(8): k("v_pk_add_f32 %s, %s, %s" % (vr(S[0] + 2*r, 2), vr(S[0] + 2*r, 2), vr(CI, 2)))
        else:
            for r in range(16):
                k("v_sub_f32 v%d, v%d, v6" % (S[0] + r, S[0] + r))
            for r in range(16):
                k("v_sub_f32 v%d, 0, v6" % (CI + r))
        k("s_waitcnt lgkmcnt(0)")
    def koff(t): return (t >> 1)*5120 + (t & 1)*1024
    def voff(t, j): return (t >> 1)*5120 + 2560 + ((t & 1)*2 + j)*640
    hx = opt.get("s2_hx", 99); hp = [int(c) for c in str(opt.get("s2_hp", "20"))]; hx2 = opt.get("s2_hx2", 99)
    def setp(lo, hi, T):
        k("s_setprio %d" % lo)
        if T is not None and hx <= T < hx2 and hi != lo:
            L = k.label("p")
            k("s_cmp_ge_u32 s26, 4")
            k("s_cbranch_scc0 %s" % L)
            k("s_setprio %d" % hi)
            k.put(L)
    def tile(t, bump=0, pre=None, mid=None, T=None):
        sc = S[t & 1]; sn = S[(t + 1) & 1]
        def ex(a, b):
            for i in range(a, b): k("v_exp_f32 v%d, v%d" % (sc + i, sc + i))
        def cv(a, b):
            for i in range(a, b): k("v_cvt_pk_bf16_f32 v%d, v%d, v%d" % (P + i, sc + 2*i, sc + 2*i + 1))
        if pre: pre()
        if prio: setp(1, hp[0], T)
        k("v_mfma_f32_32x32x16_bf16 %s, %s, %s, %s" % (vr(sn, 16), vr(K1[(t + 1) & 1], 4), vr(Q1, 4), vr(CI, 16)))
        k("ds_read_b128 %s, v%d offset:%d" % (vr(K1[(t + 1) & 1], 4), AK, koff(t + 3)))
        if t & 1:
            p1 = (t + 1)//2 + 1
            k("ds_read_b64 %s, v%d offset:%d" % (vr(K2[p1 & 1], 2), AK2, p1*5120 + 2048))
        ex(0, 4)
        k("s_waitcnt lgkmcnt(%d)" % (2 if t & 1 else 1))
        if not (trim and T == 0):
            k("v_mfma_f32_32x32x16_bf16 %s, %s, %s, %s" % (vr(O, 16), vr(V[(t - 1) & 1] + 4, 4), vr(P + 4, 4), "0" if trim and T == 1 else vr(O, 16)))
        k("s_mov_b64 exec, s[20:21]")
        k("ds_read_b128 %s, v%d offset:%d" % (vr(V[t & 1], 4), AV, voff(t, 0)))
        k("ds_read_b128 %s, v%d offset:%d" % (vr(V[t & 1] + 4, 4), AV, voff(t, 1)))
        k("s_mov_b64 exec, -1")
        ex(4, 8)
        k("v_mfma_f32_32x32x8bf16_1k %s, %s, %s, %s" % (vr(sn, 16), vr(K2[((t + 1) >> 1) & 1], 2), vr(Q2[(t + 1) & 1], 2), vr(sn, 16)))
        ex(8, 12)
        if not (trim and T == 0):
            k("v_mfma_f32_32x32x16_bf16 %s, %s, %s, %s" % (vr(O, 16), vr(V[(t - 1) & 1], 4), vr(P, 4), vr(O, 16)))
        ex(12, 16)
        if prio: setp(0, hp[1], T)
        if bump:
            k("v_add_u32 v%d, %d, v%d" % (AK, bump, AK))
            k("v_add_u32 v%d, %d, v%d" % (AK2, bump, AK2))
            k("v_add_u32 v%d, %d, v%d" % (AV, bump, AV))
        if mid: mid()
        cv(0, 8)
    head()
    k.ts(5)
    n0 = len(k.L)
    mids = {}; pres = {}
    def add(d, T, f): d.setdefault(T, []).append(f)
    d0 = opt.get("s2_d0", 0); dstep = opt.get("s2_dstep", 1)
    for j in range(npro, 20): add(mids, d0 + (j - npro)*dstep, lambda j=j: dma(j))
    sl0 = opt.get("s2_sl0", 16); sls = opt.get("s2_sls", 2)
    ss0 = opt.get("s2_ss0", 36); sss = opt.get("s2_sss", 2)
    if not opt.get("noside"):
        for j in range(8): add(mids, sl0 + j*sls, lambda j=j: side_load1(k, vm, WL, wldpol, j))
        for i in range(4): add(mids, ss0 + i*sss, lambda i=i: side_store1(k, vm, WL, WP, WA, wstpol, i))
        if csp:
            if opt.get("s2_csd", 0) < 2: add(mids, ss0 + 3*sss + 1, lambda: side_cs1(k, WL, WP, 164))
            if opt.get("s2_csd", 0) < 1: add(mids, ss0 + 3*sss + opt.get("s2_cs2", 2), lambda: side_cs2(k, vm, WL, 4, opt.get("s2_cspol", wstpol).replace("_", " ")))
    add(mids, 4*pfit, lambda: vm.op("pf", "buffer_load_dword v%d, v%d, s[40:43], 0 offen" % (PFD, PFA)))
    def wbhint(n):
        def f():
            L = k.label("wb")
            k("s_lshl_b32 s3, s11, 3")
            k("s_add_u32 s3, s3, s26")
            k("s_cmp_lg_u32 s3, %d" % n)
            k("s_cbranch_scc1 %s" % L)
            k("buffer_wbl2 sc1")
            k.put(L)
        return f
    for i, T in enumerate(str(opt.get("s2_wb", "")).split("x")):
        if T: add(mids, int(T), wbhint(7 + 8*i))
    def sync(j, tsi):
        def f():
            k.ts(tsi)
            vm.wait(("d", j))
            k("s_barrier")
            k.ts(tsi + 1)
        return f
    syncs = {4: 4, 12: 9, 28: 19}
    if opt.get("s2_sync4"): syncs = {4: 4, 12: 9, 28: 14, 44: 19}
    for n, (T, j) in enumerate(sorted(syncs.items())): add(pres, T, sync(j, 6 + 2*n if n < 3 else 2))
    add(pres, 48, lambda: k.ts(2))
    def run(l):
        return (lambda: [f() for f in l]) if l else None
    for T in range(64):
        tile(T & 15, 40960 if (T & 15) == 15 and T < 63 else 0, run(pres.get(T)), run(mids.get(T)), T)
    dg = opt.get("s2_diag", "")
    if dg:
        def keep(ln):
            if "A" in dg and ln.startswith("v_mfma_f32_32x32x16_bf16 v[%d:" % O): return False
            if "B" in dg and ln.startswith("v_mfma_f32_32x32x8"): return False
            if "C" in dg and ln.startswith("v_exp"): return False
            if "D" in dg and ln.startswith("ds_read"): return False
            if "E" in dg and ln.startswith("v_cvt"): return False
            if "F" in dg and ln.startswith("v_mfma"): return False
            return True
        k.L[n0:] = [ln for ln in k.L[n0:] if keep(ln)]
        k("s_mov_b32 s31, 1")
    k.put(FIN)
    k.ts(12)
    k("s_waitcnt lgkmcnt(0)")
    k("v_mfma_f32_32x32x16_bf16 %s, %s, %s, %s" % (vr(O, 16), vr(V[1], 4), vr(P, 4), vr(O, 16)))
    k("v_mfma_f32_32x32x16_bf16 %s, %s, %s, %s" % (vr(O, 16), vr(V[1] + 4, 4), vr(P + 4, 4), vr(O, 16)))
    k("v_mov_b32 v5, 0x%x" % f2u(2.0**60))
    k("s_waitcnt vmcnt(0)")
    k("s_nop 14")
    k("v_mov_b32 v6, v%d" % (O + 8))
    k("v_mov_b32 v7, v%d" % (O + 8))
    k("s_nop 1")
    k("v_permlane32_swap_b32 v6, v7")
    k("s_nop 1")
    k("v_cmp_nlt_f32 vcc, v7, v5")
    k("v_rcp_f32 v7, v7")
    k("s_cmp_eq_u32 s31, 0")
    k("s_cselect_b64 s[34:35], vcc, 0")
    k("s_cmp_lg_u64 s[34:35], 0")
    k("s_cbranch_scc1 %s" % FB)
    for r in range(12):
        k("v_mul_f32 v%d, v%d, v7" % (O + r, O + r))
    for r in range(6):
        k("v_cvt_pk_bf16_f32 v%d, v%d, v%d" % (O + r, O + 2*r, O + 2*r + 1))
    k("buffer_store_dwordx4 %s, v%d, s[16:19], s33 offen %s" % (vr(O, 4), OA, stpol))
    k("s_mov_b64 exec, s[22:23]")
    k("buffer_store_dwordx2 %s, v%d, s[16:19], s33 offen %s" % (vr(O + 4, 2), OB, stpol))
    k.tsdump()
    k.put(END)
    k("s_endpgm")
    k.put(FB)
    FL = k.label("fl")
    k("s_mov_b32 s31, 1")
    k("s_mov_b32 s32, 0")
    k("v_mov_b32 v%d, v2" % AK)
    k("v_lshlrev_b32 v%d, 3, v0" % AK2)
    k("v_mov_b32 v6, 0xff800000")
    k.put(FL)
    k("ds_read_b128 %s, v%d" % (vr(K1[0], 4), AK))
    k("ds_read_b128 %s, v%d offset:1024" % (vr(K1[1], 4), AK))
    k("ds_read_b64 %s, v%d offset:2048" % (vr(K2[0], 2), AK2))
    k("s_waitcnt lgkmcnt(0)")
    for t in range(2):
        k("v_mfma_f32_32x32x16_bf16 %s, %s, %s, 0" % (vr(S[t], 16), vr(K1[t], 4), vr(Q1, 4)))
        k("v_mfma_f32_32x32x8bf16_1k %s, %s, %s, %s" % (vr(S[t], 16), vr(K2[0], 2), vr(Q2[t], 2), vr(S[t], 16)))
    k("v_add_u32 v%d, 5120, v%d" % (AK, AK))
    k("v_add_u32 v%d, 5120, v%d" % (AK2, AK2))
    k("s_nop 15")
    for i in range(16):
        k("v_max3_f32 v6, v6, v%d, v%d" % (S[0] + 2*i, S[0] + 2*i + 1))
    k("s_add_u32 s32, s32, 1")
    k("s_cmp_lt_u32 s32, 32")
    k("s_cbranch_scc1 %s" % FL)
    k("v_mov_b32 v%d, v2" % AK)
    k("v_lshlrev_b32 v%d, 3, v0" % AK2)
    k("v_mul_u32_u24 v%d, 320, v9" % AV)
    k("v_lshl_add_u32 v%d, v8, 4, v%d" % (AV, AV))
    k("ds_read_b128 %s, v%d" % (vr(K1[0], 4), AK))
    k("ds_read_b64 %s, v%d offset:2048" % (vr(K2[0], 2), AK2))
    for r in range(16):
        k("v_mov_b32 v%d, 0" % (O + r))
    for r in range(8):
        k("v_mov_b32 v%d, 0" % (P + r))
    k("s_waitcnt lgkmcnt(0)")
    k("v_mfma_f32_32x32x16_bf16 %s, %s, %s, 0" % (vr(S[0], 16), vr(K1[0], 4), vr(Q1, 4)))
    k("v_mfma_f32_32x32x8bf16_1k %s, %s, %s, %s" % (vr(S[0], 16), vr(K2[0], 2), vr(Q2[0], 2), vr(S[0], 16)))
    k("ds_read_b128 %s, v%d offset:1024" % (vr(K1[1], 4), AK))
    k("ds_read_b64 %s, v%d offset:%d" % (vr(K2[1], 2), AK2, 5120 + 2048))
    k("ds_read_b128 %s, v%d offset:5120" % (vr(K1[0], 4), AK))
    k("s_nop 13")
    head()
    k.put(LOOP)
    for t in range(4):
        tile(t, 10240 if t == 3 else 0)
    k("s_add_u32 s32, s32, 1")
    k("s_cmp_lt_u32 s32, 16")
    k("s_cbranch_scc1 %s" % LOOP)
    k("s_branch %s" % FIN)
    return k
```

```python
from asmlib import *
from lay import *

FULL = [0, 0]
def _sel(k, n):
    k("s_cmp_ge_u32 s51, %d" % n)
    k("s_cselect_b64 vcc, -1, 0")
    k("s_cselect_b32 s3, 4, 16")
    k("v_cndmask_b32 v12, v12, v14, vcc")
    k("v_add_u32 v13, s3, v12")

def _dest_5(k, WA):
    k("s_lshl_b32 s3, s52, 2")
    k("v_lshrrev_b32 v14, 2, v11")
    k("v_add_u32 v14, s3, v14")
    k("v_mul_u32_u24 v15, 205, v14")
    k("v_lshrrev_b32 v15, 10, v15")
    k("v_mul_u32_u24 v%d, 5, v15" % WA)
    k("v_sub_u32 v14, v14, v%d" % WA)
    k("v_mul_u32_u24 v15, s54, v15")
    k("s_mul_i32 s3, s51, 5")
    k("v_add3_u32 v14, v14, v15, s3")

def _finish(k, WA, SA=12, CA=None):
    if CA is not None:
        k("v_and_b32 v15, 3, v11")
        k("v_lshlrev_b32 v15, 4, v15")
        k("v_lshl_add_u32 v15, v10, 2, v15")
        k("v_lshl_add_u32 v15, v14, 6, v15")
        k("v_add_u32 v%d, s59, v15" % CA)
    k("v_and_b32 v15, 3, v11")
    k("v_lshlrev_b32 v15, 6, v15")
    k("v_lshl_add_u32 v15, v10, 8, v15")
    k("v_lshl_add_u32 v14, v14, 10, v15")
    k("v_add_u32 v%d, s55, v14" % WA)
    k("s_lshl_b32 s3, s52, 7")
    k("v_lshl_add_u32 v11, v11, 3, s3")
    k("v_mad_u32_u24 v%d, v12, s53, v11" % SA)
    k("v_mad_u32_u24 v%d, v13, s53, v11" % (SA + 1))

def side_addr_wo(k, WA, SA):
    k("v_lshrrev_b32 v10, 4, v0")
    k("v_and_b32 v11, 15, v0")
    k("s_mul_i32 s51, s50, 6554")
    k("s_lshr_b32 s51, s51, 16")
    k("s_mul_i32 s52, s51, 10")
    k("s_sub_u32 s52, s50, s52")
    k("s_movk_i32 s53, 1280")
    k("s_lshl_b32 s3, s51, 2")
    k("v_add_u32 v12, s3, v10")
    k("v_mul_u32_u24 v13, 205, v12")
    k("v_lshrrev_b32 v13, 10, v13")
    k("v_mul_u32_u24 v14, 5, v13")
    k("v_sub_u32 v12, v12, v14")
    k("v_mul_u32_u24 v13, 40, v13")
    k("v_cmp_eq_u32 vcc, 4, v12")
    k("v_lshrrev_b32 v14, 1, v12")
    k("v_mul_u32_u24 v14, 20, v14")
    k("v_and_b32 v12, 1, v12")
    k("v_lshl_add_u32 v14, v12, 2, v14")
    k("v_cndmask_b32 v14, v14, 16, vcc")
    k("v_add_u32 v12, v13, v14")
    k("v_mov_b32 v13, 8")
    k("v_cndmask_b32 v13, v13, 20, vcc")
    k("v_add_u32 v13, v12, v13")
    k("s_movk_i32 s54, 100")
    k("s_mov_b32 s55, 0x%x" % WO)
    k("s_cmp_ge_u32 s50, 200")
    k("s_cselect_b32 s55, 0x40000000, s55")
    _dest_5(k, WA)
    _finish(k, WA, SA)

def side_addr_gud(k, WA, CA=None):
    LD = k.label("d"); LU = k.label("u"); LGU = k.label("gu"); LF = k.label("f")
    k("v_lshrrev_b32 v10, 4, v0")
    k("v_and_b32 v11, 15, v0")
    k("s_cmp_lt_u32 s50, 1080")
    k("s_cbranch_scc1 %s" % LD)
    k.srd(36, 48, WGB)
    k("s_sub_u32 s50, s50, 1080")
    k("s_mul_i32 s51, s50, 6554")
    k("s_lshr_b32 s51, s51, 16")
    k("s_mul_i32 s52, s51, 10")
    k("s_sub_u32 s52, s50, s52")
    k("s_movk_i32 s53, 1280")
    if FULL[0]:
        k("s_mul_i32 s3, s51, 43")
        k("s_lshr_b32 s3, s3, 7")
        k("s_lshl_b32 s54, s51, 1")
        k("s_add_u32 s54, s54, s3")
        k("s_lshr_b32 s3, s3, 2")
        k("s_sub_u32 s3, s54, s3")
        k("s_lshl_b32 s3, s3, 4")
        k("v_lshl_add_u32 v12, v10, 2, s3")
        k("s_lshl_b32 s3, s51, 1")
        k("s_sub_u32 s3, s3, 96")
        k("v_lshrrev_b32 v14, 1, v10")
        k("v_add_u32 v14, s3, v14")
        k("v_mul_u32_u24 v15, 43, v14")
        k("v_lshrrev_b32 v15, 7, v15")
        k("v_mul_u32_u24 v15, 96, v15")
        k("v_mul_u32_u24 v14, 112, v14")
        k("v_and_b32 v13, 1, v10")
        k("v_lshl_add_u32 v14, v13, 3, v14")
        k("v_add3_u32 v14, v14, v15, 48")
        k("v_add_u32 v14, 48, v14")
        _sel(k, 48)
    else:
        k("s_lshl_b32 s3, s51, 5")
        k("v_lshl_add_u32 v12, v10, 2, s3")
        k("v_add_u32 v13, 16, v12")
    k("s_movk_i32 s54, 270")
    k("s_mov_b32 s55, 0x%x" % WD)
    if CA is not None: k("s_mov_b32 s59, 0x40000000")
    k("s_cmp_ge_u32 s50, 540")
    k("s_cselect_b32 s55, 0x40000000, s55")
    _dest_5(k, WA)
    k("s_branch %s" % LF)
    k.put(LD)
    k("s_cmp_ge_u32 s50, 540")
    k("s_cbranch_scc1 %s" % LU)
    k.srd(36, 44, WGB)
    k("s_mov_b32 s56, 0")
    k("s_branch %s" % LGU)
    k.put(LU)
    k.srd(36, 46, WGB)
    k("s_sub_u32 s50, s50, 540")
    k("s_mov_b32 s56, 7")
    k.put(LGU)
    k("s_mul_i32 s51, s50, 2428")
    k("s_lshr_b32 s51, s51, 16")
    k("s_mul_i32 s52, s51, 27")
    k("s_sub_u32 s52, s50, s52")
    k("s_movk_i32 s53, 3456")
    if FULL[1]:
        k("s_lshr_b32 s3, s51, 1")
        k("s_lshl_b32 s54, s51, 1")
        k("s_add_u32 s3, s3, s54")
        k("s_lshl_b32 s3, s3, 4")
        k("v_lshl_add_u32 v12, v10, 2, s3")
        k("s_lshl_b32 s3, s51, 1")
        k("s_sub_u32 s3, s3, 32")
        k("v_lshrrev_b32 v14, 1, v10")
        k("v_add_u32 v14, s3, v14")
        k("v_mul_u32_u24 v14, 80, v14")
        k("v_and_b32 v13, 1, v10")
        k("v_lshl_add_u32 v14, v13, 3, v14")
        k("v_add_u32 v14, 64, v14")
        _sel(k, 16)
    else:
        k("s_lshl_b32 s3, s51, 5")
        k("v_lshl_add_u32 v12, v10, 2, s3")
        k("v_add_u32 v13, 16, v12")
    k("s_mov_b32 s55, 0x%x" % GU)
    if CA is not None: k("s_mov_b32 s59, 0x%x" % CS)
    k("s_lshl_b32 s3, s52, 2")
    k("v_lshrrev_b32 v14, 2, v11")
    k("v_add_u32 v14, s3, v14")
    k("v_mul_u32_u24 v15, 2428, v14")
    k("v_lshrrev_b32 v15, 16, v15")
    k("v_mul_u32_u24 v%d, 27, v15" % WA)
    k("v_sub_u32 v14, v14, v%d" % WA)
    k("v_mul_u32_u24 v%d, 37, v14" % WA)
    k("v_lshrrev_b32 v%d, 8, v%d" % (WA, WA))
    k("v_lshl_add_u32 v15, v15, 2, v%d" % WA)
    k("v_mul_u32_u24 v%d, 7, v%d" % (WA, WA))
    k("v_sub_u32 v14, v14, v%d" % WA)
    k("v_mul_u32_u24 v15, 280, v15")
    k("s_mul_i32 s3, s51, 14")
    k("s_add_u32 s3, s3, s56")
    k("v_add3_u32 v14, v14, v15, s3")
    k.put(LF)
    _finish(k, WA, 12, CA)

def side_addr_gud2(k, WA, CA):
    k("""
    v_lshrrev_b32 v10, 4, v0
    v_and_b32 v11, 15, v0
    s_movk_i32 s60, 2428
    s_movk_i32 s96, 147
    s_movk_i32 s97, 273
    s_cmpk_ge_u32 s50, 1620
    s_cselect_b32 s55, 0x40000000, 0x%x
    s_cmpk_ge_u32 s50, 540
    s_cselect_b64 s[36:37], s[46:47], s[44:45]
    s_cselect_b32 s56, 7, 0
    s_cselect_b32 s3, 540, 0
    s_cmpk_ge_u32 s50, 1080
    s_cselect_b64 s[36:37], s[48:49], s[36:37]
    s_cmovk_i32 s3, 1080
    s_cselect_b32 s55, s55, 0x%x
    s_cselect_b32 s59, 0x40000000, 0x%x
    s_cselect_b32 s56, 0, s56
    s_cselect_b32 s51, 6554, s60
    s_cselect_b32 s60, 0, s60
    s_cselect_b32 s52, 10, 27
    s_cselect_b32 s54, 43, 64
    s_cselect_b32 s61, 2, 31
    s_cselect_b32 s62, 48, 16
    s_cselect_b32 s63, 7, 5
    s_cselect_b32 s34, 6, 0
    s_cmovk_i32 s96, 205
    s_cmovk_i32 s97, 265
    s_cselect_b32 s98, 5, 14
    s_and_b32 s37, s37, 0xffff
    s_mov_b32 s38, 0x%x
    s_mov_b32 s39, 0x00020000
    s_sub_u32 s50, s50, s3
    s_mul_i32 s51, s50, s51
    s_lshr_b32 s51, s51, 16
    s_lshl_b32 s53, s52, 7
    s_mul_i32 s52, s51, s52
    s_sub_u32 s52, s50, s52
    """ % (WD, GU, CS, WGB))
    k("""
    s_mul_i32 s3, s51, s54
    s_lshr_b32 s3, s3, 7
    s_lshr_b32 s61, s3, s61
    s_sub_u32 s3, s3, s61
    s_lshl1_add_u32 s3, s51, s3
    s_sub_u32 s54, s51, s62
    s_lshl_b32 s54, s54, 1
    s_mul_i32 s61, s54, 43
    s_lshr_b32 s61, s61, 7
    s_mul_i32 s61, s61, s34
    s_add_u32 s54, s54, 1
    s_mul_i32 s35, s54, s63
    s_add_u32 s35, s35, s61
    s_mul_i32 s54, s54, 43
    s_lshr_b32 s54, s54, 7
    s_mul_i32 s54, s54, s34
    s_sub_u32 s54, s54, s61
    s_add_u32 s54, s54, s63
    s_lshl_b32 s54, s54, 4
    s_sub_u32 s35, s35, 1
    s_cmp_ge_u32 s51, s62
    s_cselect_b32 s3, s35, s3
    s_cselect_b32 s54, s54, 8
    s_cselect_b32 s61, 8, 4
    s_cselect_b32 s62, 4, 16
    s_lshl_b32 s3, s3, 4
    v_and_b32 v13, 1, v10
    v_mul_u32_u24 v12, s54, v9
    v_mul_u32_u24 v13, s61, v13
    v_add3_u32 v12, v12, v13, s3
    v_add_u32 v13, s62, v12
    s_lshl_b32 s3, s52, 2
    v_lshrrev_b32 v14, 2, v11
    v_add_u32 v14, s3, v14
    v_mul_u32_u24 v15, s60, v14
    v_lshrrev_b32 v15, 16, v15
    v_add_u32 v14, v14, v15
    v_mul_u32_u24 v15, s96, v14
    v_lshrrev_b32 v15, 10, v15
    v_mad_u32_u24 v14, v15, s97, v14
    s_mul_i32 s3, s51, s98
    s_add_u32 s3, s3, s56
    v_add_u32 v14, s3, v14
    """)
    _finish(k, WA, 12, CA)

def side_loads(k, WL, pol, SA=12, srd=36):
    k("s_mov_b32 s57, 0")
    for j in range(4):
        k("buffer_load_dwordx2 %s, v%d, s[%d:%d], s57 offen %s" % (vr(WL + 2*j, 2), SA, srd, srd + 3, pol))
        k("buffer_load_dwordx2 %s, v%d, s[%d:%d], s57 offen %s" % (vr(WL + 8 + 2*j, 2), SA + 1, srd, srd + 3, pol))
        if j < 3: k("s_add_u32 s57, s57, s53")

def side_stores(k, WL, WP, WA, pol, srd=16):
    k("s_mov_b32 s50, 0x05040100")
    k("s_mov_b32 s51, 0x07060302")
    for i in range(4):
        for m in range(4):
            lo = WL + 4*m + (i >> 1); hi = lo + 2
            k("v_perm_b32 v%d, v%d, v%d, s%d" % (WP + 4*i + m, hi, lo, 50 + (i & 1)))
        k("buffer_store_dwordx4 %s, v%d, s[%d:%d], 0 offen offset:%d %s" % (vr(WP + 4*i, 4), WA, srd, srd + 3, 16*i, pol))

def side_load1(k, vm, WL, pol, n, SA=12, srd=36):
    j = n >> 1; h = n & 1
    pre = []
    if n == 0: pre = ["s_mov_b32 s57, 0"]
    elif h == 0: pre = ["s_add_u32 s57, s57, s53"]
    vm.op("sl", *(pre + ["buffer_load_dwordx2 %s, v%d, s[%d:%d], s57 offen %s" % (vr(WL + 8*h + 2*j, 2), SA + h, srd, srd + 3, pol)]))

def side_store1(k, vm, WL, WP, WA, pol, i, srd=16):
    if i == 0:
        k("s_mov_b32 s50, 0x05040100")
        k("s_mov_b32 s51, 0x07060302")
        vm.wait("sl")
    for m in range(4):
        lo = WL + 4*m + (i >> 1); hi = lo + 2
        k("v_perm_b32 v%d, v%d, v%d, s%d" % (WP + 4*i + m, hi, lo, 50 + (i & 1)))
    vm.op("ss", "buffer_store_dwordx4 %s, v%d, s[%d:%d], 0 offen offset:%d %s" % (vr(WP + 4*i, 4), WA, srd, srd + 3, 16*i, pol))

def side_cs1(k, WL, WP, ONE):
    for i in range(4):
        k("v_mfma_f32_16x16x32_bf16 %s, %s, %s, 0" % (vr(WL + 4*i, 4), vr(ONE, 4), vr(WP + 4*i, 4)))

def side_cs2(k, vm, WL, CA, pol, srd=16):
    for i in range(1, 4):
        k("v_mov_b32_dpp v%d, v%d quad_perm:[0,1,2,3] row_mask:0x%x bank_mask:0xf" % (WL, WL + 4*i, 1 << i))
    vm.op("cs", "buffer_store_dword v%d, v%d, s[%d:%d], 0 offen %s" % (WL, CA, srd, srd + 3, pol))
```

```python
from asmlib import *
from lay import *
from side import *
from gemm import VM

def gen_s1(opt=None):
    opt = opt or {}
    ldpol = opt.get("s1_ldpol", "")
    stpol = opt.get("s1_stpol", "").replace("_", " ")
    fl1 = opt.get("fl1", 0)
    k = Kern("s1_qkv_kernel", 256, 512, 163840, nv=232)
    k.tson = opt.get("ts", 0); k.kid = 0
    k.ts(0, True); k.ts(1)
    ACC = 64; SX = 128; SQ = 132; SW = 136; SEL = 140
    def XF(p, a): return 144 + p*16 + a*4
    def WF(p, b): return 152 + p*16 + b*4
    def XA(c, a, kk): return 176 + c*8 + a*4 + kk
    def WA(c, b): return 200 + c*2 + b
    XD = 206; WD_ = 210; SA = 214
    END = k.label("end")
    k("s_cmp_ge_u32 s2, 256")
    k("s_cbranch_scc1 %s" % END)
    k("s_load_dwordx4 s[4:7], s[0:1], 0")
    k("s_load_dwordx2 s[8:9], s[0:1], 72")
    k("""
    s_and_b32 s10, s2, 7
    s_lshr_b32 s11, s2, 3
    s_lshr_b32 s24, s10, 1
    s_lshl_b32 s24, s24, 2
    s_and_b32 s3, s11, 3
    s_add_u32 s24, s24, s3
    s_and_b32 s25, s10, 1
    s_lshl_b32 s25, s25, 3
    s_lshr_b32 s3, s11, 2
    s_add_u32 s25, s25, s3
    s_cmp_ge_u32 s25, 15
    """)
    WOJ = k.label("woj")
    k("s_cbranch_scc1 %s" % WOJ)
    LC = k.label("c")
    k("""
    v_lshrrev_b32 v1, 6, v0
    v_and_b32 v0, 63, v0
    v_readfirstlane_b32 s26, v1
    v_lshrrev_b32 v2, 3, v0
    v_lshrrev_b32 v3, 4, v0
    v_and_b32 v4, 7, v0
    s_cmp_lt_u32 s26, 4
    """)
    k("s_cbranch_scc1 %s" % LC)
    k("""
    s_sub_u32 s27, s26, 4
    s_lshl_b32 s29, s27, 12
    s_lshl_b32 s3, s24, 7
    s_lshl_b32 s10, s27, 5
    s_add_u32 s3, s3, s10
    """)
    k("v_add_u32 v5, s3, v2")
    k("s_movk_i32 s10, 1280")
    k("v_mul_lo_u32 v5, v5, s10")
    for i in range(4):
        k("v_add_u32 v6, %d, v3" % (4*i))
        k("v_and_b32 v6, 7, v6")
        k("v_xor_b32 v6, v6, v4")
        k("v_lshl_add_u32 v6, v6, 4, v5")
        k("v_add_u32 v%d, %d, v6" % (XD + i, i*8*1280 - i*1024))
    k("s_lshl_b32 s3, s27, 4")
    k("v_add_u32 v5, s3, v3")
    k("s_movk_i32 s10, 3840")
    k("v_mul_lo_u32 v5, v5, s10")
    k("v_and_b32 v6, 15, v0")
    k("v_lshlrev_b32 v7, 2, v3")
    k("v_xor_b32 v6, v6, v7")
    k("v_lshl_add_u32 v5, v6, 4, v5")
    k("s_lshl_b32 s3, s25, 8")
    k("v_add_u32 v5, s3, v5")
    for i in range(4):
        k("v_add_u32 v%d, %d, v5" % (WD_ + i, i*4*3840 - i*1024))
    k("s_waitcnt lgkmcnt(0)")
    k.ts(12)
    k.srd(12, 4, XB)
    k.srd(16, 6, WQKVB)
    vm = VM(k)
    def batch(g):
        slot = g % 5
        for h, (v, srd, so, val) in enumerate(((XD, 12, 30, 0 if opt.get('s1_fx') else g*128), (WD_, 16, 31, 0 if opt.get('s1_fw') else g*64*3840))):
            for i in range(4):
                L = []
                if i == 0: L = ["s_add_u32 m0, s29, %d" % (slot*32768 + h*16384), "s_mov_b32 s%d, %d" % (so, val)]
                L.append("buffer_load_dwordx4 v%d, s[%d:%d], s%d offen offset:%d %s lds" % (v + i, srd, srd + 3, so, i*1024, ldpol))
                vm.op(("b", g), *L)
    spec = str(opt.get("s1_sched", "D0,D1,B0,D2,B1,D3,D4,B2,D5,B3,D6,D7,B4,D8,B5,D9,B6,B7,B8,B9")).split(",")
    first = True; pfs = False
    for e in spec:
        if e[0] == "D": batch(int(e[1:]))
        elif e[0] == "B":
            j = int(e[1:])
            if first: k.ts(2); first = False
            vm.wait(("b", j))
            k("s_barrier")
            if j in (0, 1, 2, 3, 5, 7, 9): k.ts(3 + (0, 1, 2, 3, 5, 7, 9).index(j))
        else:
            if not pfs:
                pfs = True
                k("s_and_b32 s10, s2, 7")
                k("s_lshr_b32 s3, s10, 1")
                k("s_lshl_b32 s3, s3, 9")
                k("s_lshl_b32 s32, s11, 4")
                k("s_add_u32 s3, s3, s32")
                k("s_lshl_b32 s32, s27, 2")
                k("s_add_u32 s3, s3, s32")
                k("v_and_b32 v8, 3, v0")
                k("v_add_u32 v8, s3, v8")
                k("v_mul_u32_u24 v8, 1280, v8")
                k("v_lshrrev_b32 v9, 2, v0")
                k("v_lshl_add_u32 v8, v9, 7, v8")
                k("s_lshl_b32 s3, s11, 1")
                k("s_lshr_b32 s32, s27, 1")
                k("s_add_u32 s3, s3, s32")
                k("s_mul_i32 s3, s3, 3840")
                k("s_and_b32 s32, s10, 1")
                k("s_lshl_b32 s32, s32, 11")
                k("s_add_u32 s3, s3, s32")
                k("s_and_b32 s32, s27, 1")
                k("s_lshl_b32 s32, s32, 10")
                k("s_add_u32 s3, s3, s32")
                k("v_mov_b32 v10, 245760")
                k("v_mul_lo_u32 v9, v2, v10")
                k("v_lshl_add_u32 v9, v4, 7, v9")
                k("v_add_u32 v9, s3, v9")
            ga, gb = [int(x) for x in e[1:].split("-")]
            while ga <= gb:
                n = min(8, gb - ga + 1)
                k("s_mov_b64 exec, 0x%x" % ((1 << 4*n) - 1))
                k("s_movk_i32 s32, %d" % (ga*128))
                vm.op("pf", "buffer_load_dword v10, v8, s[12:15], s32 offen")
                if n <= 4: k("s_mov_b64 exec, 0x%x" % ((1 << 8*n) - 1))
                else:
                    k("s_mov_b32 exec_lo, -1")
                    k("s_mov_b32 exec_hi, 0x%x" % ((1 << 8*(n - 4)) - 1))
                k("s_mov_b32 s32, %d" % (ga*245760))
                vm.op("pf", "buffer_load_dword v11, v9, s[16:19], s32 offen")
                k("s_mov_b64 exec, -1")
                ga += n
    k("s_barrier")
    k.tsdump()
    k("s_endpgm")
    k.put(LC)
    k("""
    s_lshr_b32 s27, s26, 1
    s_and_b32 s28, s26, 1
    s_waitcnt lgkmcnt(0)
    """)
    k.srd(20, 8, AO)
    k("""
    v_and_b32 v8, 31, v0
    v_lshrrev_b32 v9, 5, v0
    v_lshrrev_b32 v10, 1, v8
    v_and_b32 v10, 7, v10
    s_lshl_b32 s3, s27, 1
    s_add_u32 s32, s3, s28
    s_xor_b32 s33, s32, 1
    s_lshl_b32 s3, s28, 1
    s_add_u32 s34, s3, s27
    s_xor_b32 s35, s34, 1
    """)
    for a in range(2):
        k("s_lshl_b32 s3, s%d, 12" % (32 + a))
        k("v_lshl_add_u32 v11, v8, 7, s3")
        for kk in range(4):
            k("v_add_u32 v12, %d, v9" % (2*kk))
            k("v_xor_b32 v12, v12, v10")
            k("v_lshl_add_u32 v%d, v12, 4, v11" % XA(0, a, kk))
            for c in (1, 2):
                k("v_add_u32 v%d, 0x%x, v%d" % (XA(c, a, kk), c*65536, XA(0, a, kk)))
    k("""
    v_lshrrev_b32 v11, 2, v0
    v_and_b32 v11, 3, v11
    v_lshl_add_u32 v12, v9, 3, v11
    v_lshlrev_b32 v12, 8, v12
    v_and_b32 v13, 1, v3
    v_lshlrev_b32 v13, 1, v13
    %s
    v_lshl_add_u32 v12, v14, 3, v12
    v_lshl_add_u32 v12, v13, 4, v12
    v_add_u32 v12, 0x4000, v12
    """ % ("""s_cmp_ge_u32 s25, 10
    s_cselect_b32 s3, 1, 0
    s_xor_b32 s36, s3, 1
    v_bfe_u32 v14, v0, s3, 1
    v_or_b32 v13, v13, v14
    v_bfe_u32 v14, v0, s36, 1""" if fl1 else """v_bfe_u32 v14, v0, 1, 1
    v_or_b32 v13, v13, v14
    v_and_b32 v14, 1, v0"""))
    for b in range(2):
        k("v_xor_b32 v13, s%d, v11" % (34 + b))
        k("v_lshl_add_u32 v%d, v13, 6, v12" % WA(0, b))
        for c in (1, 2):
            k("v_add_u32 v%d, 0x%x, v%d" % (WA(c, b), c*65536, WA(0, b)))
    k("""
    v_xor_b32 v13, v0, v3
    v_and_b32 v13, 1, v13
    v_cmp_eq_u32 vcc, 0, v13
    v_mov_b32 v14, 0x3f803f80
    s_nop 0
    v_cndmask_b32 v140, 0, v14, vcc
    v_mov_b32 v141, v140
    v_mov_b32 v142, v140
    v_mov_b32 v143, v140
    """)
    for r in range(ACC, ACC + 76):
        k("v_mov_b32 v%d, 0" % r)
    LV = k.label("v"); LQK = k.label("qk"); LK = k.label("k"); LA = k.label("adr")
    k("s_mov_b32 s40, 1.0")
    k("s_cmp_ge_u32 s25, 10")
    k("s_cbranch_scc1 %s" % LV)

    def reads(p, s, kk):
        slot = s % 5; c = slot >> 1; o = (slot & 1)*32768
        return ["ds_read_b128 %s, v%d offset:%d" % (vr(XF(p, 0), 4), XA(c, 0, kk), o),
                "ds_read_b64_tr_b16 %s, v%d offset:%d" % (vr(WF(p, 0), 2), WA(c, 0), o + kk*4096),
                "ds_read_b64_tr_b16 %s, v%d offset:%d" % (vr(WF(p, 0) + 2, 2), WA(c, 0), o + kk*4096 + 1024),
                "ds_read_b64_tr_b16 %s, v%d offset:%d" % (vr(WF(p, 1), 2), WA(c, 1), o + kk*4096),
                "ds_read_b64_tr_b16 %s, v%d offset:%d" % (vr(WF(p, 1) + 2, 2), WA(c, 1), o + kk*4096 + 1024),
                "ds_read_b128 %s, v%d offset:%d" % (vr(XF(p, 1), 4), XA(c, 1, kk), o)]
    def mainloop(isv):
        def M(p, a, b):
            d = vr(ACC + (a*2 + b)*16, 16)
            x = vr(XF(p, a), 4); w = vr(WF(p, b), 4)
            A, B = (x, w) if isv else (w, x)
            return "v_mfma_f32_32x32x16_bf16 %s, %s, %s, %s" % (d, A, B, d)
        def stats(p):
            x = XF(p, 0); w = WF(p, 0)
            return ["v_mfma_f32_4x4x4_16b_bf16 %s, %s, %s, %s" % (vr(SQ, 4), vr(x, 2), vr(x, 2), vr(SQ, 4)),
                    "v_mfma_f32_16x16x32_bf16 %s, %s, %s, %s" % (vr(SX, 4), vr(SEL, 4), vr(x, 4), vr(SX, 4)),
                    "v_mfma_f32_16x16x32_bf16 %s, %s, %s, %s" % (vr(SW, 4), vr(SEL, 4), vr(w, 4), vr(SW, 4)),
                    "v_mfma_f32_4x4x4_16b_bf16 %s, %s, %s, %s" % (vr(SQ, 4), vr(x + 2, 2), vr(x + 2, 2), vr(SQ, 4))]
        k.ts(2)
        k("s_barrier")
        k.ts(3)
        for r in reads(0, 0, 0): k(r)
        p = 0
        n0 = len(k.L)
        pend = []
        for s in range(10):
            for kk in range(4):
                last = (s == 9 and kk == 3)
                st = stats(p)
                if kk < 3:
                    R = reads(p ^ 1, s, kk + 1)
                    k("s_waitcnt lgkmcnt(3)")
                    k(M(p, 0, 0)); k(R[0]); k(R[1]); k(R[2])
                    k("s_waitcnt lgkmcnt(4)")
                    k(M(p, 0, 1)); k(R[3]); k(R[4]); k(R[5])
                    k("s_waitcnt lgkmcnt(6)")
                    k(M(p, 1, 0))
                    for _ in range(2):
                        if pend:
                            for ln in pend.pop(0): k(ln)
                    k(M(p, 1, 1))
                    if pend:
                        for ln in pend.pop(0): k(ln)
                    for x in st: k(x)
                else:
                    assert not pend
                    k("s_waitcnt lgkmcnt(0)")
                    k(M(p, 0, 0)); k(M(p, 0, 1))
                    if not last:
                        k("s_barrier")
                        if s + 1 in (1, 2, 3, 5, 7, 9): k.ts(3 + (0, 1, 2, 3, 5, 7, 9).index(s + 1))
                        R = reads(p ^ 1, s + 1, 0)
                        k(M(p, 1, 0))
                        for r in R: k(r)
                        k(M(p, 1, 1))
                    else:
                        k(M(p, 1, 0)); k(M(p, 1, 1))
                    for x in st: k(x)
                p ^= 1
        dg = str(opt.get("s1_diag", ""))
        if dg:
            def keep(ln):
                if "S" in dg and (ln.startswith("v_mfma_f32_4x4") or ln.startswith("v_mfma_f32_16x16")): return False
                if "Q" in dg and ln.startswith("v_mfma_f32_4x4"): return False
                if "D" in dg and ln.startswith("ds_read"): return False
                if "T" in dg and ln.startswith("ds_read_b64"): return False
                if "X" in dg and ln.startswith("ds_read_b128"): return False
                if "M" in dg and ln.startswith("v_mfma_f32_32x32"): return False
                return True
            k.L[n0:] = [ln for ln in k.L[n0:] if keep(ln)]
        k.ts(10)
        k("s_nop 15")
        k("""
        v_and_b32 v13, 3, v0
        v_cmp_eq_u32 vcc, 1, v13
        v_cmp_eq_u32 s[42:43], 2, v13
        v_cmp_eq_u32 s[44:45], 3, v13
        v_and_b32 v14, 16, v0
        v_cmp_ne_u32 s[46:47], 0, v14
        v_cndmask_b32 v15, v132, v133, vcc
        v_cndmask_b32 v15, v15, v134, s[42:43]
        v_cndmask_b32 v15, v15, v135, s[44:45]
        v_cndmask_b32 v16, v128, v129, s[46:47]
        v_cndmask_b32 v17, v136, v137, s[46:47]
        v_mov_b32 v18, v15
        s_nop 1
        v_permlane32_swap_b32 v15, v18
        s_nop 1
        v_add_f32 v15, v15, v18
        """)
        k("v_mul_f32 v16, 0x%x, v16" % f2u(1.0/640))
        k("v_mul_f32 v15, 0x%x, v15" % f2u(1.0/640))
        k("v_fma_f32 v15, -v16, v16, v15")
        k("v_max_f32 v15, 0, v15")
        k("v_add_f32 v15, 0x%x, v15" % f2u(1e-5))
        k("v_rsq_f32 v15, v15")
        k("s_lshl_b32 s3, s32, 7")
        k("v_lshl_add_u32 v18, v8, 2, s3")
        k("v_mul_f32 v15, s40, v15")
        k("s_lshl_b32 s3, s34, 7")
        k("v_lshl_add_u32 v19, v8, 2, s3")
        k("ds_write_b32 v18, v16")
        k("ds_write_b32 v18, v15 offset:512")
        k("ds_write_b32 v19, v17 offset:1024")
        k("s_waitcnt lgkmcnt(0)")
        k("s_barrier")
        k.ts(11)

    k("s_cmp_ge_u32 s25, 5")
    k("s_cbranch_scc1 %s" % LK)
    k("s_mov_b32 s40, 0x%x" % f2u(QSCALE))
    k("s_mov_b32 s36, 81920")
    k("s_lshl_b32 s3, s24, 1")
    k("s_add_u32 s3, s3, s27")
    k("s_mul_i32 s37, s3, 2560")
    k("s_add_u32 s37, s37, 0x%x" % QS)
    k("s_movk_i32 s38, 1280")
    k("s_movk_i32 s39, 1024")
    k("s_movk_i32 s41, 1280")
    k("s_lshl_b32 s48, s25, 5")
    k("s_branch %s" % LA)
    k.put(LK)
    k("s_mov_b32 s36, 163840")
    k("s_lshl_b32 s3, s24, 1")
    k("s_add_u32 s3, s3, s27")
    k("s_mul_i32 s37, s3, 5120")
    k("s_add_u32 s37, s37, 0x%x" % KV)
    k("s_movk_i32 s38, 1024")
    k("s_movk_i32 s39, 2048")
    k("s_movk_i32 s41, 256")
    k("s_sub_u32 s48, s25, 5")
    k("s_lshl_b32 s48, s48, 5")
    k.put(LA)
    if fl1:
        k("s_lshr_b32 s48, s48, 1")
        k("s_lshl_b32 s39, s28, 10")
        k("s_lshl_b32 s38, s28, 11")
        k("s_sub_u32 s38, 1024, s38")
        k("v_mov_b32 v20, s38")
        k("v_mov_b32 v21, s36")
        k("v_lshl_add_u32 v22, v8, 4, s37")
        k("v_mov_b32 v23, 2048")
        for b in range(2):
            k("s_lshl_b32 s3, s%d, 2" % (34 + b))
            k("s_add_u32 s3, s3, s48")
            for ip in range(2):
                m = 52 + 4*b + 2*ip
                if ip: k("s_add_u32 s3, s3, 2")
                k("v_add_u32 v13, s3, v9")
                k("v_mul_u32_u24 v14, 205, v13")
                k("v_lshrrev_b32 v14, 10, v14")
                k("v_mul_u32_u24 v15, 5, v14")
                k("v_sub_u32 v15, v13, v15")
                k("v_cmp_eq_u32 s[%d:%d], 2, v15" % (m, m + 1))
                k("v_mul_u32_u24 v16, 43, v15")
                k("v_lshrrev_b32 v16, 7, v16")
                k("v_lshl_add_u32 v14, v14, 1, v16")
                k("v_mul_u32_u24 v16, 3, v16")
                k("v_sub_u32 v15, v15, v16")
                k("v_lshl_add_u32 v15, v15, 9, s39")
                k("v_cndmask_b32 v15, v15, v23, s[%d:%d]" % (m, m + 1))
                k("v_cndmask_b32 v16, v20, v21, s[%d:%d]" % (m, m + 1))
                k("v_mul_lo_u32 v14, v14, s36")
                k("v_add3_u32 v%d, v14, v15, v22" % (SA + (b*2 + ip)*2))
                k("v_add_u32 v%d, v%d, v16" % (SA + (b*2 + ip)*2 + 1, SA + (b*2 + ip)*2))
    else:
        k("v_mov_b32 v20, s38")
        k("v_mov_b32 v21, s41")
        k("v_lshlrev_b32 v22, 4, v8")
        k("v_lshl_add_u32 v23, v8, 3, s39")
        k("s_cmp_eq_u32 s28, 0")
        k("s_cselect_b64 s[50:51], -1, 0")
        for b in range(2):
            k("s_lshl_b32 s3, s%d, 3" % (34 + b))
            k("s_add_u32 s3, s3, s48")
            for i in range(4):
                k("v_add_u32 v13, s3, v9")
                if i: k("v_add_u32 v13, %d, v13" % (2*i))
                k("v_mul_u32_u24 v14, 205, v13")
                k("v_lshrrev_b32 v14, 10, v14")
                k("v_mul_u32_u24 v15, 5, v14")
                k("v_sub_u32 v15, v13, v15")
                k("v_cmp_eq_u32 vcc, 4, v15")
                k("v_lshrrev_b32 v16, 1, v15")
                k("v_lshl_add_u32 v16, v16, 9, v22")
                k("v_and_b32 v17, 1, v15")
                k("v_lshl_add_u32 v16, v17, 3, v16")
                k("v_cndmask_b32 v16, v16, v23, vcc")
                k("v_cndmask_b32 v17, v20, v21, vcc")
                k("v_mul_lo_u32 v14, v14, s36")
                k("v_add3_u32 v16, v16, v14, s37")
                k("v_add_u32 v17, v16, v17")
                k("v_cndmask_b32 v%d, v17, v16, s[50:51]" % (SA + (0*2 + b)*4 + i))
                k("v_cndmask_b32 v%d, v16, v17, s[50:51]" % (SA + (1*2 + b)*4 + i))
    mainloop(False)
    for a in range(2):
        k("s_lshl_b32 s3, s%d, 7" % (32 + a))
        k("v_lshl_add_u32 v13, v8, 2, s3")
        k("ds_read_b32 v%d, v13" % (20 + 2*a))
        k("ds_read_b32 v%d, v13 offset:512" % (21 + 2*a))
    for b in range(2):
        k("s_lshl_b32 s3, s%d, 7" % (34 + b))
        k("v_lshl_add_u32 v13, v9, 4, s3")
        for i in range(4):
            k("ds_read_b128 %s, v13 offset:%d" % (vr(24 + 16*b + 4*i, 4), 1024 + 32*i))
    k("s_waitcnt lgkmcnt(0)")
    def qk4(a, b, i, o):
        d = ACC + (a*2 + b)*16
        for h in range(2):
            r = d + 4*i + 2*h
            k("v_pk_fma_f32 %s, %s, %s, %s op_sel:[0,0,0] op_sel_hi:[1,0,1] neg_lo:[0,1,0] neg_hi:[0,1,0]" % (vr(r, 2), vr(24 + 16*b + 4*i + 2*h, 2), vr(20 + 2*a, 2), vr(r, 2)))
        for h in range(2):
            r = d + 4*i + 2*h
            k("v_pk_mul_f32 %s, %s, %s op_sel:[0,1] op_sel_hi:[1,1]" % (vr(r, 2), vr(r, 2), vr(20 + 2*a, 2)))
        k("v_cvt_pk_bf16_f32 v%d, v%d, v%d" % (o, d + 4*i, d + 4*i + 1))
        k("v_cvt_pk_bf16_f32 v%d, v%d, v%d" % (o + 1, d + 4*i + 2, d + 4*i + 3))
    if fl1:
        for b in range(2):
            for ip in range(2):
                m = 52 + 4*b + 2*ip
                o = [ACC + (a*2 + b)*16 + 8*ip for a in range(2)]
                for a in range(2):
                    for h in range(2): qk4(a, b, 2*ip + h, o[a] + 2*h)
                k("s_mov_b64 exec, s[%d:%d]" % (m, m + 1))
                k("v_swap_b32 v%d, v%d" % (o[0] + 2, o[1]))
                k("v_swap_b32 v%d, v%d" % (o[0] + 3, o[1] + 1))
                k("s_mov_b64 exec, -1")
                for a in range(2):
                    k("buffer_store_dwordx4 %s, v%d, s[20:23], 0 offen %s" % (vr(o[a], 4), SA + (b*2 + ip)*2 + a, stpol))
    else:
        for a in range(2):
            for b in range(2):
                d = ACC + (a*2 + b)*16
                for i in range(4):
                    qk4(a, b, i, d + 4*i)
                    k("buffer_store_dwordx2 %s, v%d, s[20:23], 0 offen %s" % (vr(d + 4*i, 2), SA + (a*2 + b)*4 + i, stpol))
    k.tsdump()
    k("s_endpgm")
    k.put(LV)
    k("s_lshl_b32 s3, s24, 1")
    k("s_add_u32 s3, s3, s27")
    k("s_mul_i32 s37, s3, 5120")
    k("s_add_u32 s37, s37, 0x%x" % (KV + 2560))
    k("s_sub_u32 s48, s25, 10")
    k("s_lshl_b32 s48, s48, 7")
    k("s_mov_b32 s36, 163840")
    k("s_mul_i32 s38, s28, 1280")
    k("s_sub_u32 s39, 1280, s38")
    k("v_mul_u32_u24 v16, 320, v9")
    for b in range(2):
        k("s_lshl_b32 s3, s%d, 5" % (34 + b))
        k("s_add_u32 s3, s3, s48")
        k("v_add_u32 v13, s3, v8")
        k("v_mul_u32_u24 v14, 3277, v13")
        k("v_lshrrev_b32 v14, 16, v14")
        k("v_mul_u32_u24 v15, 20, v14")
        k("v_sub_u32 v15, v13, v15")
        if fl1:
            k("v_lshrrev_b32 v16, 2, v15")
            k("v_lshrrev_b32 v17, 3, v15")
            k("v_xor_b32 v17, v17, v16")
            k("v_xor_b32 v17, v17, v9")
            k("v_and_b32 v17, 1, v17")
            k("v_lshl_add_u32 v16, v16, 1, v17")
            k("v_and_b32 v15, 3, v15")
            k("v_lshlrev_b32 v15, 4, v15")
            k("v_lshl_add_u32 v15, v16, 6, v15")
        else:
            k("v_lshl_add_u32 v15, v15, 4, v16")
        k("v_mul_lo_u32 v14, v14, s36")
        k("v_add3_u32 v15, v15, v14, s37")
        k("v_add_u32 v%d, s38, v15" % (SA + 0*2 + b))
        k("v_add_u32 v%d, s39, v15" % (SA + 1*2 + b))
    mainloop(True)
    for b in range(2):
        k("s_lshl_b32 s3, s%d, 7" % (34 + b))
        k("v_lshl_add_u32 v13, v8, 2, s3")
        k("ds_read_b32 v%d, v13 offset:1024" % (20 + 2*b))
    for a in range(2):
        k("s_lshl_b32 s3, s%d, 7" % (32 + a))
        k("v_lshl_add_u32 v13, v9, 4, s3")
        mu = 24 if a == 0 else 144
        rr = 40 if a == 0 else 160
        for i in range(4):
            k("ds_read_b128 %s, v13 offset:%d" % (vr(mu + 4*i, 4), 32*i))
            k("ds_read_b128 %s, v13 offset:%d" % (vr(rr + 4*i, 4), 512 + 32*i))
        if a == 0: k("s_waitcnt lgkmcnt(4)")
    k("s_waitcnt lgkmcnt(0)")
    for a in range(2):
        mu = 24 if a == 0 else 144
        rr = 40 if a == 0 else 160
        for b in range(2):
            d = ACC + (a*2 + b)*16
            for j in range(2):
                for h in range(4):
                    o = 8*j + 2*h
                    k("v_pk_fma_f32 %s, %s, %s, %s op_sel:[0,0,0] op_sel_hi:[1,0,1] neg_lo:[0,1,0] neg_hi:[0,1,0]" % (vr(d + o, 2), vr(mu + o, 2), vr(20 + 2*b, 2), vr(d + o, 2)))
                for h in range(4):
                    o = 8*j + 2*h
                    k("v_pk_mul_f32 %s, %s, %s" % (vr(d + o, 2), vr(d + o, 2), vr(rr + o, 2)))
                for h in range(4):
                    k("v_cvt_pk_bf16_f32 v%d, v%d, v%d" % (d + 8*j + h, d + 8*j + 2*h, d + 8*j + 2*h + 1))
                k("buffer_store_dwordx4 %s, v%d, s[20:23], 0 offen offset:%d %s" % (vr(d + 8*j, 4), SA + a*2 + b, j*640, stpol))
    k.tsdump()
    k.put(END)
    k("s_endpgm")
    k.put(WOJ)
    k("s_load_dwordx2 s[44:45], s[0:1], 16")
    k("v_lshrrev_b32 v1, 6, v0")
    k("v_and_b32 v0, 63, v0")
    k("v_readfirstlane_b32 s26, v1")
    k("s_lshl_b32 s27, s24, 3")
    k("s_add_u32 s27, s27, s26")
    for i in range(2):
        k("s_add_u32 s50, s27, %d" % (128*i))
        side_addr_wo(k, 20 + i, 24 + 2*i)
    k("s_waitcnt lgkmcnt(0)")
    k.srd(36, 44, WOB)
    k.srd(16, 8, WS_END)
    for i in range(2):
        side_loads(k, 32 + 16*i, "", 24 + 2*i)
    for i in range(2):
        k("s_waitcnt vmcnt(%d)" % (8 - 4*i))
        side_stores(k, 32 + 16*i, 96 + 16*i, 20 + i, "")
    k("s_endpgm")
    return k
```

```python
from asmlib import *
from lay import *
from side import *
from gemm import VM

def gen_s2(opt=None):
    opt = opt or {}
    stpol = opt.get("s2_stpol", "")
    wstpol = opt.get("s2_wstpol", "")
    wldpol = opt.get("s2_wldpol", "")
    prio = opt.get("s2_prio", 1)
    npro = opt.get("s2_npro", 5)
    pfit = opt.get("s2_pfit", 13)
    k = Kern("s2_att_kernel", 256, 512, 163840, nv=168)
    k.tson = opt.get("ts", 0); k.kid = 1
    k.ts(0, True); k.ts(1)
    Q1 = 16; Q2 = (20, 22); CI = 24; O = 40; S = (56, 72); P = 88
    K1 = (96, 100); K2 = (104, 106); V = (108, 116)
    AK = 124; AK2 = 125; AV = 126; PFD = 127
    WL = 128; WP = 144; WA = 160; OA = 161; OB = 162; PFA = 163
    END = k.label("end"); PRO = k.label("pro"); LOOP = k.label("loop"); BACK = k.label("back"); STUB = k.label("stub")
    FB = k.label("fb"); FIN = k.label("fin")
    VMASK = 0x000fffff
    k("s_cmp_ge_u32 s2, 256")
    k("s_cbranch_scc1 %s" % END)
    k("s_load_dwordx2 s[8:9], s[0:1], 72")
    k("s_load_dwordx2 s[4:5], s[0:1], 0")
    k("s_load_dwordx4 s[44:47], s[0:1], 32")
    k("s_load_dwordx2 s[48:49], s[0:1], 48")
    k("""
    v_lshrrev_b32 v1, 6, v0
    v_and_b32 v0, 63, v0
    v_readfirstlane_b32 s26, v1
    s_and_b32 s10, s2, 7
    s_lshr_b32 s11, s2, 3
    s_and_b32 s3, s11, 3
    s_lshl_b32 s24, s10, 2
    s_add_u32 s24, s24, s3
    s_lshr_b32 s25, s11, 2
    s_lshl_b32 s25, s25, 3
    s_add_u32 s25, s25, s26
    v_lshlrev_b32 v2, 4, v0
    v_and_b32 v8, 31, v0
    v_lshrrev_b32 v9, 5, v0
    v_lshlrev_b32 v3, 3, v8
    """)
    fl1 = opt.get("fl1", 0)
    if fl1:
        k("s_lshr_b32 s3, s24, 1")
        k("s_mul_i32 s3, s3, 5")
        k("s_add_u32 s3, s3, 2")
        k("s_and_b32 s30, s3, 8")
        k("s_lshl_b32 s3, s24, 5")
        k("s_lshr_b32 s27, s25, 1")
        k("s_add_u32 s3, s3, s27")
        k("s_mul_i32 s27, s3, 2560")
        k("s_and_b32 s3, s25, 1")
        k("s_lshl_b32 s34, s3, 3")
        k("s_xor_b32 s34, s34, s30")
        k("s_add_u32 s34, s34, s27")
        k("s_lshl_b32 s3, s3, 10")
        k("s_add_u32 s27, s27, s3")
        k("v_lshlrev_b32 v3, 4, v8")
    else:
        k("s_lshl_b32 s3, s24, 6")
        k("s_add_u32 s3, s3, s25")
        k("s_mul_i32 s27, s3, 1280")
    def ak2():
        if fl1:
            k("v_lshlrev_b32 v%d, 3, v9" % AK2)
            k("v_xor_b32 v%d, s30, v%d" % (AK2, AK2))
            k("v_add_u32 v%d, v3, v%d" % (AK2, AK2))
        else: k("v_lshlrev_b32 v%d, 3, v0" % AK2)
    def av():
        if fl1:
            k("v_lshrrev_b32 v10, 2, v8")
            k("v_lshrrev_b32 v11, 3, v8")
            k("v_xor_b32 v11, v11, v10")
            k("v_xor_b32 v11, v11, v9")
            k("v_and_b32 v11, 1, v11")
            k("v_lshl_add_u32 v10, v10, 1, v11")
            k("v_and_b32 v11, 48, v3")
            k("v_lshl_add_u32 v%d, v10, 6, v11" % AV)
        else:
            k("v_mul_u32_u24 v%d, 320, v9" % AV)
            k("v_lshl_add_u32 v%d, v8, 4, v%d" % (AV, AV))
    k("s_mul_i32 s28, s24, 163840")
    k("s_lshl_b32 s29, s26, 10")
    k("s_add_u32 s28, s28, s29")
    k("s_add_u32 s28, s28, 0x%x" % KV)
    k("s_waitcnt lgkmcnt(0)")
    k.srd(12, 8, AO)
    vm = VM(k)
    def dma(i):
        vm.op(("d", i), "s_add_u32 m0, s29, %d" % (i*8192), "s_add_u32 s28, s28, 8192" if i else "s_nop 0",
              "buffer_load_dwordx4 v2, s[12:15], s28 offen lds")
    dma(0)
    vm.op("q", "buffer_load_dwordx4 %s, v2, s[12:15], s27 offen" % vr(Q1, 4))
    if fl1: vm.op("q", "buffer_load_dwordx2 %s, v3, s[12:15], s34 offen offset:2048" % vr(Q2[0], 2))
    else: vm.op("q", "buffer_load_dwordx2 %s, v3, s[12:15], s27 offen offset:1024" % vr(Q2[0], 2))
    for i in range(1, npro): dma(i)
    k.ts(2)
    k.srd(16, 8, WS_END)
    k("v_mov_b32 v4, 0x3f803f80")
    k("v_cmp_eq_u32 vcc, 20, v8")
    k("v_cmp_gt_u32 s[22:23], 32, v0")
    k("s_mov_b32 s20, 0x%x" % VMASK)
    k("s_mov_b32 s21, 0x%x" % VMASK)
    trim = opt.get("s2_trim", 1)
    for r in range(2 if trim else 16):
        k("v_cndmask_b32 v%d, 0, v4, vcc" % (V[0] + r))
    if trim:
        for r in range(1, 8): k("v_mov_b64 %s, %s" % (vr(V[0] + 2*r, 2), vr(V[0], 2)))
    k("s_mov_b32 s31, 0")
    k("s_lshr_b32 s3, s24, 1")
    k("s_mul_i32 s3, s3, 5")
    k("s_and_b32 s34, s24, 1")
    k("s_lshl_b32 s35, s34, 1")
    k("s_add_u32 s35, s35, s3")
    k("s_add_u32 s3, s3, 4")
    k("v_add_u32 v4, s35, v9")
    k("v_bfe_u32 v5, v0, 4, 1")
    k("s_lshl_b32 s33, s25, 1")
    k("v_add_u32 v5, s33, v5")
    k("v_mul_u32_u24 v5, 20, v5")
    k("v_and_b32 v10, 15, v0")
    k("v_lshrrev_b32 v11, 2, v4")
    k("v_add_u32 v11, v11, v5")
    k("v_and_b32 v4, 3, v4")
    k("v_lshl_add_u32 v4, v4, 4, v10")
    k("v_lshlrev_b32 v4, 4, v4")
    k("v_lshl_add_u32 v%d, v11, 10, v4" % OA)
    k("s_lshr_b32 s35, s3, 2")
    k("s_and_b32 s3, s3, 3")
    k("s_lshl_b32 s3, s3, 8")
    k("s_lshl_b32 s34, s34, 3")
    k("s_add_u32 s3, s3, s34")
    k("v_add_u32 v5, s35, v5")
    k("v_lshl_add_u32 v10, v10, 4, s3")
    k("v_lshl_add_u32 v%d, v5, 10, v10" % OB)
    k("s_mov_b32 s33, 0x%x" % AO)
    k("s_lshl_b32 s50, s2, 3")
    k("s_add_u32 s50, s50, s26")
    csp = opt.get("csp", 1)
    FULL[0] = opt.get("fl4", 0); FULL[1] = opt.get("fl3", 0)
    if FULL[0] and FULL[1] and csp and opt.get('s2_bf', 1): side_addr_gud2(k, WA, 4)
    else: side_addr_gud(k, WA, 4 if csp else None)
    if csp:
        for r in range(4): k("v_mov_b32 v%d, 0x3f803f80" % (164 + r))
    k("s_lshl_b32 s3, s11, 3")
    k("s_add_u32 s3, s3, s26")
    k("s_lshl_b32 s58, s3, 13")
    k("v_lshlrev_b32 v%d, 7, v0" % PFA)
    k("s_cmp_ge_u32 s3, 100")
    k("s_cselect_b32 s40, s4, s8")
    k("s_cselect_b32 s41, s5, s9")
    k("s_and_b32 s41, s41, 0xffff")
    k("s_mov_b32 s43, 0x00020000")
    k("s_and_b32 s34, s10, 1")
    k("s_lshl_b32 s34, s34, 2")
    k("s_lshr_b32 s35, s10, 1")
    k("s_add_u32 s34, s34, s35")
    k("s_mul_i32 s34, s34, 327680")
    k("s_add_u32 s35, s34, 327680")
    k("s_sub_u32 s34, s34, %d" % (100*8192))
    k("s_cmp_ge_u32 s3, 100")
    k("s_cselect_b32 s34, s34, 0x%x" % WO)
    k("s_cselect_b32 s42, s35, 0x%x" % (WO + WOB))
    k("s_add_u32 s58, s58, s34")
    k("v_add_u32 v%d, s58, v%d" % (PFA, PFA))
    k("v_mov_b32 v%d, v2" % AK)
    ak2(); av()
    if not trim:
        for r in range(16):
            k("v_mov_b32 v%d, 0" % (O + r))
        for r in range(8):
            k("v_mov_b32 v%d, 0" % (P + r))
    k.ts(3)
    vm.wait(("d", 2))
    k("s_barrier")
    k.ts(4)
    k("ds_read_b128 %s, v%d" % (vr(K1[0], 4), AK))
    k("ds_read_b64 %s, v%d offset:2048" % (vr(K2[0], 2), AK2))
    k("v_cndmask_b32 v%d, v%d, 0, s[22:23]" % (Q2[1], Q2[0]))
    k("v_cndmask_b32 v%d, v%d, 0, s[22:23]" % (Q2[1] + 1, Q2[0] + 1))
    k("v_cndmask_b32 v%d, 0, v%d, s[22:23]" % (Q2[0], Q2[0]))
    k("v_cndmask_b32 v%d, 0, v%d, s[22:23]" % (Q2[0] + 1, Q2[0] + 1))
    k("s_waitcnt lgkmcnt(0)")
    k("v_mfma_f32_32x32x16_bf16 %s, %s, %s, 0" % (vr(S[0], 16), vr(K1[0], 4), vr(Q1, 4)))
    k("v_mfma_f32_32x32x8bf16_1k %s, %s, %s, %s" % (vr(S[0], 16), vr(K2[0], 2), vr(Q2[0], 2), vr(S[0], 16)))
    k("ds_read_b128 %s, v%d offset:1024" % (vr(K1[1], 4), AK))
    k("ds_read_b64 %s, v%d offset:%d" % (vr(K2[1], 2), AK2, 5120 + 2048))
    k("ds_read_b128 %s, v%d offset:5120" % (vr(K1[0], 4), AK))
    k("s_nop 13")
    k("v_max3_f32 v6, v%d, v%d, v%d" % (S[0], S[0] + 1, S[0] + 2))
    k("v_max3_f32 v7, v%d, v%d, v%d" % (S[0] + 3, S[0] + 4, S[0] + 5))
    for i in range(2):
        k("v_max3_f32 v6, v6, v%d, v%d" % (S[0] + 6 + 4*i, S[0] + 7 + 4*i))
        k("v_max3_f32 v7, v7, v%d, v%d" % (S[0] + 8 + 4*i, S[0] + 9 + 4*i))
    k("v_max3_f32 v6, v6, v%d, v%d" % (S[0] + 14, S[0] + 15))
    k("v_max_f32 v6, v6, v7")
    def head():
        k("v_mov_b32 v7, v6")
        k("s_mov_b32 s32, 0")
        k("s_nop 0")
        k("v_permlane32_swap_b32 v6, v7")
        k("s_nop 1")
        k("v_max_f32 v6, v6, v7")
        if trim:
            k("v_sub_f32 v%d, 0, v6" % CI)
            k("v_sub_f32 v%d, 0, v6" % (CI + 1))
            for r in range(1, 8): k("v_mov_b64 %s, %s" % (vr(CI + 2*r, 2), vr(CI, 2)))
            for r in range(8): k("v_pk_add_f32 %s, %s, %s" % (vr(S[0] + 2*r, 2), vr(S[0] + 2*r, 2), vr(CI, 2)))
        else:
            for r in range(16):
                k("v_sub_f32 v%d, v%d, v6" % (S[0] + r, S[0] + r))
            for r in range(16):
                k("v_sub_f32 v%d, 0, v6" % (CI + r))
        k("s_waitcnt lgkmcnt(0)")
    def koff(t): return (t >> 1)*5120 + (t & 1)*1024
    def voff(t, j): return (t >> 1)*5120 + 2560 + ((t & 1)*2 + j)*640
    hx = opt.get("s2_hx", 99); hp = [int(c) for c in str(opt.get("s2_hp", "20"))]; hx2 = opt.get("s2_hx2", 99)
    def setp(lo, hi, T):
        k("s_setprio %d" % lo)
        if T is not None and hx <= T < hx2 and hi != lo:
            L = k.label("p")
            k("s_cmp_ge_u32 s26, 4")
            k("s_cbranch_scc0 %s" % L)
            k("s_setprio %d" % hi)
            k.put(L)
    def tile(t, bump=0, pre=None, mid=None, T=None):
        sc = S[t & 1]; sn = S[(t + 1) & 1]
        def ex(a, b):
            for i in range(a, b): k("v_exp_f32 v%d, v%d" % (sc + i, sc + i))
        def cv(a, b):
            for i in range(a, b): k("v_cvt_pk_bf16_f32 v%d, v%d, v%d" % (P + i, sc + 2*i, sc + 2*i + 1))
        if pre: pre()
        if prio: setp(1, hp[0], T)
        k("v_mfma_f32_32x32x16_bf16 %s, %s, %s, %s" % (vr(sn, 16), vr(K1[(t + 1) & 1], 4), vr(Q1, 4), vr(CI, 16)))
        k("ds_read_b128 %s, v%d offset:%d" % (vr(K1[(t + 1) & 1], 4), AK, koff(t + 3)))
        if t & 1:
            p1 = (t + 1)//2 + 1
            k("ds_read_b64 %s, v%d offset:%d" % (vr(K2[p1 & 1], 2), AK2, p1*5120 + 2048))
        ex(0, 4)
        k("s_waitcnt lgkmcnt(%d)" % (2 if t & 1 else 1))
        if not (trim and T == 0):
            k("v_mfma_f32_32x32x16_bf16 %s, %s, %s, %s" % (vr(O, 16), vr(V[(t - 1) & 1] + 4, 4), vr(P + 4, 4), "0" if trim and T == 1 else vr(O, 16)))
        k("s_mov_b64 exec, s[20:21]")
        k("ds_read_b128 %s, v%d offset:%d" % (vr(V[t & 1], 4), AV, voff(t, 0)))
        k("ds_read_b128 %s, v%d offset:%d" % (vr(V[t & 1] + 4, 4), AV, voff(t, 1)))
        k("s_mov_b64 exec, -1")
        ex(4, 8)
        k("v_mfma_f32_32x32x8bf16_1k %s, %s, %s, %s" % (vr(sn, 16), vr(K2[((t + 1) >> 1) & 1], 2), vr(Q2[(t + 1) & 1], 2), vr(sn, 16)))
        ex(8, 12)
        if not (trim and T == 0):
            k("v_mfma_f32_32x32x16_bf16 %s, %s, %s, %s" % (vr(O, 16), vr(V[(t - 1) & 1], 4), vr(P, 4), vr(O, 16)))
        ex(12, 16)
        if prio: setp(0, hp[1], T)
        if bump:
            k("v_add_u32 v%d, %d, v%d" % (AK, bump, AK))
            k("v_add_u32 v%d, %d, v%d" % (AK2, bump, AK2))
            k("v_add_u32 v%d, %d, v%d" % (AV, bump, AV))
        if mid: mid()
        cv(0, 8)
    head()
    k.ts(5)
    n0 = len(k.L)
    mids = {}; pres = {}
    def add(d, T, f): d.setdefault(T, []).append(f)
    d0 = opt.get("s2_d0", 0); dstep = opt.get("s2_dstep", 1)
    for j in range(npro, 20): add(mids, d0 + (j - npro)*dstep, lambda j=j: dma(j))
    sl0 = opt.get("s2_sl0", 16); sls = opt.get("s2_sls", 2)
    ss0 = opt.get("s2_ss0", 36); sss = opt.get("s2_sss", 2)
    if not opt.get("noside"):
        for j in range(8): add(mids, sl0 + j*sls, lambda j=j: side_load1(k, vm, WL, wldpol, j))
        for i in range(4): add(mids, ss0 + i*sss, lambda i=i: side_store1(k, vm, WL, WP, WA, wstpol, i))
        if csp:
            if opt.get("s2_csd", 0) < 2: add(mids, ss0 + 3*sss + 1, lambda: side_cs1(k, WL, WP, 164))
            if opt.get("s2_csd", 0) < 1: add(mids, ss0 + 3*sss + opt.get("s2_cs2", 2), lambda: side_cs2(k, vm, WL, 4, opt.get("s2_cspol", wstpol).replace("_", " ")))
    add(mids, 4*pfit, lambda: vm.op("pf", "buffer_load_dword v%d, v%d, s[40:43], 0 offen" % (PFD, PFA)))
    def wbhint(n):
        def f():
            L = k.label("wb")
            k("s_lshl_b32 s3, s11, 3")
            k("s_add_u32 s3, s3, s26")
            k("s_cmp_lg_u32 s3, %d" % n)
            k("s_cbranch_scc1 %s" % L)
            k("buffer_wbl2 sc1")
            k.put(L)
        return f
    for i, T in enumerate(str(opt.get("s2_wb", "")).split("x")):
        if T: add(mids, int(T), wbhint(7 + 8*i))
    def sync(j, tsi):
        def f():
            k.ts(tsi)
            vm.wait(("d", j))
            k("s_barrier")
            k.ts(tsi + 1)
        return f
    syncs = {4: 4, 12: 9, 28: 19}
    if opt.get("s2_sync4"): syncs = {4: 4, 12: 9, 28: 14, 44: 19}
    for n, (T, j) in enumerate(sorted(syncs.items())): add(pres, T, sync(j, 6 + 2*n if n < 3 else 2))
    add(pres, 48, lambda: k.ts(2))
    def run(l):
        return (lambda: [f() for f in l]) if l else None
    for T in range(64):
        tile(T & 15, 40960 if (T & 15) == 15 and T < 63 else 0, run(pres.get(T)), run(mids.get(T)), T)
    dg = opt.get("s2_diag", "")
    if dg:
        def keep(ln):
            if "A" in dg and ln.startswith("v_mfma_f32_32x32x16_bf16 v[%d:" % O): return False
            if "B" in dg and ln.startswith("v_mfma_f32_32x32x8"): return False
            if "C" in dg and ln.startswith("v_exp"): return False
            if "D" in dg and ln.startswith("ds_read"): return False
            if "E" in dg and ln.startswith("v_cvt"): return False
            if "F" in dg and ln.startswith("v_mfma"): return False
            return True
        k.L[n0:] = [ln for ln in k.L[n0:] if keep(ln)]
        k("s_mov_b32 s31, 1")
    k.put(FIN)
    k.ts(12)
    k("s_waitcnt lgkmcnt(0)")
    k("v_mfma_f32_32x32x16_bf16 %s, %s, %s, %s" % (vr(O, 16), vr(V[1], 4), vr(P, 4), vr(O, 16)))
    k("v_mfma_f32_32x32x16_bf16 %s, %s, %s, %s" % (vr(O, 16), vr(V[1] + 4, 4), vr(P + 4, 4), vr(O, 16)))
    k("v_mov_b32 v5, 0x%x" % f2u(2.0**60))
    k("s_waitcnt vmcnt(0)")
    k("s_nop 14")
    k("v_mov_b32 v6, v%d" % (O + 8))
    k("v_mov_b32 v7, v%d" % (O + 8))
    k("s_nop 1")
    k("v_permlane32_swap_b32 v6, v7")
    k("s_nop 1")
    k("v_cmp_nlt_f32 vcc, v7, v5")
    k("v_rcp_f32 v7, v7")
    k("s_cmp_eq_u32 s31, 0")
    k("s_cselect_b64 s[34:35], vcc, 0")
    k("s_cmp_lg_u64 s[34:35], 0")
    k("s_cbranch_scc1 %s" % FB)
    for r in range(12):
        k("v_mul_f32 v%d, v%d, v7" % (O + r, O + r))
    for r in range(6):
        k("v_cvt_pk_bf16_f32 v%d, v%d, v%d" % (O + r, O + 2*r, O + 2*r + 1))
    k("buffer_store_dwordx4 %s, v%d, s[16:19], s33 offen %s" % (vr(O, 4), OA, stpol))
    k("s_mov_b64 exec, s[22:23]")
    k("buffer_store_dwordx2 %s, v%d, s[16:19], s33 offen %s" % (vr(O + 4, 2), OB, stpol))
    k.tsdump()
    k.put(END)
    k("s_endpgm")
    k.put(FB)
    FL = k.label("fl")
    k("s_mov_b32 s31, 1")
    k("s_mov_b32 s32, 0")
    k("v_mov_b32 v%d, v2" % AK)
    ak2()
    k("v_mov_b32 v6, 0xff800000")
    k.put(FL)
    k("ds_read_b128 %s, v%d" % (vr(K1[0], 4), AK))
    k("ds_read_b128 %s, v%d offset:1024" % (vr(K1[1], 4), AK))
    k("ds_read_b64 %s, v%d offset:2048" % (vr(K2[0], 2), AK2))
    k("s_waitcnt lgkmcnt(0)")
    for t in range(2):
        k("v_mfma_f32_32x32x16_bf16 %s, %s, %s, 0" % (vr(S[t], 16), vr(K1[t], 4), vr(Q1, 4)))
        k("v_mfma_f32_32x32x8bf16_1k %s, %s, %s, %s" % (vr(S[t], 16), vr(K2[0], 2), vr(Q2[t], 2), vr(S[t], 16)))
    k("v_add_u32 v%d, 5120, v%d" % (AK, AK))
    k("v_add_u32 v%d, 5120, v%d" % (AK2, AK2))
    k("s_nop 15")
    for i in range(16):
        k("v_max3_f32 v6, v6, v%d, v%d" % (S[0] + 2*i, S[0] + 2*i + 1))
    k("s_add_u32 s32, s32, 1")
    k("s_cmp_lt_u32 s32, 32")
    k("s_cbranch_scc1 %s" % FL)
    k("v_mov_b32 v%d, v2" % AK)
    ak2(); av()
    k("ds_read_b128 %s, v%d" % (vr(K1[0], 4), AK))
    k("ds_read_b64 %s, v%d offset:2048" % (vr(K2[0], 2), AK2))
    for r in range(16):
        k("v_mov_b32 v%d, 0" % (O + r))
    for r in range(8):
        k("v_mov_b32 v%d, 0" % (P + r))
    k("s_waitcnt lgkmcnt(0)")
    k("v_mfma_f32_32x32x16_bf16 %s, %s, %s, 0" % (vr(S[0], 16), vr(K1[0], 4), vr(Q1, 4)))
    k("v_mfma_f32_32x32x8bf16_1k %s, %s, %s, %s" % (vr(S[0], 16), vr(K2[0], 2), vr(Q2[0], 2), vr(S[0], 16)))
    k("ds_read_b128 %s, v%d offset:1024" % (vr(K1[1], 4), AK))
    k("ds_read_b64 %s, v%d offset:%d" % (vr(K2[1], 2), AK2, 5120 + 2048))
    k("ds_read_b128 %s, v%d offset:5120" % (vr(K1[0], 4), AK))
    k("s_nop 13")
    head()
    k.put(LOOP)
    for t in range(4):
        tile(t, 10240 if t == 3 else 0)
    k("s_add_u32 s32, s32, 1")
    k("s_cmp_lt_u32 s32, 16")
    k("s_cbranch_scc1 %s" % LOOP)
    k("s_branch %s" % FIN)
    return k
```

```python
from asmlib import *
from lay import *
from gemm import VM, qreduce

class LG:
    def __init__(self, k):
        self.k = k; self.tags = []; self.done = -1
    def op(self, tag, line):
        self.k(line); self.tags.append(tag)
    def wait(self, *tags):
        idx = max(max(i for i, t in enumerate(self.tags) if t == tag) for tag in tags)
        if idx <= self.done: return
        n = len(self.tags) - 1 - idx
        self.k("s_waitcnt lgkmcnt(%d)" % min(n, 15))
        self.done = idx if n <= 15 else len(self.tags) - 16

def emit_ops(k, vm, tag, ops, pre=(), base=None):
    m0 = None
    pre = list(pre)
    for (a, v, srd, so, io) in ops:
        L = []
        if m0 != a - io:
            m0 = a - io
            L.append("s_mov_b32 m0, %d" % m0 if base is None else "s_add_u32 m0, s%d, %d" % (base, m0))
            first = True
            L += pre if pre else ["s_nop 0"]
            pre = []
        L.append("buffer_load_dwordx4 v%d, s[%d:%d], s%d offen offset:%d lds" % (v, srd, srd + 3, so, io))
        vm.op(tag, *L)

def loader(k, NG, NSLOT, D0, DM, batch, after, tails, tsj=(), xat=None, prebar=None):
    vm = VM(k)
    st = {"n": 0}
    def upto(g):
        while st["n"] <= min(g, NG - 1):
            batch(vm, st["n"])
            if st["n"] in after: after[st["n"]](vm)
            st["n"] += 1
    def bar(vm, j):
        if prebar and j in prebar: prebar[j](vm)
        vm.wait(("b", j))
        k("s_barrier")
        if j in tsj: k.ts(3 + list(tsj).index(j))
    upto(D0 - 1)
    k.ts(2)
    j = 0
    while st["n"] < NG:
        bar(vm, j)
        upto(min(j + D0 + (j + 1)//2, j + DM, j - 2 + NSLOT))
        j += 1
    LB = k.label("tb")
    k("s_cmp_eq_u32 s26, 5")
    k("s_cbranch_scc1 %s" % LB)
    for w, (extra, post) in enumerate(tails):
        if w: k.put(LB)
        v2 = VM(k); v2.tags = list(vm.tags)
        if xat is None:
            if extra: extra(v2)
            for jj in range(j, NG): bar(v2, jj)
        else:
            for p, a in enumerate(xat):
                if a < j and extra: extra(v2, p, len(xat))
            for jj in range(j, NG):
                bar(v2, jj)
                for p, a in enumerate(xat):
                    if a == jj and extra: extra(v2, p, len(xat))
        if post: post(v2)
        k("s_waitcnt vmcnt(0)")
        k.tsdump()
        k("s_endpgm")

def loader_setup(k, NA, KSB, tokoff, short=None):
    LB = k.label("sb"); LJ = k.label("sj")
    if PRIO[0] < 0: k("s_setprio %d" % -PRIO[0])
    k("s_cmp_eq_u32 s26, 5")
    k("s_cbranch_scc1 %s" % LB)
    RA = []
    for i in range(NA):
        k("v_add_u32 v%d, %d, v1" % (8 + i, (i - i % 4)*1024))
        if short and short[1] == i: k("v_subrev_u32 v%d, s%d, v%d" % (8 + i, short[0], 8 + i))
    k("s_mov_b32 s30, s28")
    k("s_mov_b32 s27, %d" % KSB[0])
    k("s_mov_b32 s29, 0")
    k("s_branch %s" % LJ)
    k.put(LB)
    for i in range(NA):
        o = tokoff(i) if i < 8 else (NA + i - 8)*1024
        k("v_add_u32 v%d, %d, v1" % (8 + i, o - (i % 4)*1024))
        if short and i >= 8 and short[2] == NA + i - 8: k("v_subrev_u32 v%d, s%d, v%d" % (8 + i, short[0], 8 + i))
    k("s_mov_b32 s27, %d" % KSB[1])
    k("s_mov_b32 s29, %d" % (NA*1024))
    k.put(LJ)
    k("s_waitcnt lgkmcnt(0)")
    k.ts(11)
    k.srd(12, 8, WS_END)

def std_batch(k, NA, NSLOT, SL, WS):
    def b(vm, g):
        a = (g % NSLOT)*SL
        emit_ops(k, vm, ("b", g), [(a + i*1024, 8 + i, 12, 30 if i < 8 else 28, (i % 4)*1024) for i in range(NA)],
                 ["s_add_u32 s30, s30, s27", "s_add_u32 s28, s28, %d" % WS] if g else [], 29)
    return b

def coop_pf(k, after, spec, g0, gmax, np_, member, lsh, tstride, gstride, half=False):
    st = {"i": 0}
    def mk(n, prev):
        def f(vm):
            if prev: prev(vm)
            if st["i"] == 0:
                member(k)
                if half:
                    k("s_add_u32 s56, s3, %d" % g0)
                    k("s_lshl_b32 s3, s26, 1")
                    k("v_lshrrev_b32 v46, %d, v0" % lsh)
                    k("v_add_u32 v46, s3, v46")
                    k("v_and_b32 v46, 3, v46")
                else:
                    k("s_lshl_b32 s3, s3, 1")
                    k("s_add_u32 s3, s3, s26")
                    k("s_add_u32 s56, s3, %d" % (g0 - 4))
                    k("v_lshrrev_b32 v46, %d, v0" % lsh)
                k("v_and_b32 v47, %d, v0" % ((1 << lsh) - 1))
                k("v_mul_u32_u24 v46, %d, v46" % tstride)
                k("v_lshl_add_u32 v46, v47, 7, v46")
            for _ in range(n):
                k("s_add_u32 s3, s56, %d" % (np_*st["i"]))
                k("s_min_u32 s3, s3, %d" % gmax)
                k("s_mul_i32 s3, s3, %d" % gstride)
                k("s_add_u32 s3, s3, s57")
                if half: k("s_mov_b32 exec_hi, 0")
                vm.op("pf", "buffer_load_dword v47, v46, s[12:15], s3 offen")
                if half: k("s_mov_b64 exec, -1")
                st["i"] += 1
        return f
    for e in str(spec).split(","):
        if not e: continue
        a, n = e.split(":")
        after[int(a)] = mk(int(n), after.get(int(a)))
    return after

def stat_load(k, tt, dst, n):
    k("s_lshl_b32 s37, s%d, 10" % tt)
    k("s_add_u32 s37, s37, 0x%x" % ST)
    k("v_lshlrev_b32 v20, 6, v2")
    k("v_lshl_add_u32 v20, v3, 4, v20")
    return ["buffer_load_dwordx4 %s, v20, s[12:15], s37 offen offset:%d" % (vr(dst + 4*j, 4), 1024*j) for j in range(n)]

def consumer(k, F, T, GK, acc, wf, NB, tok, waddr, taddr, LA, LOOK, hooks=None, tsj=()):
    hooks = hooks or {}
    lg = LG(k)
    R = []; seen = set()
    for f, (ks, n) in enumerate(F):
        if ks not in seen:
            seen.add(ks)
            for j in range(T): R.append(("t", ks, j))
        R.append(("w", f))
    pos = {r: i for i, r in enumerate(R)}
    st = {"nr": 0, "g": -1}
    def rd_upto(i):
        while st["nr"] <= min(i, len(R) - 1):
            r = R[st["nr"]]
            ks = r[1] if r[0] == "t" else F[r[1]][0]
            while ks//GK > st["g"]:
                st["g"] += 1
                k("s_barrier")
                if st["g"] in tsj: k.ts(3 + list(tsj).index(st["g"]))
                if ("sync", st["g"]) in hooks: hooks[("sync", st["g"])](lg)
            if r[0] == "t":
                a = taddr(ks, r[2]); v = LA[1]; d = tok(ks, r[2])
            else:
                a = waddr(*F[r[1]]); v = LA[0]; d = wf(r[1] % NB)
            lg.op(r, "ds_read_b128 %s, v%d offset:%d" % (d, v + (a >> 16), a & 0xffff))
            st["nr"] += 1
    first = set()
    for f, (ks, n) in enumerate(F):
        rd_upto(pos[("w", f)] + LOOK)
        lg.wait(("w", f))
        for j in range(T):
            k("v_mfma_f32_16x16x32_bf16 %s, %s, %s, %s" % (acc(n, j), wf(f % NB), tok(ks, j), acc(n, j) if n in first else "0"))
            if ("m", f, j) in hooks: hooks[("m", f, j)](lg)
        first.add(n)
        if ("f", f) in hooks: hooks[("f", f)](lg)
    k.ts(12)
    return lg

def head(k, END, ptrs):
    k("s_cmp_ge_u32 s2, 256")
    k("s_cbranch_scc1 %s" % END)
    for (s, o) in ptrs: k("s_load_dwordx2 s[%d:%d], s[0:1], %d" % (s, s + 1, o))
    k("""
    v_lshrrev_b32 v1, 6, v0
    v_and_b32 v0, 63, v0
    v_readfirstlane_b32 s26, v1
    v_lshlrev_b32 v1, 4, v0
    s_and_b32 s10, s2, 7
    s_lshr_b32 s11, s2, 3
    """)

PRIO = [0]
def lane_setup(k, toff):
    if PRIO[0] > 0: k("s_setprio %d" % PRIO[0])
    k("""
    v_and_b32 v2, 15, v0
    v_lshrrev_b32 v3, 4, v0
    v_mov_b32 v4, v1
    v_add_u32 v5, 0x10000, v1
    v_add_u32 v6, 0x20000, v1
    """)
    k("s_mul_i32 s3, s26, %d" % toff)
    for i in range(3): k("v_add_u32 v%d, s3, v%d" % (7 + i, 4 + i))

def tile_offsets(k, n):
    for i in range(n):
        k("s_add_u32 s3, s41, %d" % i)
        k("s_lshr_b32 s42, s3, 1")
        k("s_lshl_b32 s42, s42, 10")
        k("s_and_b32 s3, s3, 1")
        k("s_lshl_b32 s3, s3, 3")
        k("s_add_u32 s42, s42, s3")
        k("s_add_u32 s%d, s42, s40" % (44 + i))

def qreduce2(k, a, b, t, u):
    for op in ("v_permlane16_swap_b32", "v_permlane32_swap_b32"):
        k("v_mov_b32 v%d, v%d" % (t, a))
        k("v_mov_b32 v%d, v%d" % (u, b))
        k("s_nop 0")
        k("%s v%d, v%d" % (op, a, t))
        k("%s v%d, v%d" % (op, b, u))
        k("s_nop 0")
        k("v_add_f32 v%d, v%d, v%d" % (a, a, t))
        k("v_add_f32 v%d, v%d, v%d" % (b, b, u))

def n5_addr(NSLOT, SL):
    def waddr(ks, n):
        i = (ks & 1)*5 + n
        return ((ks//2) % NSLOT)*SL + (i*1024 if i < 9 else 17408)
    def taddr(ks, j):
        return ((ks//2) % NSLOT)*SL + 9216 + (ks & 1)*1024
    return waddr, taddr

def gen_s3(opt=None):
    opt = opt or {}
    PRIO[0] = opt.get("prio", 0)
    stpol = opt.get("s3_stpol", "").replace("_", " ")
    fl3 = opt.get("fl3", 0)
    NSLOT = 8; SL = 18432; XL = NSLOT*SL
    k = Kern("s3_wo_kernel", 256, 384, XL + 10240, nv=128)
    k.tson = opt.get("ts", 0); k.kid = 2
    k.ts(0, True); k.ts(1)
    END = k.label("end"); LC = k.label("c")
    ACC = 32; WF = 52; NB = 8; TOK = 84; ONES = 28
    head(k, END, [(8, 72), (4, 0)])
    k("""
    s_and_b32 s3, s10, 1
    s_lshl_b32 s24, s3, 4
    s_lshr_b32 s3, s10, 1
    s_lshl_b32 s3, s3, 2
    s_add_u32 s24, s24, s3
    s_and_b32 s3, s11, 3
    s_add_u32 s24, s24, s3
    s_lshl_b32 s24, s24, 2
    s_lshr_b32 s25, s11, 2
    """)
    k("s_cmp_lt_u32 s26, 4")
    k("s_cbranch_scc1 %s" % LC)
    k("s_mul_i32 s28, s25, %d" % (100*1024))
    k("s_add_u32 s28, s28, 0x%x" % WO)
    k("s_mul_i32 s30, s24, %d" % (20*1024))
    k("s_add_u32 s30, s30, 0x%x" % AO)
    k("s_mov_b32 s57, s30")
    loader_setup(k, 9, (10240, 2048), lambda i: (i >> 1)*20480 + (i & 1)*1024)
    XV = 17; CF = 32; CA = 24
    def setup2(vm):
        k.srd(16, 4, XB)
        k("s_lshl_b32 s3, s24, 4")
        k("s_mul_i32 s31, s3, 1280")
        k("s_mul_i32 s3, s25, 160")
        k("s_add_u32 s31, s31, s3")
        k("s_sub_u32 s39, s26, 4")
        k("s_mul_i32 s3, s39, 320")
        k("s_mul_i32 s38, s39, 5120")
        k("v_add_u32 v43, s3, v0")
        for n in range(5):
            k("v_add_u32 v40, %d, v43" % (64*n))
            k("v_mul_u32_u24 v41, 6554, v40")
            k("v_lshrrev_b32 v41, 16, v41")
            k("v_mul_u32_u24 v42, 10, v41")
            k("v_sub_u32 v40, v40, v42")
            k("v_mul_u32_u24 v41, 1280, v41")
            k("v_lshl_add_u32 v%d, v40, 4, v41" % (XV + n))
        if opt.get("csp", 1): return
        k("""
        s_xor_b32 s3, s10, s39
        s_and_b32 s3, s3, 1
        s_lshl_b32 s3, s3, 5
        s_add_u32 s32, s3, s11
        s_min_u32 s33, s32, 55
        s_mul_i32 s34, s33, 4682
        s_lshr_b32 s34, s34, 16
        s_mul_i32 s3, s34, 14
        s_sub_u32 s33, s33, s3
        s_lshr_b32 s3, s10, 1
        s_lshl_b32 s3, s3, 2
        s_add_u32 s35, s3, s34
        s_mul_i32 s36, s35, 14
        s_add_u32 s36, s36, s33
        s_lshl_b32 s36, s36, 6
        s_cmp_eq_u32 s33, 6
        s_cselect_b32 s3, 1, 0
        s_cmp_eq_u32 s33, 13
        s_cselect_b32 s3, 1, s3
        s_cmp_eq_u32 s34, 3
        s_cselect_b32 s3, s3, 0
        s_sub_u32 s33, s33, s3
        s_mul_i32 s37, s35, 280
        s_add_u32 s37, s37, s33
        s_lshl_b32 s37, s37, 10
        """)
        k("s_add_u32 s37, s37, 0x%x" % GU)
        k("s_add_u32 s36, s36, 0x%x" % CS)
        for r in range(4): k("v_mov_b32 v%d, 0x3f803f80" % (ONES + r))
    def xload(vm):
        emit_ops(k, vm, "x", [(XL + n*1024, XV + n, 16, 31, 0) for n in range(5)], base=38)
    def cload(vm, p=0, n=1):
        for s in range(20*p//n, 20*(p + 1)//n):
            if opt.get("s3_nocl"):
                vm.op(("c", s), "s_nop 0"); continue
            vm.op(("c", s), "buffer_load_dwordx4 %s, v1, s[12:15], s37 offen" % vr(CF + 4*s, 4))
            if s < 19: k("s_add_u32 s37, s37, %d" % (14*1024))
    def ctail(vm):
        for s in range(20):
            if s % 5 == 0: vm.wait(("c", s + 4))
            k("v_mfma_f32_16x16x32_bf16 %s, %s, %s, %s" % (vr(CA, 4), vr(CF + 4*s, 4), vr(ONES, 4), vr(CA, 4) if s else "0"))
        E2 = k.label("e2")
        k("s_cmp_lt_u32 s32, 56")
        k("s_cbranch_scc0 %s" % E2)
        k("v_and_b32 v2, 0x300, v1")
        k("v_lshrrev_b32 v2, 4, v2")
        k("s_mov_b32 s38, 0x00010001")
        k("s_mov_b32 s39, 0x00010001")
        k("s_mov_b64 exec, s[38:39]")
        k("s_nop 7")
        k("buffer_store_dwordx4 %s, v2, s[12:15], s36 offen %s" % (vr(CA, 4), stpol))
        k.put(E2)
    def gupf(vm, p=0, np_=1):
        if not opt.get("s3_pf", 1): return
        for n in range(3*p//np_, 3*(p + 1)//np_):
            k("v_add_u32 v40, %d, v0" % (64*n))
            if n == 2: k("v_min_u32 v40, 159, v40")
            k("v_lshrrev_b32 v41, 3, v40")
            k("v_and_b32 v40, 7, v40")
            k("v_mul_u32_u24 v41, 14336, v41")
            k("v_lshl_add_u32 v40, v40, 7, v41")
            vm.op("pf", "buffer_load_dword v%d, v40, s[12:15], s37 offen" % (44 + n))
    d0 = opt.get("s3_d0", 3)
    tsj = [0, 1, 2, 4, 6, 8, 9]
    aft = coop_pf(k, {}, opt.get("s3_cp", ""), opt.get("s3_cp0", 2), 9, 8, lambda k: k("s_mov_b32 s3, s25"), 4, 20480, 2048, True)
    for g, fn in ((opt.get("s3_su", d0 - 1), setup2), (opt.get("s3_xa", 7), xload)):
        aft[g] = (lambda a, b: lambda vm: (a(vm), b(vm)))(aft[g], fn) if g in aft else fn
    def cspf(vm, p=0, np_=1):
        gpf2(vm, p, np_)
        if not opt.get("s3_cspf", 0): return
        k("s_mul_i32 s3, s11, 18")
        k("v_min_u32 v40, 17, v0")
        k("v_add_u32 v40, s3, v40")
        k("v_min_u32 v40, 0x22f, v40")
        k("v_lshlrev_b32 v40, 7, v40")
        k("s_lshr_b32 s3, s10, 1")
        k("s_mul_i32 s3, s3, 71680")
        k("s_add_u32 s3, s3, 0x%x" % CS)
        vm.op("pf", "buffer_load_dword v43, v40, s[12:15], s3 offen")
    def gpf2(vm, p=0, np_=1):
        for n in range(opt.get("s3_gpf", 0)):
            k("s_lshl_b32 s3, s11, 1")
            k("s_add_u32 s3, s3, s26")
            k("s_add_u32 s3, s3, %d" % (64*n - 4))
            k("s_lshl_b32 s3, s3, 6")
            k("v_add_u32 v40, s3, v0")
            k("v_lshrrev_b32 v41, 4, v40")
            k("v_mul_u32_u24 v41, 9363, v41")
            k("v_lshrrev_b32 v41, 16, v41")
            k("v_mul_u32_u24 v42, 112, v41")
            k("v_sub_u32 v40, v40, v42")
            k("v_and_b32 v42, 3, v41")
            k("v_lshrrev_b32 v41, 2, v41")
            k("v_mul_u32_u24 v42, %d, v42" % (280*8))
            k("v_mul_u32_u24 v41, 112, v41")
            k("v_add3_u32 v40, v40, v41, v42")
            k("v_lshlrev_b32 v40, 7, v40")
            k("s_lshr_b32 s3, s10, 1")
            k("s_mul_i32 s3, s3, %d" % (4*280*1024))
            k("s_add_u32 s3, s3, 0x%x" % GU)
            vm.op("pf", "buffer_load_dword v%d, v40, s[12:15], s3 offen" % (44 + n))
    csp = opt.get("csp", 1)
    loader(k, 10, NSLOT, d0, opt.get("s3_dm", 4), std_batch(k, 9, NSLOT, SL, 10240), aft,
           [(cspf, None), (gpf2, None)] if csp else [(cload, ctail), (gupf, None)], tsj,
           [int(x) for x in str(opt["s3_xat"]).split("x")] if "s3_xat" in opt else None)
    k.put(LC)
    lane_setup(k, 2048)
    k("s_add_u32 s24, s24, s26")
    k("v_mov_b32 v%d, 0x3f803f80" % ONES)
    k("s_mul_i32 s3, s26, 2560")
    k("s_add_u32 s3, s3, %d" % XL)
    k("v_mul_u32_u24 v20, 160, v2")
    k("v_lshl_add_u32 v20, v3, 3, v20")
    k("v_add_u32 v20, s3, v20")
    k("s_mul_i32 s40, s24, 20480")
    k("s_add_u32 s40, s40, 0x%x" % HF)
    if fl3:
        k("s_lshl_b32 s44, s25, 11")
        k("s_add_u32 s44, s44, s40")
        k("s_lshl_b32 s45, s25, 9")
        k("s_add_u32 s45, s45, s40")
        k("s_add_u32 s45, s45, %d" % (16*1024))
        k("v_lshrrev_b32 v11, 1, v3")
        k("v_lshlrev_b32 v11, 8, v11")
        k("v_lshl_add_u32 v11, v2, 4, v11")
    else:
        k("s_mul_i32 s41, s25, 5")
        tile_offsets(k, 5)
    k("s_lshl_b32 s3, s24, 10")
    k("s_lshl_b32 s43, s25, 3")
    k("s_add_u32 s43, s43, s3")
    k("s_add_u32 s43, s43, 0x%x" % ST)
    k("v_lshlrev_b32 v21, 6, v2")
    k("v_mov_b32 v24, 0")
    k("v_mov_b32 v25, 0")
    k("s_waitcnt lgkmcnt(0)")
    k.srd(12, 8, WS_END)
    k.ts(2)
    XR = 100; XU = 108
    def xread(lg):
        for i in range(5): lg.op("x", "ds_read_b64 %s, v20 offset:%d" % (vr(XR + 2*i, 2), 32*i))
    def xunp(i):
        def f(lg):
            x = XR + 2*i; u = XU + 4*i
            k("v_lshlrev_b32 v%d, 16, v%d" % (u + 2, x + 1))
            k("v_and_b32 v%d, 0xffff0000, v%d" % (u + 3, x + 1))
            k("v_and_b32 v%d, 0xffff0000, v%d" % (u + 1, x))
            k("v_lshlrev_b32 v%d, 16, v%d" % (u, x))
        return f
    F = [(ks, n) for ks in range(20) for n in range(5)]
    hooks = {("sync", 9): xread}
    for i in range(5): hooks[("f", 95 + i)] = xunp(4 - i)
    wa, ta = n5_addr(NSLOT, SL)
    consumer(k, F, 1, 2, lambda n, j: vr(ACC + 4*n, 4), lambda b: vr(WF + 4*b, 4), NB, lambda ks, j: vr(TOK + 4*(ks & 3), 4),
             wa, ta, (4, 7), opt.get("s3_look", 5), hooks, tsj)
    for i in range(5):
        a = ACC + 4*i
        k("v_pk_add_f32 %s, %s, %s" % (vr(a, 2), vr(a, 2), vr(XU + 4*i, 2)))
        k("v_pk_add_f32 %s, %s, %s" % (vr(a + 2, 2), vr(a + 2, 2), vr(XU + 4*i + 2, 2)))
        d = a - 2 if fl3 and i & 1 else a
        k("v_cvt_pk_bf16_f32 v%d, v%d, v%d" % (d, a, a + 1))
        k("v_cvt_pk_bf16_f32 v%d, v%d, v%d" % (d + 1, a + 2, a + 3))
        if not fl3: k("buffer_store_dwordx2 %s, v1, s[12:15], s%d offen %s" % (vr(a, 2), 44 + i, stpol))
        elif i & 1: k("buffer_store_dwordx4 %s, v1, s[12:15], s44 offen offset:%d %s" % (vr(a - 4, 4), 1024*(i >> 1), stpol))
        elif i == 4:
            for r in range(4): k("v_mov_b32 v%d, v%d" % (WF + r, a + (r & 1)))
            k("s_nop 0")
            k("v_permlane16_swap_b32 v%d, v%d" % (WF, WF + 2))
            k("v_permlane16_swap_b32 v%d, v%d" % (WF + 1, WF + 3))
            k("s_mov_b32 exec_lo, 0xffff")
            k("s_mov_b32 exec_hi, 0xffff")
            k("buffer_store_dwordx4 %s, v11, s[12:15], s45 offen %s" % (vr(WF, 4), stpol))
            k("s_mov_b64 exec, -1")
    for i in range(5):
        a = ACC + 4*i - (2 if fl3 and i & 1 else 0)
        for h in range(2):
            k("v_dot2c_f32_bf16 v24, v%d, v%d" % (a + h, ONES))
            k("v_dot2c_f32_bf16 v25, v%d, v%d" % (a + h, a + h))
    k("s_nop 2")
    qreduce2(k, 24, 25, 22, 23)
    k("s_mov_b64 exec, 0xffff")
    k("buffer_store_dwordx2 v[24:25], v21, s[12:15], s43 offen")
    k.tsdump()
    k.put(END)
    k("s_endpgm")
    return k

def gen_s4(opt=None):
    opt = opt or {}
    stpol = opt.get("s4_stpol", "").replace("_", " ")
    fl4 = opt.get("fl4", 0)
    NSLOT = 7; SL = 22528; CL = NSLOT*SL
    LT = opt.get("s4_lt", 4)
    k = Kern("s4_gu_kernel", 256, 384, CL + 1024, nv=240)
    k.tson = opt.get("ts", 0); k.kid = 3
    k.ts(0, True); k.ts(1)
    END = k.label("end"); LC = k.label("c")
    ACC = 32; WF = 144; NB = 8; TOK = 176; NT = max(LT, 2); CSV = TOK + 8*NT; STV = CSV
    assert CSV + 16 <= 240
    head(k, END, [(8, 72)])
    k("""
    s_and_b32 s3, s10, 1
    s_lshl_b32 s24, s3, 3
    s_and_b32 s3, s11, 7
    s_add_u32 s24, s24, s3
    s_lshl_b32 s24, s24, 3
    s_lshr_b32 s34, s11, 3
    s_lshr_b32 s33, s10, 1
    s_lshl_b32 s25, s33, 2
    s_add_u32 s25, s25, s34
    """)
    k("s_cmp_lt_u32 s26, 4")
    k("s_cbranch_scc1 %s" % LC)
    k("s_mul_i32 s28, s25, %d" % (280*1024))
    k("s_add_u32 s28, s28, 0x%x" % GU)
    k("s_mul_i32 s30, s24, %d" % (20*1024))
    k("s_add_u32 s30, s30, 0x%x" % HF)
    k("s_cmp_eq_u32 s34, 3")
    k("s_cselect_b32 s36, 1024, 0")
    k("s_mov_b32 s57, s30")
    loader_setup(k, 11, (14336, 1024), lambda i: i*20480, (36, 6, 13))
    csp = opt.get("csp", 1)
    def csload(vm):
        if not csp:
            k("s_mul_i32 s38, s25, 896")
            k("s_add_u32 s38, s38, 0x%x" % CS)
            emit_ops(k, vm, "cs", [(CL, 1, 12, 38, 0)])
            return
        k("s_mul_i32 s38, s25, 17920")
        k("s_mul_i32 s39, s26, 448")
        k("s_add_u32 s38, s38, s39")
        k("s_add_u32 s38, s38, 0x%x" % (CS - 4*448))
        k("v_and_b32 v20, 31, v0")
        k("v_min_u32 v20, 27, v20")
        k("v_lshlrev_b32 v20, 4, v20")
        k("v_lshrrev_b32 v21, 5, v0")
        k("v_mul_u32_u24 v21, 0x380, v21")
        k("v_add_u32 v21, v21, v20")
        k("s_add_u32 s39, s39, %d" % (CL - 4*448))
        k("v_add_u32 v20, s39, v20")
        for p in range(10):
            pre = ["s_add_u32 s38, s38, 5376"] if p and p % 3 == 0 else []
            vm.op("cs", *(pre + ["buffer_load_dwordx4 %s, v21, s[12:15], s38 offen offset:%d" % (vr(48 + 4*p, 4), 1792*(p % 3))]))
    def csred(vm):
        vm.wait("cs")
        for st in (5, 2, 1):
            for p in range(st):
                for r in range(4): k("v_add_f32 v%d, v%d, v%d" % (48 + 4*p + r, 48 + 4*p + r, 48 + 4*(p + st) + r))
        for r in range(4): k("v_add_f32 v%d, v%d, v%d" % (48 + r, 48 + r, 64 + r))
        for r in range(4): k("v_mov_b32 v%d, v%d" % (52 + r, 48 + r))
        k("s_nop 0")
        for r in range(4): k("v_permlane32_swap_b32 v%d, v%d" % (48 + r, 52 + r))
        k("s_nop 0")
        for r in range(4): k("v_add_f32 v%d, v%d, v%d" % (48 + r, 48 + r, 52 + r))
        k("ds_write_b128 v20, v[48:51]")
        k("s_waitcnt lgkmcnt(0)")
    def wdpf(h):
        def f(vm, p=0, n=1):
            if not opt.get("s4_pf", 1): return
            if p == 0:
                k("s_bfe_u32 s3, s10, 0x10001")
                k("s_lshl_b32 s3, s3, 5")
                k("s_add_u32 s3, s3, s11")
                k("s_mul_i32 s38, s3, 34560")
                k("s_add_u32 s38, s38, 0x%x" % (WD + h*16384))
                k("v_lshlrev_b32 v40, 7, v0")
                k("v_add_u32 v41, 8192, v40")
                vm.op("pf", "buffer_load_dword v44, v40, s[12:15], s38 offen")
            if p == n - 1:
                vm.op("pf", "buffer_load_dword v45, v41, s[12:15], s38 offen")
            if h == 0 and p == n - 1:
                k("v_min_u32 v42, 13, v0")
                k("v_lshlrev_b32 v42, 7, v42")
                k("s_add_u32 s38, s38, 32768")
                vm.op("pf", "buffer_load_dword v46, v42, s[12:15], s38 offen")
        return f
    d0 = opt.get("s4_d0", 2)
    tsj = [0, 1, 2, 4, 8, 12, 16, 19]
    WB = [int(x) for x in str(opt.get("s4_wb", "")).split("x") if x]
    def wbtail(h):
        def f(vm):
            for n, i in enumerate(WB):
                k("s_barrier")
                if h == 0:
                    L = k.label("wb")
                    k("s_cmp_lg_u32 s11, %d" % n)
                    k("s_cbranch_scc1 %s" % L)
                    k("buffer_wbl2 sc1")
                    k.put(L)
        return f
    loader(k, 20, NSLOT, d0, opt.get("s4_dm", 5), std_batch(k, 11, NSLOT, SL, 14336),
           coop_pf(k, {opt.get("s4_csl", 19): csload} if csp else {6: csload}, opt.get("s4_cp", ""), opt.get("s4_cp0", 4), 19, 8, lambda k: k("s_mov_b32 s3, s34"), 3, 20480, 1024),
           [(wdpf(0), wbtail(0)), (wdpf(1), wbtail(1))], tsj, [int(x) for x in str(opt["s4_xat"]).split("x")] if "s4_xat" in opt else None, {opt.get("s4_csr", 19): csred} if csp else None)
    k.put(LC)
    lane_setup(k, 2048)
    k("s_lshl_b32 s3, s26, 1")
    k("s_add_u32 s24, s24, s3")
    L = stat_load(k, 24, STV, 2)
    k("s_mul_i32 s41, s33, 27")
    k("s_mul_i32 s3, s34, 7")
    k("s_add_u32 s41, s41, s3")
    k("s_mul_i32 s40, s24, %d" % (54*1024))
    k("s_add_u32 s40, s40, 0x%x" % HH)
    k("v_add_u32 v10, %d, v1" % (54*1024))
    k("v_lshlrev_b32 v21, 4, v3")
    k("v_add_u32 v21, %d, v21" % CL)
    if fl4:
        k("s_mul_i32 s44, s25, 3072")
        k("s_add_u32 s44, s44, s40")
        k("s_mul_i32 s3, s33, 3")
        k("s_add_u32 s3, s3, s34")
        k("s_lshl_b32 s3, s3, 9")
        k("s_add_u32 s45, s3, s40")
        k("s_add_u32 s45, s45, %d" % (48*1024))
        k("v_and_b32 v11, 1, v3")
        k("v_mul_u32_u24 v11, %d, v11" % (54*1024))
        k("v_lshl_add_u32 v11, v2, 4, v11")
        k("v_lshrrev_b32 v12, 1, v3")
        k("v_lshl_add_u32 v11, v12, 8, v11")
    else: tile_offsets(k, 7)
    k("s_waitcnt lgkmcnt(0)")
    k.srd(12, 8, WS_END)
    k.ts(2)
    F = [(ks, n) for ks in range(20 - LT) for n in range(14)]
    f0 = len(F)
    F += [(ks, n) for i in range(7) for ks in range(20 - LT, 20) for n in (i, i + 7)]
    def put(lines, w=None):
        def f(lg):
            if w: lg.wait(w)
            for ln in lines: k(ln)
        return f
    def stats(lg):
        k("s_waitcnt vmcnt(0)")
        k("v_add_f32 v22, v%d, v%d" % (STV, STV + 2))
        k("v_add_f32 v23, v%d, v%d" % (STV + 4, STV + 6))
        qreduce2(k, 22, 23, 24, 25)
        k("v_mul_f32 v22, 0x%x, v22" % f2u(-1.0/640))
        k("v_mul_f32 v23, 0x%x, v23" % f2u(-1.0/640))
    hooks = {("f", 30): put(L[:1]), ("f", 36): put(L[1:]), ("f", 120): stats}
    def csread(i):
        def f(lg):
            for h in range(2):
                lg.op(("cs", i), "ds_read_b128 %s, v21 offset:%d" % (vr(CSV + 8*(i & 1) + 4*h, 4), 64*(i + 7*h)))
        return f
    def epi(i):
        O = []
        c = CSV + 8*(i & 1)
        for j in range(2):
            g = ACC + 8*i + 4*j
            O += ["v_fma_f32 v%d, v%d, v%d, v%d" % (g + r, c + r, 22 + j, g + r) for r in range(4)]
            O += ["v_max_f32 v%d, 0, v%d" % (g + r, g + r) for r in range(4)]
        for j in range(2):
            g = ACC + 8*i + 4*j; u = g + 56
            O += ["v_fma_f32 v%d, v%d, v%d, v%d" % (u + r, c + 4 + r, 22 + j, u + r) for r in range(4)]
            O += ["v_mul_f32 v%d, v%d, v%d" % (g + r, g + r, u + r) for r in range(4)]
            d = g - 6 if fl4 and i & 1 else g
            O += ["v_cvt_pk_bf16_f32 v%d, v%d, v%d" % (d, g, g + 1), "v_cvt_pk_bf16_f32 v%d, v%d, v%d" % (d + 1, g + 2, g + 3)]
            if fl4:
                if i & 1: O += ["buffer_store_dwordx4 %s, v%d, s[12:15], s44 offen offset:%d %s" % (vr(g - 8, 4), 1 if j == 0 else 10, 1024*(i >> 1), stpol)]
            elif opt.get("s4_hack"):
                if i & 1: O += ["s_and_b32 s3, s%d, 0xfffffff0" % (44 + i), "buffer_store_dwordx4 %s, v%d, s[12:15], s3 offen %s" % (vr(g, 4), 1 if j == 0 else 10, stpol)]
            else:
                O += ["buffer_store_dwordx2 %s, v%d, s[12:15], s%d offen %s" % (vr(g, 2), 1 if j == 0 else 10, 44 + i, stpol)]
        return O
    for i in range(7):
        hooks[("f", f0 + 2*LT*i + (2*LT - 3 if csp else 1))] = csread(i)
        if i < 6:
            O = epi(i); ns = 4*LT - 1
            for m in range(ns):
                f = f0 + 2*LT*(i + 1) + (m + 1)//2
                hooks[("m", f, (m + 1) & 1)] = put(O[len(O)*m//ns: len(O)*(m + 1)//ns], ("cs", i))
    for i in WB: hooks[("f", f0 + 2*LT*i)] = put(["s_barrier"])
    def waddr(ks, n): return (ks % NSLOT)*SL + (n*1024 if n < 11 else (n + 8)*1024)
    def taddr(ks, j): return (ks % NSLOT)*SL + 11264 + j*1024
    lg = consumer(k, F, 2, 1, lambda n, j: vr(ACC + 8*n + 4*j, 4), lambda b: vr(WF + 4*b, 4), NB,
                  lambda ks, j: vr(TOK + 8*(ks % NT) + 4*j, 4), waddr, taddr, (4, 7), opt.get("s4_look", 5), hooks, tsj)
    E2 = k.label("e2")
    k("s_cmp_eq_u32 s34, 3")
    k("s_cbranch_scc1 %s" % E2)
    lg.wait(("cs", 6))
    k("s_nop 2")
    c = CSV; i = 6
    PK = " op_sel:[0,%d,0] op_sel_hi:[1,%d,1]"
    for j in range(2):
        g = ACC + 8*i + 4*j
        for h in range(2): k("v_pk_fma_f32 %s, %s, v[22:23], %s" % (vr(g + 2*h, 2), vr(c + 2*h, 2), vr(g + 2*h, 2)) + PK % (j, j))
        for r in range(4): k("v_max_f32 v%d, 0, v%d" % (g + r, g + r))
    for j in range(2):
        g = ACC + 8*i + 4*j; u = g + 56
        for h in range(2): k("v_pk_fma_f32 %s, %s, v[22:23], %s" % (vr(u + 2*h, 2), vr(c + 4 + 2*h, 2), vr(u + 2*h, 2)) + PK % (j, j))
        for h in range(2): k("v_pk_mul_f32 %s, %s, %s" % (vr(g + 2*h, 2), vr(g + 2*h, 2), vr(u + 2*h, 2)))
        d = g - 2*j if fl4 else g
        k("v_cvt_pk_bf16_f32 v%d, v%d, v%d" % (d, g, g + 1))
        k("v_cvt_pk_bf16_f32 v%d, v%d, v%d" % (d + 1, g + 2, g + 3))
        if not fl4: k("buffer_store_dwordx2 %s, v%d, s[12:15], s%d offen %s" % (vr(g, 2), 1 if j == 0 else 10, 44 + i, stpol))
    if fl4:
        g = ACC + 8*i
        k("s_nop 0")
        k("v_permlane16_swap_b32 v%d, v%d" % (g, g + 2))
        k("v_permlane16_swap_b32 v%d, v%d" % (g + 1, g + 3))
        k("s_nop 0")
        k("buffer_store_dwordx4 %s, v11, s[12:15], s45 offen %s" % (vr(g, 4), stpol))
    k.put(E2)
    k.tsdump()
    k.put(END)
    k("s_endpgm")
    return k

def gen_s5(opt=None):
    opt = opt or {}
    stpol = opt.get("s5_stpol", "").replace("_", " ")
    fl3 = opt.get("fl3", 0)
    raw = "4" in str(opt.get("g2", ""))
    NSLOT = 8; SL = 18432
    k = Kern("s5_dn_kernel", 256, 384, NSLOT*SL, nv=128)
    k.tson = opt.get("ts", 0); k.kid = 4
    k.ts(0, True); k.ts(1)
    END = k.label("end"); LC = k.label("c")
    ACC = 32; WF = 52; NB = 8; TOK = 84; HR = 100; HU = 108
    head(k, END, [(8, 72), (4, 56)])
    k("""
    s_and_b32 s3, s10, 1
    s_lshl_b32 s24, s3, 1
    s_lshr_b32 s3, s10, 2
    s_add_u32 s24, s24, s3
    s_lshl_b32 s24, s24, 3
    s_and_b32 s3, s11, 7
    s_add_u32 s24, s24, s3
    s_lshl_b32 s24, s24, 2
    s_bfe_u32 s25, s10, 0x10001
    s_lshl_b32 s25, s25, 2
    s_lshr_b32 s3, s11, 3
    s_add_u32 s25, s25, s3
    """)
    k("s_cmp_lt_u32 s26, 4")
    k("s_cbranch_scc1 %s" % LC)
    k("s_mul_i32 s28, s25, %d" % (270*1024))
    k("s_add_u32 s28, s28, 0x%x" % WD)
    k("s_mul_i32 s30, s24, %d" % (54*1024))
    k("s_add_u32 s30, s30, 0x%x" % HH)
    k("s_mov_b32 s57, s30")
    loader_setup(k, 9, (10240, 2048), lambda i: (i >> 1)*55296 + (i & 1)*1024)
    tsj = [0, 1, 2, 6, 10, 14, 18, 22, 26]
    loader(k, 27, NSLOT, opt.get("s5_d0", 3), opt.get("s5_dm", 5), std_batch(k, 9, NSLOT, SL, 10240),
           coop_pf(k, {}, opt.get("s5_cp", ""), opt.get("s5_cp0", 3), 26, 8, lambda k: k("s_lshr_b32 s3, s11, 3"), 4, 55296, 2048),
           [(None, None), (None, None)], tsj)
    k.put(LC)
    lane_setup(k, 2048)
    k("s_add_u32 s24, s24, s26")
    L = stat_load(k, 24, 24, 1)
    k("s_mul_i32 s40, s24, 20")
    if fl3:
        k("s_lshl_b32 s40, s40, 10")
        k("s_add_u32 s40, s40, 0x%x" % HF)
        k("s_lshl_b32 s41, s25, 9")
        k("s_add_u32 s41, s41, s40")
        k("s_add_u32 s41, s41, %d" % (16*1024))
        k("s_lshl_b32 s3, s25, 11")
        k("s_add_u32 s40, s40, s3")
        k("v_lshrrev_b32 v19, 1, v3")
        k("v_lshlrev_b32 v19, 8, v19")
        k("v_lshl_add_u32 v19, v2, 4, v19")
        k("v_and_b32 v22, 1, v3")
        k("v_lshl_add_u32 v19, v22, 3, v19")
    else:
        k("s_mul_i32 s41, s25, 5")
        k("s_lshr_b32 s3, s41, 1")
        k("s_add_u32 s40, s40, s3")
        k("s_lshl_b32 s40, s40, 10")
        k("s_add_u32 s40, s40, 0x%x" % HF)
    k("s_waitcnt lgkmcnt(0)")
    k.srd(12, 8, WS_END)
    k.srd(16, 4, XB)
    k("s_lshl_b32 s3, s24, 4")
    k("v_add_u32 v18, s3, v2")
    k("v_mul_u32_u24 v18, 1280, v18")
    k("s_mul_i32 s3, s25, 160")
    k("v_add_u32 v18, s3, v18")
    k("v_lshl_add_u32 v21, v3, 3, v18")
    k("v_and_b32 v22, 1, v3")
    k("v_lshl_add_u32 v18, v22, 5, v18")
    k("v_lshrrev_b32 v22, 1, v3")
    k("v_lshl_add_u32 v18, v22, 4, v18")
    def stats(lg):
        k("s_waitcnt vmcnt(0)")
        k("v_add_f32 v30, v24, v26")
        k("v_add_f32 v31, v25, v27")
        qreduce2(k, 30, 31, 22, 23)
        k("v_mul_f32 v30, 0x%x, v30" % f2u(1.0/640))
        k("v_mul_f32 v31, 0x%x, v31" % f2u(1.0/640))
        k("v_fma_f32 v30, -v30, v30, v31")
        k("v_max_f32 v30, 0, v30")
        k("v_add_f32 v30, 0x%x, v30" % f2u(1e-5))
        k("v_rcp_f32 v30, v30")
    k.ts(2)
    HB = [10, 14, 24]
    def hload(i):
        if fl3 and i == 2: return lambda lg: k("buffer_load_dwordx2 v[24:25], v19, s[12:15], s41 offen")
        return lambda lg: k("buffer_load_dwordx4 %s, v1, s[12:15], s40 offen offset:%d" % (vr(HB[i], 4), 1024*i))
    def hunp(i):
        def f(lg):
            if i == 0:
                k("s_waitcnt vmcnt(0)")
                k("s_bitcmp1_b32 s25, 0")
                k("s_cselect_b64 vcc, -1, 0")
            hv = [10, 12, 14, 16, 24, 26]
            x = hv[i] if fl3 else HR
            for h in range(0 if fl3 else 2):
                k("v_cndmask_b32 v%d, v%d, v%d, vcc" % (HR + h, hv[i] + h, hv[i + 1] + h))
            k("v_lshlrev_b32 v%d, 16, v%d" % (HU + 4*i, x))
            k("v_and_b32 v%d, 0xffff0000, v%d" % (HU + 4*i + 1, x))
            k("v_lshlrev_b32 v%d, 16, v%d" % (HU + 4*i + 2, x + 1))
            k("v_and_b32 v%d, 0xffff0000, v%d" % (HU + 4*i + 3, x + 1))
        return f
    h0 = opt.get("s5_h0", 12)
    hooks = {("sync", h0 + i): hload(i) for i in range(3)}
    for i in range(5): hooks[("sync", 21 + i)] = hunp(i)
    if raw:
        hooks[("sync", 3)] = lambda lg: k(L[0])
        hooks[("sync", 10)] = stats
    F = [(ks, n) for ks in range(54) for n in range(5)]
    wa, ta = n5_addr(NSLOT, SL)
    consumer(k, F, 1, 2, lambda n, j: vr(ACC + 4*n, 4), lambda b: vr(WF + 4*b, 4), NB, lambda ks, j: vr(TOK + 4*(ks & 3), 4),
             wa, ta, (4, 7), opt.get("s5_look", 5), hooks, tsj)
    k("s_nop 3")
    R = [WF, WF + 2, WF + 4, WF + 6, WF + 8]
    for i in range(5):
        a = ACC + 4*i
        for h in range(2):
            if raw: k("v_pk_fma_f32 %s, %s, v[30:31], %s op_sel:[0,0,0] op_sel_hi:[1,0,1]" % (vr(a + 2*h, 2), vr(a + 2*h, 2), vr(HU + 4*i + 2*h, 2)))
            else: k("v_pk_add_f32 %s, %s, %s" % (vr(a + 2*h, 2), vr(a + 2*h, 2), vr(HU + 4*i + 2*h, 2)))
        k("v_cvt_pk_bf16_f32 v%d, v%d, v%d" % (R[i], a, a + 1))
        k("v_cvt_pk_bf16_f32 v%d, v%d, v%d" % (R[i] + 1, a + 2, a + 3))
    k("buffer_store_dwordx2 %s, v21, s[16:19], 0 offen offset:128 %s" % (vr(R[4], 2), stpol))
    for p in range(2):
        k("v_permlane16_swap_b32 v%d, v%d" % (R[2*p], R[2*p + 1]))
        k("v_permlane16_swap_b32 v%d, v%d" % (R[2*p] + 1, R[2*p + 1] + 1))
    k("s_nop 1")
    for p in range(2):
        k("buffer_store_dwordx4 %s, v18, s[16:19], 0 offen offset:%d %s" % (vr(R[2*p], 4), 64*p, stpol))
    k.tsdump()
    k.put(END)
    k("s_endpgm")
    return k
```

```python
from asmlib import *
from lay import *
from gemm import VM, qreduce

class LG:
    def __init__(self, k):
        self.k = k; self.tags = []; self.done = -1
    def op(self, tag, line):
        self.k(line); self.tags.append(tag)
    def wait(self, *tags):
        idx = max(max(i for i, t in enumerate(self.tags) if t == tag) for tag in tags)
        if idx <= self.done: return
        n = len(self.tags) - 1 - idx
        self.k("s_waitcnt lgkmcnt(%d)" % min(n, 15))
        self.done = idx if n <= 15 else len(self.tags) - 16

def emit_ops(k, vm, tag, ops, pre=(), base=None):
    m0 = None
    pre = list(pre)
    for (a, v, srd, so, io) in ops:
        L = []
        if m0 != a - io:
            m0 = a - io
            L.append("s_mov_b32 m0, %d" % m0 if base is None else "s_add_u32 m0, s%d, %d" % (base, m0))
            first = True
            L += pre if pre else ["s_nop 0"]
            pre = []
        L.append("buffer_load_dwordx4 v%d, s[%d:%d], s%d offen offset:%d lds" % (v, srd, srd + 3, so, io))
        vm.op(tag, *L)

def loader(k, NG, NSLOT, D0, DM, batch, after, tails, tsj=(), xat=None, prebar=None):
    vm = VM(k)
    st = {"n": 0}
    def upto(g):
        while st["n"] <= min(g, NG - 1):
            batch(vm, st["n"])
            if st["n"] in after: after[st["n"]](vm)
            st["n"] += 1
    def bar(vm, j):
        if prebar and j in prebar: prebar[j](vm)
        vm.wait(("b", j))
        k("s_barrier")
        if j in tsj: k.ts(3 + list(tsj).index(j))
    upto(D0 - 1)
    k.ts(2)
    j = 0
    while st["n"] < NG:
        bar(vm, j)
        upto(min(j + D0 + (j + 1)//2, j + DM, j - 2 + NSLOT))
        j += 1
    LB = k.label("tb")
    k("s_cmp_eq_u32 s26, 5")
    k("s_cbranch_scc1 %s" % LB)
    for w, (extra, post) in enumerate(tails):
        if w: k.put(LB)
        v2 = VM(k); v2.tags = list(vm.tags)
        if xat is None:
            if extra: extra(v2)
            for jj in range(j, NG): bar(v2, jj)
        else:
            for p, a in enumerate(xat):
                if a < j and extra: extra(v2, p, len(xat))
            for jj in range(j, NG):
                bar(v2, jj)
                for p, a in enumerate(xat):
                    if a == jj and extra: extra(v2, p, len(xat))
        if post: post(v2)
        k("s_waitcnt vmcnt(0)")
        k.tsdump()
        k("s_endpgm")

def loader_setup(k, NA, KSB, tokoff, short=None):
    LB = k.label("sb"); LJ = k.label("sj")
    if PRIO[0] < 0: k("s_setprio %d" % -PRIO[0])
    k("s_cmp_eq_u32 s26, 5")
    k("s_cbranch_scc1 %s" % LB)
    RA = []
    for i in range(NA):
        k("v_add_u32 v%d, %d, v1" % (8 + i, (i - i % 4)*1024))
        if short and short[1] == i: k("v_subrev_u32 v%d, s%d, v%d" % (8 + i, short[0], 8 + i))
    k("s_mov_b32 s30, s28")
    k("s_mov_b32 s27, %d" % KSB[0])
    k("s_mov_b32 s29, 0")
    k("s_branch %s" % LJ)
    k.put(LB)
    for i in range(NA):
        o = tokoff(i) if i < 8 else (NA + i - 8)*1024
        k("v_add_u32 v%d, %d, v1" % (8 + i, o - (i % 4)*1024))
        if short and i >= 8 and short[2] == NA + i - 8: k("v_subrev_u32 v%d, s%d, v%d" % (8 + i, short[0], 8 + i))
    k("s_mov_b32 s27, %d" % KSB[1])
    k("s_mov_b32 s29, %d" % (NA*1024))
    k.put(LJ)
    k("s_waitcnt lgkmcnt(0)")
    k.ts(11)
    k.srd(12, 8, WS_END)

def std_batch(k, NA, NSLOT, SL, WS):
    def b(vm, g):
        a = (g % NSLOT)*SL
        emit_ops(k, vm, ("b", g), [(a + i*1024, 8 + i, 12, 30 if i < 8 else 28, (i % 4)*1024) for i in range(NA)],
                 ["s_add_u32 s30, s30, s27", "s_add_u32 s28, s28, %d" % WS] if g else [], 29)
    return b

def coop_pf(k, after, spec, g0, gmax, np_, member, lsh, tstride, gstride, half=False):
    st = {"i": 0}
    def mk(n, prev):
        def f(vm):
            if prev: prev(vm)
            if st["i"] == 0:
                member(k)
                if half:
                    k("s_add_u32 s56, s3, %d" % g0)
                    k("s_lshl_b32 s3, s26, 1")
                    k("v_lshrrev_b32 v46, %d, v0" % lsh)
                    k("v_add_u32 v46, s3, v46")
                    k("v_and_b32 v46, 3, v46")
                else:
                    k("s_lshl_b32 s3, s3, 1")
                    k("s_add_u32 s3, s3, s26")
                    k("s_add_u32 s56, s3, %d" % (g0 - 4))
                    k("v_lshrrev_b32 v46, %d, v0" % lsh)
                k("v_and_b32 v47, %d, v0" % ((1 << lsh) - 1))
                k("v_mul_u32_u24 v46, %d, v46" % tstride)
                k("v_lshl_add_u32 v46, v47, 7, v46")
            for _ in range(n):
                k("s_add_u32 s3, s56, %d" % (np_*st["i"]))
                k("s_min_u32 s3, s3, %d" % gmax)
                k("s_mul_i32 s3, s3, %d" % gstride)
                k("s_add_u32 s3, s3, s57")
                if half: k("s_mov_b32 exec_hi, 0")
                vm.op("pf", "buffer_load_dword v47, v46, s[12:15], s3 offen")
                if half: k("s_mov_b64 exec, -1")
                st["i"] += 1
        return f
    for e in str(spec).split(","):
        if not e: continue
        a, n = e.split(":")
        after[int(a)] = mk(int(n), after.get(int(a)))
    return after

def stat_load(k, tt, dst, n):
    k("s_lshl_b32 s37, s%d, 10" % tt)
    k("s_add_u32 s37, s37, 0x%x" % ST)
    k("v_lshlrev_b32 v20, 6, v2")
    k("v_lshl_add_u32 v20, v3, 4, v20")
    return ["buffer_load_dwordx4 %s, v20, s[12:15], s37 offen offset:%d" % (vr(dst + 4*j, 4), 1024*j) for j in range(n)]

def consumer(k, F, T, GK, acc, wf, NB, tok, waddr, taddr, LA, LOOK, hooks=None, tsj=()):
    hooks = hooks or {}
    lg = LG(k)
    R = []; seen = set()
    for f, (ks, n) in enumerate(F):
        if ks not in seen:
            seen.add(ks)
            for j in range(T): R.append(("t", ks, j))
        R.append(("w", f))
    pos = {r: i for i, r in enumerate(R)}
    st = {"nr": 0, "g": -1}
    def rd_upto(i):
        while st["nr"] <= min(i, len(R) - 1):
            r = R[st["nr"]]
            ks = r[1] if r[0] == "t" else F[r[1]][0]
            while ks//GK > st["g"]:
                st["g"] += 1
                k("s_barrier")
                if st["g"] in tsj: k.ts(3 + list(tsj).index(st["g"]))
                if ("sync", st["g"]) in hooks: hooks[("sync", st["g"])](lg)
            if r[0] == "t":
                a = taddr(ks, r[2]); v = LA[1]; d = tok(ks, r[2])
            else:
                a = waddr(*F[r[1]]); v = LA[0]; d = wf(r[1] % NB)
            lg.op(r, "ds_read_b128 %s, v%d offset:%d" % (d, v + (a >> 16), a & 0xffff))
            st["nr"] += 1
    first = set()
    for f, (ks, n) in enumerate(F):
        rd_upto(pos[("w", f)] + LOOK)
        lg.wait(("w", f))
        for j in range(T):
            k("v_mfma_f32_16x16x32_bf16 %s, %s, %s, %s" % (acc(n, j), wf(f % NB), tok(ks, j), acc(n, j) if n in first else "0"))
            if ("m", f, j) in hooks: hooks[("m", f, j)](lg)
        first.add(n)
        if ("f", f) in hooks: hooks[("f", f)](lg)
    k.ts(12)
    return lg

def head(k, END, ptrs):
    k("s_cmp_ge_u32 s2, 256")
    k("s_cbranch_scc1 %s" % END)
    for (s, o) in ptrs: k("s_load_dwordx2 s[%d:%d], s[0:1], %d" % (s, s + 1, o))
    k("""
    v_lshrrev_b32 v1, 6, v0
    v_and_b32 v0, 63, v0
    v_readfirstlane_b32 s26, v1
    v_lshlrev_b32 v1, 4, v0
    s_and_b32 s10, s2, 7
    s_lshr_b32 s11, s2, 3
    """)

PRIO = [0]
def lane_setup(k, toff):
    if PRIO[0] > 0: k("s_setprio %d" % PRIO[0])
    k("""
    v_and_b32 v2, 15, v0
    v_lshrrev_b32 v3, 4, v0
    v_mov_b32 v4, v1
    v_add_u32 v5, 0x10000, v1
    v_add_u32 v6, 0x20000, v1
    """)
    k("s_mul_i32 s3, s26, %d" % toff)
    for i in range(3): k("v_add_u32 v%d, s3, v%d" % (7 + i, 4 + i))

def tile_offsets(k, n):
    for i in range(n):
        k("s_add_u32 s3, s41, %d" % i)
        k("s_lshr_b32 s42, s3, 1")
        k("s_lshl_b32 s42, s42, 10")
        k("s_and_b32 s3, s3, 1")
        k("s_lshl_b32 s3, s3, 3")
        k("s_add_u32 s42, s42, s3")
        k("s_add_u32 s%d, s42, s40" % (44 + i))

def qreduce2(k, a, b, t, u):
    for op in ("v_permlane16_swap_b32", "v_permlane32_swap_b32"):
        k("v_mov_b32 v%d, v%d" % (t, a))
        k("v_mov_b32 v%d, v%d" % (u, b))
        k("s_nop 0")
        k("%s v%d, v%d" % (op, a, t))
        k("%s v%d, v%d" % (op, b, u))
        k("s_nop 0")
        k("v_add_f32 v%d, v%d, v%d" % (a, a, t))
        k("v_add_f32 v%d, v%d, v%d" % (b, b, u))

def n5_addr(NSLOT, SL):
    def waddr(ks, n):
        i = (ks & 1)*5 + n
        return ((ks//2) % NSLOT)*SL + (i*1024 if i < 9 else 17408)
    def taddr(ks, j):
        return ((ks//2) % NSLOT)*SL + 9216 + (ks & 1)*1024
    return waddr, taddr

def gen_s3(opt=None):
    opt = opt or {}
    PRIO[0] = opt.get("prio", 0)
    stpol = opt.get("s3_stpol", "").replace("_", " ")
    fl3 = opt.get("fl3", 0)
    NSLOT = 8; SL = 18432; XL = NSLOT*SL
    k = Kern("s3_wo_kernel", 256, 384, XL + 10240, nv=128)
    k.tson = opt.get("ts", 0); k.kid = 2
    k.ts(0, True); k.ts(1)
    END = k.label("end"); LC = k.label("c")
    ACC = 32; WF = 52; NB = 8; TOK = 84; ONES = 28
    head(k, END, [(8, 72), (4, 0)])
    k("""
    s_and_b32 s3, s10, 1
    s_lshl_b32 s24, s3, 4
    s_lshr_b32 s3, s10, 1
    s_lshl_b32 s3, s3, 2
    s_add_u32 s24, s24, s3
    s_and_b32 s3, s11, 3
    s_add_u32 s24, s24, s3
    s_lshl_b32 s24, s24, 2
    s_lshr_b32 s25, s11, 2
    """)
    k("s_cmp_lt_u32 s26, 4")
    k("s_cbranch_scc1 %s" % LC)
    k("s_mul_i32 s28, s25, %d" % (100*1024))
    k("s_add_u32 s28, s28, 0x%x" % WO)
    k("s_mul_i32 s30, s24, %d" % (20*1024))
    k("s_add_u32 s30, s30, 0x%x" % AO)
    k("s_mov_b32 s57, s30")
    loader_setup(k, 9, (10240, 2048), lambda i: (i >> 1)*20480 + (i & 1)*1024)
    XV = 17; CF = 32; CA = 24
    def setup2(vm):
        k.srd(16, 4, XB)
        k("s_lshl_b32 s3, s24, 4")
        k("s_mul_i32 s31, s3, 1280")
        k("s_mul_i32 s3, s25, 160")
        k("s_add_u32 s31, s31, s3")
        k("s_sub_u32 s39, s26, 4")
        k("s_mul_i32 s3, s39, 320")
        k("s_mul_i32 s38, s39, 5120")
        k("v_add_u32 v43, s3, v0")
        for n in range(5):
            k("v_add_u32 v40, %d, v43" % (64*n))
            k("v_mul_u32_u24 v41, 6554, v40")
            k("v_lshrrev_b32 v41, 16, v41")
            k("v_mul_u32_u24 v42, 10, v41")
            k("v_sub_u32 v40, v40, v42")
            k("v_mul_u32_u24 v41, 1280, v41")
            k("v_lshl_add_u32 v%d, v40, 4, v41" % (XV + n))
        if opt.get("csp", 1): return
        k("""
        s_xor_b32 s3, s10, s39
        s_and_b32 s3, s3, 1
        s_lshl_b32 s3, s3, 5
        s_add_u32 s32, s3, s11
        s_min_u32 s33, s32, 55
        s_mul_i32 s34, s33, 4682
        s_lshr_b32 s34, s34, 16
        s_mul_i32 s3, s34, 14
        s_sub_u32 s33, s33, s3
        s_lshr_b32 s3, s10, 1
        s_lshl_b32 s3, s3, 2
        s_add_u32 s35, s3, s34
        s_mul_i32 s36, s35, 14
        s_add_u32 s36, s36, s33
        s_lshl_b32 s36, s36, 6
        s_cmp_eq_u32 s33, 6
        s_cselect_b32 s3, 1, 0
        s_cmp_eq_u32 s33, 13
        s_cselect_b32 s3, 1, s3
        s_cmp_eq_u32 s34, 3
        s_cselect_b32 s3, s3, 0
        s_sub_u32 s33, s33, s3
        s_mul_i32 s37, s35, 280
        s_add_u32 s37, s37, s33
        s_lshl_b32 s37, s37, 10
        """)
        k("s_add_u32 s37, s37, 0x%x" % GU)
        k("s_add_u32 s36, s36, 0x%x" % CS)
        for r in range(4): k("v_mov_b32 v%d, 0x3f803f80" % (ONES + r))
    def xload(vm):
        emit_ops(k, vm, "x", [(XL + n*1024, XV + n, 16, 31, 0) for n in range(5)], base=38)
    def cload(vm, p=0, n=1):
        for s in range(20*p//n, 20*(p + 1)//n):
            if opt.get("s3_nocl"):
                vm.op(("c", s), "s_nop 0"); continue
            vm.op(("c", s), "buffer_load_dwordx4 %s, v1, s[12:15], s37 offen" % vr(CF + 4*s, 4))
            if s < 19: k("s_add_u32 s37, s37, %d" % (14*1024))
    def ctail(vm):
        for s in range(20):
            if s % 5 == 0: vm.wait(("c", s + 4))
            k("v_mfma_f32_16x16x32_bf16 %s, %s, %s, %s" % (vr(CA, 4), vr(CF + 4*s, 4), vr(ONES, 4), vr(CA, 4) if s else "0"))
        E2 = k.label("e2")
        k("s_cmp_lt_u32 s32, 56")
        k("s_cbranch_scc0 %s" % E2)
        k("v_and_b32 v2, 0x300, v1")
        k("v_lshrrev_b32 v2, 4, v2")
        k("s_mov_b32 s38, 0x00010001")
        k("s_mov_b32 s39, 0x00010001")
        k("s_mov_b64 exec, s[38:39]")
        k("s_nop 7")
        k("buffer_store_dwordx4 %s, v2, s[12:15], s36 offen %s" % (vr(CA, 4), stpol))
        k.put(E2)
    def gupf(vm, p=0, np_=1):
        if not opt.get("s3_pf", 1): return
        for n in range(3*p//np_, 3*(p + 1)//np_):
            k("v_add_u32 v40, %d, v0" % (64*n))
            if n == 2: k("v_min_u32 v40, 159, v40")
            k("v_lshrrev_b32 v41, 3, v40")
            k("v_and_b32 v40, 7, v40")
            k("v_mul_u32_u24 v41, 14336, v41")
            k("v_lshl_add_u32 v40, v40, 7, v41")
            vm.op("pf", "buffer_load_dword v%d, v40, s[12:15], s37 offen" % (44 + n))
    d0 = opt.get("s3_d0", 3)
    tsj = [0, 1, 2, 4, 6, 8, 9]
    aft = coop_pf(k, {}, opt.get("s3_cp", ""), opt.get("s3_cp0", 2), 9, 8, lambda k: k("s_mov_b32 s3, s25"), 4, 20480, 2048, True)
    for g, fn in ((opt.get("s3_su", d0 - 1), setup2), (opt.get("s3_xa", 7), xload)):
        aft[g] = (lambda a, b: lambda vm: (a(vm), b(vm)))(aft[g], fn) if g in aft else fn
    def cspf(vm, p=0, np_=1):
        gpf2(vm, p, np_)
        if not opt.get("s3_cspf", 0): return
        k("s_mul_i32 s3, s11, 18")
        k("v_min_u32 v40, 17, v0")
        k("v_add_u32 v40, s3, v40")
        k("v_min_u32 v40, 0x22f, v40")
        k("v_lshlrev_b32 v40, 7, v40")
        k("s_lshr_b32 s3, s10, 1")
        k("s_mul_i32 s3, s3, 71680")
        k("s_add_u32 s3, s3, 0x%x" % CS)
        vm.op("pf", "buffer_load_dword v43, v40, s[12:15], s3 offen")
    def gpf2(vm, p=0, np_=1):
        for n in range(opt.get("s3_gpf", 0)):
            k("s_lshl_b32 s3, s11, 1")
            k("s_add_u32 s3, s3, s26")
            k("s_add_u32 s3, s3, %d" % (64*n - 4))
            k("s_lshl_b32 s3, s3, 6")
            k("v_add_u32 v40, s3, v0")
            k("v_lshrrev_b32 v41, 4, v40")
            k("v_mul_u32_u24 v41, 9363, v41")
            k("v_lshrrev_b32 v41, 16, v41")
            k("v_mul_u32_u24 v42, 112, v41")
            k("v_sub_u32 v40, v40, v42")
            k("v_and_b32 v42, 3, v41")
            k("v_lshrrev_b32 v41, 2, v41")
            k("v_mul_u32_u24 v42, %d, v42" % (280*8))
            k("v_mul_u32_u24 v41, 112, v41")
            k("v_add3_u32 v40, v40, v41, v42")
            k("v_lshlrev_b32 v40, 7, v40")
            k("s_lshr_b32 s3, s10, 1")
            k("s_mul_i32 s3, s3, %d" % (4*280*1024))
            k("s_add_u32 s3, s3, 0x%x" % GU)
            vm.op("pf", "buffer_load_dword v%d, v40, s[12:15], s3 offen" % (44 + n))
    csp = opt.get("csp", 1)
    loader(k, 10, NSLOT, d0, opt.get("s3_dm", 4), std_batch(k, 9, NSLOT, SL, 10240), aft,
           [(cspf, None), (gpf2, None)] if csp else [(cload, ctail), (gupf, None)], tsj,
           [int(x) for x in str(opt["s3_xat"]).split("x")] if "s3_xat" in opt else None)
    k.put(LC)
    lane_setup(k, 2048)
    k("s_add_u32 s24, s24, s26")
    k("v_mov_b32 v%d, 0x3f803f80" % ONES)
    k("s_mul_i32 s3, s26, 2560")
    k("s_add_u32 s3, s3, %d" % XL)
    k("v_mul_u32_u24 v20, 160, v2")
    k("v_lshl_add_u32 v20, v3, 3, v20")
    k("v_add_u32 v20, s3, v20")
    k("s_mul_i32 s40, s24, 20480")
    k("s_add_u32 s40, s40, 0x%x" % HF)
    if fl3:
        k("s_lshl_b32 s44, s25, 11")
        k("s_add_u32 s44, s44, s40")
        k("s_lshl_b32 s45, s25, 9")
        k("s_add_u32 s45, s45, s40")
        k("s_add_u32 s45, s45, %d" % (16*1024))
        k("v_lshrrev_b32 v11, 1, v3")
        k("v_lshlrev_b32 v11, 8, v11")
        k("v_lshl_add_u32 v11, v2, 4, v11")
    else:
        k("s_mul_i32 s41, s25, 5")
        tile_offsets(k, 5)
    k("s_lshl_b32 s3, s24, 10")
    k("s_lshl_b32 s43, s25, 3")
    k("s_add_u32 s43, s43, s3")
    k("s_add_u32 s43, s43, 0x%x" % ST)
    k("v_lshlrev_b32 v21, 6, v2")
    k("v_mov_b32 v24, 0")
    k("v_mov_b32 v25, 0")
    k("s_waitcnt lgkmcnt(0)")
    k.srd(12, 8, WS_END)
    k.ts(2)
    XR = 100; XU = 108
    def xread(lg):
        for i in range(5): lg.op("x", "ds_read_b64 %s, v20 offset:%d" % (vr(XR + 2*i, 2), 32*i))
    def xunp(i):
        def f(lg):
            x = XR + 2*i; u = XU + 4*i
            k("v_lshlrev_b32 v%d, 16, v%d" % (u + 2, x + 1))
            k("v_and_b32 v%d, 0xffff0000, v%d" % (u + 3, x + 1))
            k("v_and_b32 v%d, 0xffff0000, v%d" % (u + 1, x))
            k("v_lshlrev_b32 v%d, 16, v%d" % (u, x))
        return f
    F = [(ks, n) for ks in range(20) for n in range(5)]
    hooks = {("sync", 9): xread}
    for i in range(5): hooks[("f", 95 + i)] = xunp(4 - i)
    wa, ta = n5_addr(NSLOT, SL)
    consumer(k, F, 1, 2, lambda n, j: vr(ACC + 4*n, 4), lambda b: vr(WF + 4*b, 4), NB, lambda ks, j: vr(TOK + 4*(ks & 3), 4),
             wa, ta, (4, 7), opt.get("s3_look", 5), hooks, tsj)
    for i in range(5):
        a = ACC + 4*i
        k("v_pk_add_f32 %s, %s, %s" % (vr(a, 2), vr(a, 2), vr(XU + 4*i, 2)))
        k("v_pk_add_f32 %s, %s, %s" % (vr(a + 2, 2), vr(a + 2, 2), vr(XU + 4*i + 2, 2)))
        d = a - 2 if fl3 and i & 1 else a
        k("v_cvt_pk_bf16_f32 v%d, v%d, v%d" % (d, a, a + 1))
        k("v_cvt_pk_bf16_f32 v%d, v%d, v%d" % (d + 1, a + 2, a + 3))
        if not fl3: k("buffer_store_dwordx2 %s, v1, s[12:15], s%d offen %s" % (vr(a, 2), 44 + i, stpol))
        elif i & 1: k("buffer_store_dwordx4 %s, v1, s[12:15], s44 offen offset:%d %s" % (vr(a - 4, 4), 1024*(i >> 1), stpol))
        elif i == 4:
            for r in range(4): k("v_mov_b32 v%d, v%d" % (WF + r, a + (r & 1)))
            k("s_nop 0")
            k("v_permlane16_swap_b32 v%d, v%d" % (WF, WF + 2))
            k("v_permlane16_swap_b32 v%d, v%d" % (WF + 1, WF + 3))
            k("s_mov_b32 exec_lo, 0xffff")
            k("s_mov_b32 exec_hi, 0xffff")
            k("buffer_store_dwordx4 %s, v11, s[12:15], s45 offen %s" % (vr(WF, 4), stpol))
            k("s_mov_b64 exec, -1")
    for i in range(5):
        a = ACC + 4*i - (2 if fl3 and i & 1 else 0)
        for h in range(2):
            k("v_dot2c_f32_bf16 v24, v%d, v%d" % (a + h, ONES))
            k("v_dot2c_f32_bf16 v25, v%d, v%d" % (a + h, a + h))
    k("s_nop 2")
    qreduce2(k, 24, 25, 22, 23)
    k("s_mov_b64 exec, 0xffff")
    k("buffer_store_dwordx2 v[24:25], v21, s[12:15], s43 offen")
    k.tsdump()
    k.put(END)
    k("s_endpgm")
    return k

def gen_s4(opt=None):
    opt = opt or {}
    stpol = opt.get("s4_stpol", "").replace("_", " ")
    fl4 = opt.get("fl4", 0)
    NSLOT = 7; SL = 22528; CL = NSLOT*SL
    LT = opt.get("s4_lt", 4)
    k = Kern("s4_gu_kernel", 256, 384, CL + 1024, nv=240)
    k.tson = opt.get("ts", 0); k.kid = 3
    k.ts(0, True); k.ts(1)
    END = k.label("end"); LC = k.label("c")
    ACC = 32; WF = 144; NB = 8; TOK = 176; NT = max(LT, 2); CSV = TOK + 8*NT; STV = CSV
    assert CSV + 16 <= 240
    head(k, END, [(8, 72)])
    k("""
    s_and_b32 s3, s10, 1
    s_lshl_b32 s24, s3, 3
    s_and_b32 s3, s11, 7
    s_add_u32 s24, s24, s3
    s_lshl_b32 s24, s24, 3
    s_lshr_b32 s34, s11, 3
    s_lshr_b32 s33, s10, 1
    s_lshl_b32 s25, s33, 2
    s_add_u32 s25, s25, s34
    """)
    k("s_cmp_lt_u32 s26, 4")
    k("s_cbranch_scc1 %s" % LC)
    k("s_mul_i32 s28, s25, %d" % (280*1024))
    k("s_add_u32 s28, s28, 0x%x" % GU)
    k("s_mul_i32 s30, s24, %d" % (20*1024))
    k("s_add_u32 s30, s30, 0x%x" % HF)
    k("s_cmp_eq_u32 s34, 3")
    k("s_cselect_b32 s36, 1024, 0")
    k("s_mov_b32 s57, s30")
    loader_setup(k, 11, (14336, 1024), lambda i: i*20480, (36, 6, 13))
    csp = opt.get("csp", 1)
    def csload(vm):
        if not csp:
            k("s_mul_i32 s38, s25, 896")
            k("s_add_u32 s38, s38, 0x%x" % CS)
            emit_ops(k, vm, "cs", [(CL, 1, 12, 38, 0)])
            return
        k("s_mul_i32 s38, s25, 17920")
        k("s_mul_i32 s39, s26, 448")
        k("s_add_u32 s38, s38, s39")
        k("s_add_u32 s38, s38, 0x%x" % (CS - 4*448))
        k("v_and_b32 v20, 31, v0")
        k("v_min_u32 v20, 27, v20")
        k("v_lshlrev_b32 v20, 4, v20")
        k("v_lshrrev_b32 v21, 5, v0")
        k("v_mul_u32_u24 v21, 0x380, v21")
        k("v_add_u32 v21, v21, v20")
        k("s_add_u32 s39, s39, %d" % (CL - 4*448))
        k("v_add_u32 v20, s39, v20")
        for p in range(10):
            pre = ["s_add_u32 s38, s38, 5376"] if p and p % 3 == 0 else []
            vm.op("cs", *(pre + ["buffer_load_dwordx4 %s, v21, s[12:15], s38 offen offset:%d" % (vr(48 + 4*p, 4), 1792*(p % 3))]))
    def csred(vm):
        vm.wait("cs")
        for st in (5, 2, 1):
            for p in range(st):
                for r in range(4): k("v_add_f32 v%d, v%d, v%d" % (48 + 4*p + r, 48 + 4*p + r, 48 + 4*(p + st) + r))
        for r in range(4): k("v_add_f32 v%d, v%d, v%d" % (48 + r, 48 + r, 64 + r))
        for r in range(4): k("v_mov_b32 v%d, v%d" % (52 + r, 48 + r))
        k("s_nop 0")
        for r in range(4): k("v_permlane32_swap_b32 v%d, v%d" % (48 + r, 52 + r))
        k("s_nop 0")
        for r in range(4): k("v_add_f32 v%d, v%d, v%d" % (48 + r, 48 + r, 52 + r))
        k("ds_write_b128 v20, v[48:51]")
        k("s_waitcnt lgkmcnt(0)")
    def wdpf(h):
        def f(vm, p=0, n=1):
            if not opt.get("s4_pf", 1): return
            pn = opt.get("s4_pfn", 0)
            if pn:
                if p: return
                k("s_bfe_u32 s3, s10, 0x10001")
                k("s_lshl_b32 s3, s3, 2")
                k("s_lshr_b32 s38, s11, 3")
                k("s_add_u32 s3, s3, s38")
                k("s_mul_i32 s38, s3, %d" % (270*1024))
                k("s_and_b32 s3, s11, 7")
                k("s_mul_i32 s3, s3, %d" % (pn*256))
                k("s_add_u32 s38, s38, s3")
                k("s_add_u32 s38, s38, 0x%x" % (WD + h*pn*128))
                k("v_min_u32 v40, %d, v0" % (pn - 1))
                k("v_lshlrev_b32 v40, 7, v40")
                vm.op("pf", "buffer_load_dword v44, v40, s[12:15], s38 offen")
                return
            if p == 0:
                k("s_bfe_u32 s3, s10, 0x10001")
                k("s_lshl_b32 s3, s3, 5")
                k("s_add_u32 s3, s3, s11")
                k("s_mul_i32 s38, s3, 34560")
                k("s_add_u32 s38, s38, 0x%x" % (WD + h*16384))
                k("v_lshlrev_b32 v40, 7, v0")
                k("v_add_u32 v41, 8192, v40")
                vm.op("pf", "buffer_load_dword v44, v40, s[12:15], s38 offen")
            if p == n - 1:
                vm.op("pf", "buffer_load_dword v45, v41, s[12:15], s38 offen")
            if h == 0 and p == n - 1:
                k("v_min_u32 v42, 13, v0")
                k("v_lshlrev_b32 v42, 7, v42")
                k("s_add_u32 s38, s38, 32768")
                vm.op("pf", "buffer_load_dword v46, v42, s[12:15], s38 offen")
        return f
    d0 = opt.get("s4_d0", 2)
    tsj = [0, 1, 2, 4, 8, 12, 16, 19]
    WB = [int(x) for x in str(opt.get("s4_wb", "")).split("x") if x]
    def wbtail(h):
        def f(vm):
            for n, i in enumerate(WB):
                k("s_barrier")
                if h == 0:
                    L = k.label("wb")
                    k("s_cmp_lg_u32 s11, %d" % n)
                    k("s_cbranch_scc1 %s" % L)
                    k("buffer_wbl2 sc1")
                    k.put(L)
        return f
    loader(k, 20, NSLOT, d0, opt.get("s4_dm", 5), std_batch(k, 11, NSLOT, SL, 14336),
           coop_pf(k, {opt.get("s4_csl", 19): csload} if csp else {6: csload}, opt.get("s4_cp", ""), opt.get("s4_cp0", 4), 19, 8, lambda k: k("s_mov_b32 s3, s34"), 3, 20480, 1024),
           [(wdpf(0), wbtail(0)), (wdpf(1), wbtail(1))], tsj, [int(x) for x in str(opt["s4_xat"]).split("x")] if "s4_xat" in opt else None, {opt.get("s4_csr", 19): csred} if csp else None)
    k.put(LC)
    lane_setup(k, 2048)
    k("s_lshl_b32 s3, s26, 1")
    k("s_add_u32 s24, s24, s3")
    L = stat_load(k, 24, STV, 2)
    k("s_mul_i32 s41, s33, 27")
    k("s_mul_i32 s3, s34, 7")
    k("s_add_u32 s41, s41, s3")
    k("s_mul_i32 s40, s24, %d" % (54*1024))
    k("s_add_u32 s40, s40, 0x%x" % HH)
    k("v_add_u32 v10, %d, v1" % (54*1024))
    k("v_lshlrev_b32 v21, 4, v3")
    k("v_add_u32 v21, %d, v21" % CL)
    if fl4:
        k("s_mul_i32 s44, s25, 3072")
        k("s_add_u32 s44, s44, s40")
        k("s_mul_i32 s3, s33, 3")
        k("s_add_u32 s3, s3, s34")
        k("s_lshl_b32 s3, s3, 9")
        k("s_add_u32 s45, s3, s40")
        k("s_add_u32 s45, s45, %d" % (48*1024))
        k("v_and_b32 v11, 1, v3")
        k("v_mul_u32_u24 v11, %d, v11" % (54*1024))
        k("v_lshl_add_u32 v11, v2, 4, v11")
        k("v_lshrrev_b32 v12, 1, v3")
        k("v_lshl_add_u32 v11, v12, 8, v11")
    else: tile_offsets(k, 7)
    k("s_waitcnt lgkmcnt(0)")
    k.srd(12, 8, WS_END)
    k.ts(2)
    F = [(ks, n) for ks in range(20 - LT) for n in range(14)]
    f0 = len(F)
    F += [(ks, n) for i in range(7) for ks in range(20 - LT, 20) for n in (i, i + 7)]
    def put(lines, w=None):
        def f(lg):
            if w: lg.wait(w)
            for ln in lines: k(ln)
        return f
    def stats(lg):
        k("s_waitcnt vmcnt(0)")
        k("v_add_f32 v22, v%d, v%d" % (STV, STV + 2))
        k("v_add_f32 v23, v%d, v%d" % (STV + 4, STV + 6))
        qreduce2(k, 22, 23, 24, 25)
        k("v_mul_f32 v22, 0x%x, v22" % f2u(-1.0/640))
        k("v_mul_f32 v23, 0x%x, v23" % f2u(-1.0/640))
    hooks = {("f", 30): put(L[:1]), ("f", 36): put(L[1:]), ("f", 120): stats}
    def csread(i):
        def f(lg):
            for h in range(2):
                lg.op(("cs", i), "ds_read_b128 %s, v21 offset:%d" % (vr(CSV + 8*(i & 1) + 4*h, 4), 64*(i + 7*h)))
        return f
    def epi(i):
        O = []
        c = CSV + 8*(i & 1)
        for j in range(2):
            g = ACC + 8*i + 4*j
            O += ["v_fma_f32 v%d, v%d, v%d, v%d" % (g + r, c + r, 22 + j, g + r) for r in range(4)]
            O += ["v_max_f32 v%d, 0, v%d" % (g + r, g + r) for r in range(4)]
        for j in range(2):
            g = ACC + 8*i + 4*j; u = g + 56
            O += ["v_fma_f32 v%d, v%d, v%d, v%d" % (u + r, c + 4 + r, 22 + j, u + r) for r in range(4)]
            O += ["v_mul_f32 v%d, v%d, v%d" % (g + r, g + r, u + r) for r in range(4)]
            d = g - 6 if fl4 and i & 1 else g
            O += ["v_cvt_pk_bf16_f32 v%d, v%d, v%d" % (d, g, g + 1), "v_cvt_pk_bf16_f32 v%d, v%d, v%d" % (d + 1, g + 2, g + 3)]
            if fl4:
                if i & 1: O += ["buffer_store_dwordx4 %s, v%d, s[12:15], s44 offen offset:%d %s" % (vr(g - 8, 4), 1 if j == 0 else 10, 1024*(i >> 1), stpol)]
            elif opt.get("s4_hack"):
                if i & 1: O += ["s_and_b32 s3, s%d, 0xfffffff0" % (44 + i), "buffer_store_dwordx4 %s, v%d, s[12:15], s3 offen %s" % (vr(g, 4), 1 if j == 0 else 10, stpol)]
            else:
                O += ["buffer_store_dwordx2 %s, v%d, s[12:15], s%d offen %s" % (vr(g, 2), 1 if j == 0 else 10, 44 + i, stpol)]
        return O
    for i in range(7):
        hooks[("f", f0 + 2*LT*i + (2*LT - 3 if csp else 1))] = csread(i)
        if i < 6:
            O = epi(i); ns = 4*LT - 1
            for m in range(ns):
                f = f0 + 2*LT*(i + 1) + (m + 1)//2
                hooks[("m", f, (m + 1) & 1)] = put(O[len(O)*m//ns: len(O)*(m + 1)//ns], ("cs", i))
    for i in WB: hooks[("f", f0 + 2*LT*i)] = put(["s_barrier"])
    def waddr(ks, n): return (ks % NSLOT)*SL + (n*1024 if n < 11 else (n + 8)*1024)
    def taddr(ks, j): return (ks % NSLOT)*SL + 11264 + j*1024
    lg = consumer(k, F, 2, 1, lambda n, j: vr(ACC + 8*n + 4*j, 4), lambda b: vr(WF + 4*b, 4), NB,
                  lambda ks, j: vr(TOK + 8*(ks % NT) + 4*j, 4), waddr, taddr, (4, 7), opt.get("s4_look", 5), hooks, tsj)
    E2 = k.label("e2")
    k("s_cmp_eq_u32 s34, 3")
    k("s_cbranch_scc1 %s" % E2)
    lg.wait(("cs", 6))
    k("s_nop 2")
    c = CSV; i = 6
    PK = " op_sel:[0,%d,0] op_sel_hi:[1,%d,1]"
    for j in range(2):
        g = ACC + 8*i + 4*j
        for h in range(2): k("v_pk_fma_f32 %s, %s, v[22:23], %s" % (vr(g + 2*h, 2), vr(c + 2*h, 2), vr(g + 2*h, 2)) + PK % (j, j))
        for r in range(4): k("v_max_f32 v%d, 0, v%d" % (g + r, g + r))
    for j in range(2):
        g = ACC + 8*i + 4*j; u = g + 56
        for h in range(2): k("v_pk_fma_f32 %s, %s, v[22:23], %s" % (vr(u + 2*h, 2), vr(c + 4 + 2*h, 2), vr(u + 2*h, 2)) + PK % (j, j))
        for h in range(2): k("v_pk_mul_f32 %s, %s, %s" % (vr(g + 2*h, 2), vr(g + 2*h, 2), vr(u + 2*h, 2)))
        d = g - 2*j if fl4 else g
        k("v_cvt_pk_bf16_f32 v%d, v%d, v%d" % (d, g, g + 1))
        k("v_cvt_pk_bf16_f32 v%d, v%d, v%d" % (d + 1, g + 2, g + 3))
        if not fl4: k("buffer_store_dwordx2 %s, v%d, s[12:15], s%d offen %s" % (vr(g, 2), 1 if j == 0 else 10, 44 + i, stpol))
    if fl4:
        g = ACC + 8*i
        k("s_nop 0")
        k("v_permlane16_swap_b32 v%d, v%d" % (g, g + 2))
        k("v_permlane16_swap_b32 v%d, v%d" % (g + 1, g + 3))
        k("s_nop 0")
        k("buffer_store_dwordx4 %s, v11, s[12:15], s45 offen %s" % (vr(g, 4), stpol))
    k.put(E2)
    k.tsdump()
    k.put(END)
    k("s_endpgm")
    return k

def gen_s5(opt=None):
    opt = opt or {}
    stpol = opt.get("s5_stpol", "").replace("_", " ")
    fl3 = opt.get("fl3", 0)
    raw = "4" in str(opt.get("g2", ""))
    NSLOT = 8; SL = 18432
    k = Kern("s5_dn_kernel", 256, 384, NSLOT*SL, nv=128)
    k.tson = opt.get("ts", 0); k.kid = 4
    k.ts(0, True); k.ts(1)
    END = k.label("end"); LC = k.label("c")
    ACC = 32; WF = 52; NB = 8; TOK = 84; HR = 100; HU = 108
    head(k, END, [(8, 72), (4, 56)])
    k("""
    s_and_b32 s3, s10, 1
    s_lshl_b32 s24, s3, 1
    s_lshr_b32 s3, s10, 2
    s_add_u32 s24, s24, s3
    s_lshl_b32 s24, s24, 3
    s_and_b32 s3, s11, 7
    s_add_u32 s24, s24, s3
    s_lshl_b32 s24, s24, 2
    s_bfe_u32 s25, s10, 0x10001
    s_lshl_b32 s25, s25, 2
    s_lshr_b32 s3, s11, 3
    s_add_u32 s25, s25, s3
    """)
    k("s_cmp_lt_u32 s26, 4")
    k("s_cbranch_scc1 %s" % LC)
    k("s_mul_i32 s28, s25, %d" % (270*1024))
    k("s_add_u32 s28, s28, 0x%x" % WD)
    k("s_mul_i32 s30, s24, %d" % (54*1024))
    k("s_add_u32 s30, s30, 0x%x" % HH)
    k("s_mov_b32 s57, s30")
    loader_setup(k, 9, (10240, 2048), lambda i: (i >> 1)*55296 + (i & 1)*1024)
    tsj = [0, 1, 2, 6, 10, 14, 18, 22, 26]
    loader(k, 27, NSLOT, opt.get("s5_d0", 3), opt.get("s5_dm", 5), std_batch(k, 9, NSLOT, SL, 10240),
           coop_pf(k, {}, opt.get("s5_cp", ""), opt.get("s5_cp0", 3), 26, 8, lambda k: k("s_lshr_b32 s3, s11, 3"), 4, 55296, 2048),
           [(None, None), (None, None)], tsj)
    k.put(LC)
    lane_setup(k, 2048)
    k("s_add_u32 s24, s24, s26")
    L = stat_load(k, 24, 24, 1)
    k("s_mul_i32 s40, s24, 20")
    if fl3:
        k("s_lshl_b32 s40, s40, 10")
        k("s_add_u32 s40, s40, 0x%x" % HF)
        k("s_lshl_b32 s41, s25, 9")
        k("s_add_u32 s41, s41, s40")
        k("s_add_u32 s41, s41, %d" % (16*1024))
        k("s_lshl_b32 s3, s25, 11")
        k("s_add_u32 s40, s40, s3")
        k("v_lshrrev_b32 v19, 1, v3")
        k("v_lshlrev_b32 v19, 8, v19")
        k("v_lshl_add_u32 v19, v2, 4, v19")
        k("v_and_b32 v22, 1, v3")
        k("v_lshl_add_u32 v19, v22, 3, v19")
    else:
        k("s_mul_i32 s41, s25, 5")
        k("s_lshr_b32 s3, s41, 1")
        k("s_add_u32 s40, s40, s3")
        k("s_lshl_b32 s40, s40, 10")
        k("s_add_u32 s40, s40, 0x%x" % HF)
    k("s_waitcnt lgkmcnt(0)")
    k.srd(12, 8, WS_END)
    k.srd(16, 4, XB)
    k("s_lshl_b32 s3, s24, 4")
    k("v_add_u32 v18, s3, v2")
    k("v_mul_u32_u24 v18, 1280, v18")
    k("s_mul_i32 s3, s25, 160")
    k("v_add_u32 v18, s3, v18")
    k("v_lshl_add_u32 v21, v3, 3, v18")
    k("v_and_b32 v22, 1, v3")
    k("v_lshl_add_u32 v18, v22, 5, v18")
    k("v_lshrrev_b32 v22, 1, v3")
    k("v_lshl_add_u32 v18, v22, 4, v18")
    def stats(lg):
        k("s_waitcnt vmcnt(0)")
        k("v_add_f32 v30, v24, v26")
        k("v_add_f32 v31, v25, v27")
        qreduce2(k, 30, 31, 22, 23)
        k("v_mul_f32 v30, 0x%x, v30" % f2u(1.0/640))
        k("v_mul_f32 v31, 0x%x, v31" % f2u(1.0/640))
        k("v_fma_f32 v30, -v30, v30, v31")
        k("v_max_f32 v30, 0, v30")
        k("v_add_f32 v30, 0x%x, v30" % f2u(1e-5))
        k("v_rcp_f32 v30, v30")
    k.ts(2)
    HB = [10, 14, 24]
    def hload(i):
        if fl3 and i == 2: return lambda lg: k("buffer_load_dwordx2 v[24:25], v19, s[12:15], s41 offen")
        return lambda lg: k("buffer_load_dwordx4 %s, v1, s[12:15], s40 offen offset:%d" % (vr(HB[i], 4), 1024*i))
    def hunp(i):
        def f(lg):
            if i == 0:
                k("s_waitcnt vmcnt(0)")
                k("s_bitcmp1_b32 s25, 0")
                k("s_cselect_b64 vcc, -1, 0")
            hv = [10, 12, 14, 16, 24, 26]
            x = hv[i] if fl3 else HR
            for h in range(0 if fl3 else 2):
                k("v_cndmask_b32 v%d, v%d, v%d, vcc" % (HR + h, hv[i] + h, hv[i + 1] + h))
            k("v_lshlrev_b32 v%d, 16, v%d" % (HU + 4*i, x))
            k("v_and_b32 v%d, 0xffff0000, v%d" % (HU + 4*i + 1, x))
            k("v_lshlrev_b32 v%d, 16, v%d" % (HU + 4*i + 2, x + 1))
            k("v_and_b32 v%d, 0xffff0000, v%d" % (HU + 4*i + 3, x + 1))
        return f
    h0 = opt.get("s5_h0", 12)
    hooks = {("sync", h0 + i): hload(i) for i in range(3)}
    for i in range(5): hooks[("sync", 21 + i)] = hunp(i)
    if raw:
        hooks[("sync", 3)] = lambda lg: k(L[0])
        hooks[("sync", 10)] = stats
    F = [(ks, n) for ks in range(54) for n in range(5)]
    wa, ta = n5_addr(NSLOT, SL)
    consumer(k, F, 1, 2, lambda n, j: vr(ACC + 4*n, 4), lambda b: vr(WF + 4*b, 4), NB, lambda ks, j: vr(TOK + 4*(ks & 3), 4),
             wa, ta, (4, 7), opt.get("s5_look", 5), hooks, tsj)
    k("s_nop 3")
    R = [WF, WF + 2, WF + 4, WF + 6, WF + 8]
    for i in range(5):
        a = ACC + 4*i
        for h in range(2):
            if raw: k("v_pk_fma_f32 %s, %s, v[30:31], %s op_sel:[0,0,0] op_sel_hi:[1,0,1]" % (vr(a + 2*h, 2), vr(a + 2*h, 2), vr(HU + 4*i + 2*h, 2)))
            else: k("v_pk_add_f32 %s, %s, %s" % (vr(a + 2*h, 2), vr(a + 2*h, 2), vr(HU + 4*i + 2*h, 2)))
        k("v_cvt_pk_bf16_f32 v%d, v%d, v%d" % (R[i], a, a + 1))
        k("v_cvt_pk_bf16_f32 v%d, v%d, v%d" % (R[i] + 1, a + 2, a + 3))
    k("buffer_store_dwordx2 %s, v21, s[16:19], 0 offen offset:128 %s" % (vr(R[4], 2), stpol))
    for p in range(2):
        k("v_permlane16_swap_b32 v%d, v%d" % (R[2*p], R[2*p + 1]))
        k("v_permlane16_swap_b32 v%d, v%d" % (R[2*p] + 1, R[2*p + 1] + 1))
    k("s_nop 1")
    for p in range(2):
        k("buffer_store_dwordx4 %s, v18, s[16:19], 0 offen offset:%d %s" % (vr(R[2*p], 4), 64*p, stpol))
    k.tsdump()
    k.put(END)
    k("s_endpgm")
    return k
```
